```python
import torch

def _softmax(x, axis=-1):
    return torch.softmax(x, dim=axis)
def _gelu(x):
    return torch.nn.functional.gelu(x, approximate="tanh")
def _silu(x):
    return torch.nn.functional.silu(x)
def _sigmoid(x):
    return torch.sigmoid(x)
def _layernorm(x, axis=-1, eps=1e-5):
    m = x.mean(dim=axis, keepdim=True)
    v = x.var(dim=axis, keepdim=True, unbiased=False)
    return (x - m) / torch.sqrt(v + eps)
def _scatter_add(tgt, idx, src, axis=0):
    return tgt.clone().index_add_(axis, idx, src)
def _segment_sum(src, seg, n):
    out = torch.zeros((n,) + src.shape[1:], dtype=src.dtype)
    return out.index_add_(0, seg, src)
def _pad(x, pw):
    flat = tuple(v for pair in reversed(pw) for v in pair)
    return torch.nn.functional.pad(x, flat)

kernel_name = 'standalone__modern_conv_block_slak__vision'

def setup_inputs():

    _w = (lambda a: (lambda t: t.to(torch.bfloat16) if t.is_floating_point() else t)(torch.as_tensor(a)))
    H = W = 256
    C = 384
    K = 1
    return {
        "x": _w((lambda *s: torch.randn(*s, dtype=torch.bfloat16) * 0.05)(1, H, W, C)),
        "dw": _w((lambda *s: torch.randn(*s, dtype=torch.bfloat16) * 0.05)(K, K, C)),
        "w1": _w((lambda *s: torch.randn(*s, dtype=torch.bfloat16) * 0.05)(C, 4 * C)),
        "w2": _w((lambda *s: torch.randn(*s, dtype=torch.bfloat16) * 0.05)(4 * C, C)),
        "grn_g": _w((lambda *s: torch.randn(*s, dtype=torch.bfloat16) * 0.05)(4 * C)),
        "grn_b": _w((lambda *s: torch.randn(*s, dtype=torch.bfloat16) * 0.05)(4 * C)),
    }

def reference(x, dw, w1, w2, grn_g, grn_b):
    B, H, W, C = x.shape
    K = dw.shape[0]
    pad = K // 2
    xp = _pad(x, ((0,0),(pad,pad),(pad,pad),(0,0)))
    out = torch.zeros_like(x)
    for i in range(K):
        for j in range(K):
            out = out + xp[:, i:i+H, j:j+W, :] * dw[i, j][None, None, None, :]
    h = _layernorm(out, axis=-1)
    h = _gelu(h @ w1)
    gx = torch.sqrt((h * h).sum(axis=(1, 2), keepdims=True) + 1e-6)
    nx = gx / (gx.mean(axis=-1, keepdims=True) + 1e-6)
    h = grn_g[None, None, None, :] * (h * nx) + grn_b[None, None, None, :] + h
    return x + h @ w2
```

```python
import re, struct

def f2u(x):
    return struct.unpack('<I', struct.pack('<f', x))[0]

def R(f, i, n=1):
    return f"{f}{i}" if n == 1 else f"{f}[{i}:{i+n-1}]"
def v(i, n=1): return R('v', i, n)
def a(i, n=1): return R('a', i, n)
def s(i, n=1): return R('s', i, n)

AUTO_LABEL = False
_INLINE_F = {'0.5', '-0.5', '1.0', '-1.0', '2.0', '-2.0', '4.0', '-4.0'}
def _is_literal(tok):
    tok = tok.strip()
    if tok in _INLINE_F: return False
    try:
        val = int(tok, 0)
    except ValueError:
        return False
    return not (-16 <= val <= 64)

_VOP3_ONLY = ('v_fma_f32', 'v_pk_', 'v_mfma', 'v_cvt_pk_bf16', 'v_dot2_', 'v_accvgpr_read', 'v_accvgpr_write',
              'v_lshl_add', 'v_lshl_or', 'v_add3', 'v_and_or', 'v_mad_', 'v_mul_lo', 'v_mul_hi', 'v_bfe', 'v_perm_b32',
              'v_mbcnt', 'v_add_lshl', 'v_bfi', 'v_med3', 'v_max3', 'v_min3', 'v_readlane', 'v_writelane', 'v_or3', 'v_xad')
def isize(line):
    t = line.split(';')[0].strip()
    if not t or t.endswith(':') or t.startswith('.'): return 0
    op = t.split()[0]
    rest = t[len(op):]
    if op.startswith(('ds_', 'buffer_', 'global_', 's_load', 's_mem', 's_atomic', 's_buffer')): return 8
    if op.startswith(_VOP3_ONLY) or op.endswith(('_e64', '_dpp', '_sdwa')): return 8
    if op in ('s_waitcnt', 's_nop', 's_barrier', 's_endpgm', 's_branch', 's_setprio', 's_sleep') or op.startswith('s_cbranch') or op.startswith(('s_movk', 's_addk', 's_cmpk', 's_mulk')): return 4
    toks = [x for x in re.split(r'[,\s]+', rest) if x]
    if any(_is_literal(x) or (AUTO_LABEL and 'L_' in x) for x in toks): return 8
    if op.startswith('v_cmp') and not toks[0].startswith('vcc'): return 8
    if op.startswith('v_cndmask') and not toks[-1].startswith('vcc'): return 8
    return 4

class Asm:
    def __init__(self):
        self.lines = []
        self.pc = 0
        self.vm = []
        self.lg = []
    def __call__(self, line):
        for l in line.split('\n'):
            l = l.strip()
            if not l: continue
            self.lines.append(l)
            self.pc += isize(l)
    def label(self, name): self.lines.append(name + ':')
    def vmem(self, line, tag=None):
        self(line); self.vm.append(tag)
    def lds(self, line, tag=None):
        self(line); self.lg.append(tag)
    def _need(self, q, pred):
        last = -1
        for i, t in enumerate(q):
            if pred(t): last = i
        return last
    def wait_vm_str(self, pred):
        i = self._need(self.vm, pred)
        if i < 0: return None
        n = len(self.vm) - 1 - i
        self.vm = self.vm[i+1:]
        assert n <= 63, n
        return f"s_waitcnt vmcnt({n})"
    def wait_lg_str(self, pred):
        i = self._need(self.lg, pred)
        if i < 0: return None
        n = len(self.lg) - 1 - i
        self.lg = self.lg[i+1:]
        if n > 15: n = 15
        return f"s_waitcnt lgkmcnt({n})"
    def wait_vm(self, pred):
        w = self.wait_vm_str(pred)
        if w: self(w)
        return w is not None
    def wait_lg(self, pred):
        w = self.wait_lg_str(pred)
        if w: self(w)
        return w is not None
    def wait_all(self):
        self("s_waitcnt vmcnt(0) lgkmcnt(0)"); self.vm = []; self.lg = []
    def text(self):
        out = []
        for l in self.lines:
            out.append(l if l.endswith(':') or l.startswith('.') else ' ' + l)
        return '\n'.join(out) + '\n'

def kernel_text(name, body):
    return f".text\n.globl {name}\n.p2align 8\n.type {name},@function\n{name}:\n{body}"

def descriptor(name, vgpr, accum, sgpr=102):
    return f""".p2align 6
.amdhsa_kernel {name}
  .amdhsa_next_free_vgpr {vgpr}
  .amdhsa_next_free_sgpr {sgpr}
  .amdhsa_accum_offset {accum}
  .amdhsa_group_segment_fixed_size 0
  .amdhsa_kernarg_size 72
  .amdhsa_user_sgpr_count 2
  .amdhsa_user_sgpr_kernarg_segment_ptr 1
  .amdhsa_system_sgpr_workgroup_id_x 1
.end_amdhsa_kernel
"""
```

```python
import sys, math
from asmlib import *

OPT = dict(xpol='nt', hpol='sc1', x3pol='nt', opol='', stamps=0, R=8)
for arg in sys.argv[2:]:
    k, val = arg.split('=')
    OPT[k] = type(OPT[k])(val.replace('+', ' '))
NREP = OPT['R']

WS_BYTES = 0x10000000
X_BYTES = 65536 * 768
H_OFF = 0
W1P = 0xC000000
W2P = 0xC200000
SUMS = 0xC400000
BIAS = SUMS + NREP * 6144
STAMP = 0xC800000

KG = 2.0 * math.sqrt(2.0 / math.pi) * math.log2(math.e)
A_SC = (KG * 0.044715) ** (1.0 / 3.0)
K_SC = KG / A_SC


def srd(A, d, src, nbytes):
    if d != src:
        A(f"s_mov_b32 {s(d)}, {s(src)}")
        A(f"s_mov_b32 {s(d+1)}, {s(src+1)}")
    A(f"s_mov_b32 {s(d+2)}, {nbytes:#x}")
    A(f"s_mov_b32 {s(d+3)}, 0x20000")


def xlane_sum(A, r, t):
    for op in ('v_permlane16_swap_b32', 'v_permlane32_swap_b32'):
        A(f"v_mov_b32 {v(t)}, {v(r)}")
        A("s_nop 1")
        A(f"{op} {v(r)}, {v(t)}")
        A("s_nop 1")
        A(f"v_add_f32 {v(r)}, {v(r)}, {v(t)}")


def stamp(A, idx, ws_srd, kern, tmp):
    if not OPT['stamps']: return
    A("s_memrealtime s[90:91]")
    A("s_memtime s[92:93]")
    A("s_lshl_b32 s94, s2, 2")
    A("s_add_u32 s94, s94, s16")
    A("s_lshl_b32 s94, s94, 7")
    A(f"s_add_u32 s94, s94, {STAMP + kern*0x40000 + idx*8:#x}")
    A("s_waitcnt lgkmcnt(0)"); A.lg = []
    A(f"v_mov_b32 {v(tmp)}, s90")
    A(f"v_mov_b32 {v(tmp+1)}, s92")
    A(f"v_mov_b32 {v(tmp+2)}, 0")
    A("s_mov_b64 exec, 1")
    A.vmem(f"buffer_store_dwordx2 {v(tmp,2)}, {v(tmp+2)}, {s(ws_srd,4)}, s94 offen", 'stamp')
    A("s_mov_b64 exec, -1")


def gen_prep():
    A = Asm()
    A("s_cmp_ge_u32 s2, 288")
    A("s_cbranch_scc1 L_prep_end")
    A("s_load_dwordx2 s[4:5], s[0:1], 16")
    A("s_load_dwordx2 s[8:9], s[0:1], 64")
    A("v_lshrrev_b32 v1, 6, v0")
    A("v_and_b32 v2, 63, v0")
    A("v_readfirstlane_b32 s16, v1")
    A("v_lshrrev_b32 v3, 4, v2")
    A("v_and_b32 v4, 3, v2")
    A("v_bfe_u32 v5, v2, 2, 2")
    A("v_lshl_add_u32 v4, v5, 3, v4")
    A("v_lshlrev_b32 v4, 1, v4")
    A(f"v_mul_u32_u24 v3, {8*3072}, v3")
    A("v_add_u32 v3, v3, v4")
    A("s_lshl_b32 s17, s2, 2")
    A("s_add_u32 s17, s17, s16")
    A("s_mul_hi_u32 s18, s17, 0xAAAAAAB")
    A("s_mul_i32 s19, s18, 24")
    A("s_sub_u32 s19, s17, s19")
    A("s_cmp_ge_u32 s19, 12")
    A("s_cselect_b32 s20, 1, 0")
    A("s_mul_i32 s21, s20, 12")
    A("s_sub_u32 s21, s19, s21")
    A(f"s_mul_i32 s21, s21, {32*3072}")
    A("s_lshl_b32 s18, s18, 6")
    A("s_lshl_b32 s20, s20, 3")
    A("s_add_u32 s21, s21, s18")
    A("s_add_u32 s21, s21, s20")
    A("s_waitcnt lgkmcnt(0)")
    srd(A, 4, 4, 384*1536*2)
    srd(A, 8, 8, WS_BYTES)
    for j in range(8):
        A(f"buffer_load_ushort {v(8+j)}, v3, s[4:7], s21 offen")
        A("s_add_u32 s21, s21, 3072")
    A("v_lshlrev_b32 v6, 4, v2")
    A("s_lshl_b32 s22, s17, 10")
    A(f"s_add_u32 s22, s22, {W1P:#x}")
    A(f"s_cmp_ge_u32 s2, {6*NREP+2}")
    A("s_cbranch_scc1 L_prep_nozero")
    A("v_lshlrev_b32 v7, 2, v0")
    A("v_mov_b32 v20, 0")
    A("s_lshl_b32 s23, s2, 10")
    A(f"s_add_u32 s23, s23, {SUMS:#x}")
    A("buffer_store_dword v20, v7, s[8:11], s23 offen")
    A.label("L_prep_nozero")
    A("s_waitcnt vmcnt(0)")
    for d in range(4):
        A(f"v_lshl_or_b32 {v(16+d)}, {v(9+2*d)}, 16, {v(8+2*d)}")
    A("buffer_store_dwordx4 v[16:19], v6, s[8:11], s22 offen")
    A.label("L_prep_end")
    A("s_endpgm")
    return A.text()


def gen_scale():
    A = Asm()
    A("s_cmp_ge_u32 s2, 288")
    A("s_cbranch_scc1 L_scale_end")
    A("s_load_dwordx2 s[4:5], s[0:1], 24")
    A("s_load_dwordx2 s[8:9], s[0:1], 64")
    A("s_load_dwordx2 s[12:13], s[0:1], 32")
    A("s_load_dwordx2 s[28:29], s[0:1], 40")
    A("v_lshrrev_b32 v1, 6, v0")
    A("v_and_b32 v2, 63, v0")
    A("v_readfirstlane_b32 s16, v1")
    A("v_lshrrev_b32 v3, 4, v2")
    A("v_and_b32 v4, 3, v2")
    A("v_bfe_u32 v5, v2, 2, 2")
    A("v_lshl_add_u32 v4, v5, 3, v4")
    A("v_lshlrev_b32 v5, 1, v4")
    A(f"v_mul_u32_u24 v6, {8*768}, v3")
    A("v_add_u32 v5, v5, v6")
    A("v_lshlrev_b32 v6, 4, v3")
    A("v_lshlrev_b32 v7, 3, v0")
    A("s_lshl_b32 s17, s2, 2")
    A("s_add_u32 s17, s17, s16")
    A("s_mul_hi_u32 s18, s17, 0x5555556")
    A("s_mul_i32 s19, s18, 48")
    A("s_sub_u32 s19, s17, s19")
    A("s_and_b32 s20, s19, 1")
    A("s_lshl_b32 s18, s18, 1")
    A("s_add_u32 s18, s18, s20")
    A("s_lshr_b32 s20, s19, 2")
    A("s_lshl_b32 s20, s20, 5")
    A("s_and_b32 s21, s19, 2")
    A("s_lshl_b32 s21, s21, 1")
    A("s_add_u32 s20, s20, s21")
    A(f"s_mul_i32 s21, s18, {32*768}")
    A("s_lshl_b32 s22, s20, 1")
    A("s_add_u32 s21, s21, s22")
    A("s_add_u32 s22, s21, 3072")
    A("s_lshl_b32 s23, s18, 6")
    A("s_waitcnt lgkmcnt(0)")
    srd(A, 4, 4, 384*1536*2)
    srd(A, 8, 8, WS_BYTES)
    srd(A, 12, 12, 3072)
    srd(A, 28, 28, 3072)
    SB = 32
    for r in range(NREP):
        A(f"s_mov_b32 s24, {SUMS + r*6144:#x}")
        A(f"s_mov_b32 s25, {SUMS + r*6144 + 4096:#x}")
        for q in range(3):
            reg = SB + (r*3+q)*2
            A(f"buffer_load_dwordx2 {v(reg,2)}, v7, s[8:11], {'s25' if q == 2 else 's24'} offen offset:{(q%2)*2048}")
    for j in range(8):
        A(f"buffer_load_ushort {v(8+j)}, v5, s[4:7], {'s21' if j < 4 else 's22'} offen offset:{(j%4)*768}")
    A("buffer_load_dwordx4 v[16:19], v6, s[12:15], s23 offen")
    A("buffer_load_dwordx4 v[20:23], v6, s[28:31], s23 offen")
    A("s_waitcnt vmcnt(10)")
    for r in range(1, NREP):
        for i in range(6):
            A(f"v_add_f32 {v(SB+i)}, {v(SB+i)}, {v(SB+r*6+i)}")
    for i in range(6):
        A(f"v_add_f32 {v(SB+i)}, {f2u(1e-6):#x}, {v(SB+i)}")
    for i in range(6):
        A(f"v_sqrt_f32 {v(SB+i)}, {v(SB+i)}")
    A("s_nop 0")
    for q in range(3):
        A(f"ds_write_b64 v7, {v(SB+2*q,2)} offset:{q*2048}")
    A(f"v_add_f32 v24, {v(SB)}, {v(SB+1)}")
    for i in range(2, 6):
        A(f"v_add_f32 v24, v24, {v(SB+i)}")
    for n in (8, 4, 2, 1):
        A("s_nop 1")
        A(f"v_add_f32_dpp v24, v24, v24 row_ror:{n} row_mask:0xf bank_mask:0xf")
    xlane_sum(A, 24, 25)
    A("v_lshlrev_b32 v25, 2, v1")
    A("ds_write_b32 v25, v24 offset:6144")
    A("v_lshlrev_b32 v26, 5, v3")
    A("s_lshl_b32 s24, s18, 7")
    A("v_add_u32 v26, s24, v26")
    A("v_mov_b32 v27, 0")
    A("s_waitcnt lgkmcnt(0)")
    A("s_barrier")
    A("ds_read_b128 v[28:31], v27 offset:6144")
    A("ds_read_b128 v[32:35], v26")
    A("ds_read_b128 v[36:39], v26 offset:16")
    A("s_waitcnt vmcnt(0) lgkmcnt(0)")
    A("v_add_f32 v28, v28, v29")
    A("v_add_f32 v30, v30, v31")
    A("v_add_f32 v28, v28, v30")
    A(f"v_mov_b32 v29, {f2u(1e-6):#x}")
    A(f"v_fmac_f32 v29, {f2u(1.0/1536):#x}, v28")
    A("v_rcp_f32 v29, v29")
    A("v_mov_b32 v56, 0")
    for j in range(8):
        gsrc, bsrc = 16 + j//2, 20 + j//2
        if j % 2 == 0:
            A(f"v_lshlrev_b32 v40, 16, {v(gsrc)}")
            A(f"v_lshlrev_b32 v41, 16, {v(bsrc)}")
        else:
            A(f"v_and_b32 v40, 0xffff0000, {v(gsrc)}")
            A(f"v_and_b32 v41, 0xffff0000, {v(bsrc)}")
        A(f"v_lshlrev_b32 {v(8+j)}, 16, {v(8+j)}")
        A(f"v_mul_f32 v42, {v(32+j)}, v29")
        A(f"v_fma_f32 v42, v40, v42, 1.0")
        A(f"v_fmac_f32 v56, v41, {v(8+j)}")
        A(f"v_mul_f32 {v(44+j)}, v42, {v(8+j)}")
    for d in range(4):
        A(f"v_cvt_pk_bf16_f32 {v(52+d)}, {v(44+2*d)}, {v(45+2*d)}")
    A("v_lshlrev_b32 v6, 4, v2")
    A("s_lshl_b32 s22, s17, 10")
    A(f"s_add_u32 s22, s22, {W2P:#x}")
    A("buffer_store_dwordx4 v[52:55], v6, s[8:11], s22 offen")
    xlane_sum(A, 56, 57)
    A("v_lshlrev_b32 v4, 2, v4")
    A("s_lshl_b32 s20, s20, 2")
    A(f"s_add_u32 s20, s20, {BIAS:#x}")
    A("s_mov_b64 exec, 0xffff")
    A("buffer_atomic_add_f32 v56, v4, s[8:11], s20 offen")
    A.label("L_scale_end")
    A("s_endpgm")
    return A.text()


def roll(A, blocks, name, cnt_reg):
    i = 0
    nloop = 0
    while i < len(blocks):
        j = i
        while j + 1 < len(blocks) and blocks[j+1] == blocks[i]: j += 1
        n = j - i + 1
        if n == 1:
            for l in blocks[i]:
                if l != '@LOOPBR': A(l)
                else: A("s_nop 0")
        else:
            lab = f"L_{name}_loop{nloop}"; nloop += 1
            A(f"s_mov_b32 {s(cnt_reg)}, {n}")
            if A.pc % 8: A("s_nop 0")
            A.label(lab)
            for l in blocks[i]:
                if l == '@LOOPBR': A(f"s_cbranch_scc1 {lab}")
                else: A(l)
        i = j + 1


def gen_k1():
    A = Asm()
    SX, SW = 4, 8
    sWAVE, sWOFF, sHOFF, sCNT, sK, sA, sM0B = 16, 17, 18, 19, 20, 22, 24
    LDS_SUM = 4 * 24576
    vL16, vL16b, vSUMA, vH = 2, 3, 4, 5
    A("s_cmp_ge_u32 s2, 256")
    A("s_cbranch_scc1 L_k1_end")
    A("s_load_dwordx2 s[4:5], s[0:1], 0")
    A("s_load_dwordx2 s[12:13], s[0:1], 8")
    A("s_load_dwordx2 s[8:9], s[0:1], 64")
    A("v_lshrrev_b32 v1, 6, v0")
    A("v_and_b32 v6, 63, v0")
    A(f"v_readfirstlane_b32 {s(sWAVE)}, v1")
    A(f"v_lshlrev_b32 {v(vL16)}, 4, v6")
    A(f"v_add_u32 {v(vL16b)}, {2*24576:#x}, {v(vL16)}")
    A(f"v_lshlrev_b32 {v(vSUMA)}, 2, v6")
    A(f"v_add_u32 {v(vSUMA)}, {LDS_SUM - 3*256:#x}, {v(vSUMA)}")
    A("v_lshrrev_b32 v7, 4, v6")
    A("v_lshlrev_b32 v7, 4, v7")
    A("v_and_b32 v8, 15, v6")
    A("v_mul_u32_u24 v8, 768, v8")
    A("v_add_u32 v8, v8, v7")
    A("s_lshl_b32 s25, s2, 2")
    A(f"s_add_u32 s25, s25, {s(sWAVE)}")
    A(f"s_mul_i32 s26, s25, {64*768}")
    A(f"s_lshl_b32 {s(sHOFF)}, s25, 12")
    A(f"s_mul_i32 {s(sM0B)}, {s(sWAVE)}, 6144")
    A(f"s_add_u32 {s(sWOFF)}, {s(sM0B)}, {W1P:#x}")
    A(f"s_mov_b32 {s(sK)}, {f2u(K_SC):#x}")
    A(f"s_mov_b32 {s(sK+1)}, {f2u(K_SC):#x}")
    A(f"s_mov_b32 {s(sA)}, {f2u(A_SC):#x}")
    A(f"s_mov_b32 {s(sA+1)}, {f2u(A_SC):#x}")
    A("s_waitcnt lgkmcnt(0)")
    srd(A, SX, 4, X_BYTES)
    srd(A, SW, 8, WS_BYTES)
    srd(A, 12, 12, 768)
    stamp(A, 0, SW, 1, 10)
    DWL, DWH, Y0, T0 = 16, 64, 112, 208
    for ks in range(12):
        A.vmem(f"buffer_load_dwordx4 {v(DWH+4*ks,4)}, v7, s[12:15], 0 offen offset:{ks*64}", 'dw')
    def xload(rt, ks):
        if ks == 0 and rt: A(f"s_add_u32 s26, s26, {16*768}")
        A.vmem(f"buffer_load_dwordx4 {a(rt*48+ks*4,4)}, v8, {s(SX,4)}, s26 offen offset:{ks*64} {OPT['xpol']}", ('x', rt, ks))
    def dma(c, half, setup=True):
        ld = []
        for i in range(3):
            ld.append(f"buffer_load_dwordx4 {v(vL16)}, {s(SW,4)}, {s(sWOFF)} offen offset:{i*1024} lds")
        m0 = [f"s_add_u32 m0, {s(sM0B)}, {(c % 4)*24576 + half*3072:#x}"]
        adv = [f"s_add_u32 {s(sWOFF)}, {s(sWOFF)}, {3072 if half == 0 else 24576-3072:#x}"]
        return m0, ld, adv
    def dma_now(c, half):
        m0, ld, adv = dma(c, half)
        A(m0[0]); A("s_nop 0")
        for l in ld: A.vmem(l, ('w', c))
        A(adv[0])
    for ks in range(12): xload(0, ks)
    for ks in range(12): xload(1, ks)
    for i in range(4): A(f"v_mov_b32 {v(12+i)}, 0")
    A("v_lshlrev_b32 v9, 4, v0")
    A(f"v_add_u32 v9, {LDS_SUM:#x}, v9")
    for i in range(6): A.lds(f"ds_write_b128 v9, v[12:15] offset:{i*4096}", 'z')
    A.wait_vm(lambda t: t == 'dw')
    for i in range(48):
        A(f"v_and_b32 {v(DWL+i)}, 0xffff, {v(DWH+i)}")
        A(f"v_and_b32 {v(DWH+i)}, 0xffff0000, {v(DWH+i)}")
    S0, S1, Q0, Q1, C0 = T0+8, T0+10, T0+12, T0+14, T0+16
    for rt in range(4):
        extra = []
        if rt < 2: extra = [lambda ks=ks: xload(rt+2, ks) for ks in range(12)]
        elif rt == 2: extra = [lambda c=c, h=h: dma_now(c, h) for c in range(3) for h in range(2)]
        for ks in range(12):
            A.wait_vm(lambda t: t == ('x', rt, ks))
            for d in range(4):
                A(f"v_accvgpr_read_b32 {v(T0+d)}, {a(rt*48+ks*4+d)}")
            for d in range(4):
                i = ks*4 + d
                A(f"v_dot2_f32_bf16 {v(Y0+2*i)}, {v(T0+d)}, {v(DWL+i)}, 0")
                A(f"v_dot2_f32_bf16 {v(Y0+2*i+1)}, {v(T0+d)}, {v(DWH+i)}, 0")
            if extra: extra.pop(0)()
            if ks == 0:
                A("s_nop 2")
                A(f"v_pk_add_f32 {v(S0,2)}, {v(Y0,2)}, {v(Y0+4,2)}")
                A(f"v_pk_mul_f32 {v(Q0,2)}, {v(Y0,2)}, {v(Y0,2)}")
                A(f"v_pk_add_f32 {v(S1,2)}, {v(Y0+2,2)}, {v(Y0+6,2)}")
                A(f"v_pk_mul_f32 {v(Q1,2)}, {v(Y0+2,2)}, {v(Y0+2,2)}")
                A(f"v_pk_fma_f32 {v(Q0,2)}, {v(Y0+4,2)}, {v(Y0+4,2)}, {v(Q0,2)}")
                A(f"v_pk_fma_f32 {v(Q1,2)}, {v(Y0+6,2)}, {v(Y0+6,2)}, {v(Q1,2)}")
            else:
                for d in range(4):
                    y = Y0 + 2*(ks*4+d)
                    S_, Q_ = (S0, Q0) if d % 2 == 0 else (S1, Q1)
                    A(f"v_pk_add_f32 {v(S_,2)}, {v(S_,2)}, {v(y,2)}")
                    A(f"v_pk_fma_f32 {v(Q_,2)}, {v(y,2)}, {v(y,2)}, {v(Q_,2)}")
        A(f"v_pk_add_f32 {v(S0,2)}, {v(S0,2)}, {v(S1,2)}")
        A(f"v_pk_add_f32 {v(Q0,2)}, {v(Q0,2)}, {v(Q1,2)}")
        A(f"v_add_f32 {v(S0)}, {v(S0)}, {v(S0+1)}")
        A(f"v_add_f32 {v(Q0)}, {v(Q0)}, {v(Q0+1)}")
        xlane_sum(A, S0, S1)
        xlane_sum(A, Q0, Q1)
        A(f"v_mul_f32 {v(S0)}, {f2u(1.0/384):#x}, {v(S0)}")
        A(f"v_mul_f32 {v(Q0)}, {f2u(1.0/384):#x}, {v(Q0)}")
        A(f"v_fma_f32 {v(Q0)}, -{v(S0)}, {v(S0)}, {v(Q0)}")
        A(f"v_max_f32 {v(Q0)}, 0, {v(Q0)}")
        A(f"v_cvt_pk_bf16_f32 {v(S1)}, {v(S0)}, {v(Q0)}")
        A(f"v_lshlrev_b32 {v(S0)}, 16, {v(S1)}")
        A(f"v_and_b32 {v(Q0)}, 0xffff0000, {v(S1)}")
        A(f"v_add_f32 {v(Q0)}, {f2u(1e-5):#x}, {v(Q0)}")
        A(f"v_cvt_pk_bf16_f32 {v(Q0)}, {v(Q0)}, {v(Q0)}")
        A(f"v_and_b32 {v(Q0)}, 0xffff0000, {v(Q0)}")
        A(f"v_sqrt_f32 {v(Q0)}, {v(Q0)}")
        A("s_nop 0")
        A(f"v_cvt_pk_bf16_f32 {v(Q0)}, {v(Q0)}, {v(Q0)}")
        A(f"v_and_b32 {v(Q0)}, 0xffff0000, {v(Q0)}")
        A(f"v_rcp_f32 {v(Q0)}, {v(Q0)}")
        A("s_nop 0")
        A(f"v_mul_f32 {v(C0)}, {s(sA)}, {v(Q0)}")
        A(f"v_mul_f32_e64 {v(C0+1)}, -{v(S0)}, {v(C0)}")
        if A.pc % 8: A("s_nop 0")
        for i0 in range(0, 48, 4):
            for i in range(i0, i0+4):
                A(f"v_pk_fma_f32 {v(Y0+2*i,2)}, {v(Y0+2*i,2)}, {v(C0,2)}, {v(C0,2)} op_sel:[0,0,1] op_sel_hi:[1,0,1]")
            for i in range(i0, i0+4):
                A(f"v_cvt_pk_bf16_f32 {v(T0+i%4)}, {v(Y0+2*i)}, {v(Y0+2*i+1)}")
            for i in range(i0, i0+4):
                A(f"v_accvgpr_write_b32 {a(rt*48+i)}, {v(T0+i%4)}")
    A.wait_vm(lambda t: t == ('w', 0))
    A.wait_lg(lambda t: True)
    A("s_barrier")
    stamp(A, 1, SW, 1, 10)

    YB, TB, PB, SB_ = 16, 80, 144, 176
    AF = 192
    Yr = lambda u: YB + 16*(u % 4)
    Tr = lambda u: TB + 16*(u % 4)
    Pr = lambda c: PB + 16*(c % 2)
    Sr = lambda u: SB_ + 4*(u % 2)
    NU = 96
    def dsread(gb, i):
        u, kb = divmod(gb, 3)
        c, ht = divmod(u, 2)
        off = (c % 4)*24576 + (ht*12 + kb*4 + i)*1024
        base = vL16
        if off >= 2*24576: base, off = vL16b, off - 2*24576
        return (f"ds_read_b128 {a(AF + 16*(gb % 2) + 4*i, 4)}, {v(base)} offset:{off}", ('a', gb))
    for i in range(4): A.lds(*dsread(0, i))
    if A.pc % 8: A("s_nop 0")
    blocks = []
    B = A
    for it in range(13):
        start = len(A.lines)
        for p in range(it*8, min(it*8+8, NU+3)):
            has_m = p < NU
            trans = []
            if 0 <= p-1 < NU: trans += [f"v_exp_f32 {v(Tr(p-1)+i)}, {v(Tr(p-1)+i)}" for i in range(16)]
            if 0 <= p-2 < NU: trans += [f"v_rcp_f32 {v(Tr(p-2)+i)}, {v(Tr(p-2)+i)}" for i in range(16)]
            plain = []
            dsadd = None
            if 0 <= p-3 < NU:
                u = p-3; c, ht = divmod(u, 2); T = Tr(u); S_ = Sr(u)
                cv = [f"v_cvt_pk_bf16_f32 {v(Pr(c)+4*rt+2*ht+d)}, {v(T+4*rt+2*d)}, {v(T+4*rt+2*d+1)}" for rt in range(4) for d in range(2)]
                dp = [f"v_add_f32_dpp {v(S_)}, {v(S_)}, {v(S_)} row_ror:8 row_mask:0xf bank_mask:0x3",
                      f"v_add_f32_dpp {v(S_+1)}, {v(S_+1)}, {v(S_+1)} row_ror:8 row_mask:0xf bank_mask:0x3",
                      f"v_add_f32_dpp {v(S_)}, {v(S_+2)}, {v(S_+2)} row_ror:8 row_mask:0xf bank_mask:0xc",
                      f"v_add_f32_dpp {v(S_+1)}, {v(S_+3)}, {v(S_+3)} row_ror:8 row_mask:0xf bank_mask:0xc",
                      f"v_add_f32_dpp {v(S_)}, {v(S_)}, {v(S_)} row_shl:4 row_mask:0xf bank_mask:0x5",
                      f"v_add_f32_dpp {v(S_)}, {v(S_+1)}, {v(S_+1)} row_shr:4 row_mask:0xf bank_mask:0xa"]
                plain = dp[0:4] + cv[0:2] + dp[4:6] + cv[2:]
                dsadd = f"ds_add_f32 {v(vSUMA)}, {v(S_)} offset:{(p % 8)*256}"
            stores = []
            if p >= 4:
                c, hf = divmod(p-4, 2)
                if c < 48:
                    stores = [f"buffer_store_dwordx4 {v(Pr(c)+4*rt,4)}, {v(vL16)}, {s(SW,4)}, {s(sHOFF)} offen offset:{rt*1024} {OPT['hpol']}" for rt in (2*hf, 2*hf+1)]
            if p == NU+2:
                stores += [f"buffer_store_dwordx4 {v(Pr(47)+4*rt,4)}, {v(vL16)}, {s(SW,4)}, {s(sHOFF)} offen offset:{rt*1024} {OPT['hpol']}" for rt in (2, 3)]
            k = p // 2
            dm = dma(k+3, p % 2) if k+3 < 48 else None
            scal = []
            if p >= 6 and p % 2 == 0: scal.append(f"s_add_u32 {s(sHOFF)}, {s(sHOFF)}, {256*16384:#x}")
            if p >= 1 and (p-1)//2+3 < 48: scal += dma((p-1)//2+3, (p-1) % 2)[2]
            if dm: scal += dm[0]
            lastp = (p % 8 == 7)
            if lastp: scal += [f"s_sub_u32 {s(sCNT)}, {s(sCNT)}, 1", f"s_cmp_lg_u32 {s(sCNT)}, 0"]
            if has_m:
                gap = 0
                for kb in range(3):
                    gb = p*3 + kb
                    seq = [(rt, ks if rt % 2 == 0 else 3-ks) for rt in range(4) for ks in range(4)]
                    if kb == 0: A.wait_lg(lambda t: t == ('a', gb))
                    for n, (rt, kk) in enumerate(seq):
                        D = v(Yr(p)+4*rt, 4)
                        Cc = '0' if (kb == 0 and n % 4 == 0) else D
                        A(f"v_mfma_f32_16x16x32_bf16 {D}, {a(AF+16*(gb%2)+4*kk,4)}, {a(rt*48+(kb*4+kk)*4,4)}, {Cc}")
                        if gap == 47: break
                        if n == 15: A.wait_lg(lambda t: t == ('a', gb+1))
                        elif gap == 46:
                            A.wait_lg(lambda t: t == ('a', gb+1))
                        elif scal and n % 2 == 0: A(scal.pop(0))
                        if n in (1, 3, 5, 7) and gb+1 < NU*3:
                            A.lds(*dsread(gb+1, n//2))
                            if plain: A(plain.pop(0))
                        elif gap == 41 and plain:
                            while plain: A(plain.pop(0))
                        elif gap == 43 and dsadd:
                            A.lds(dsadd, 's'); dsadd = None
                        elif gap == 45:
                            if lastp: A(f"v_add_u32 {v(vSUMA)}, 2048, {v(vSUMA)}")
                        elif trans: A(trans.pop(0))
                        gap += 1
                assert not trans and not plain and not dsadd and not scal, (p, trans, plain, scal)
            else:
                for l in scal: A(l)
                for l in trans: A(l)
                for i, l in enumerate(plain):
                    A(l)
                if dsadd: A.lds(dsadd, 's')
            if p % 2 == 0 and k+1 < 48:
                A.wait_vm(lambda t: t == ('w', k+1))
                A("s_barrier")
            burst = []
            dl = list(dm[1]) if dm else []
            st = list(stores)
            while st or dl:
                if st: burst.append((st.pop(0), 'st'))
                if dl: burst.append((dl.pop(0), ('w', k+3)))
            if A.pc % 8: A("s_nop 0")
            for l, tg in burst: A.vmem(l, tg)
            if 0 <= p-2 < NU:
                u = p-2; T = Tr(u); Y = Yr(u); S_ = Sr(u)
                for i in range(0, 16, 2): A(f"v_pk_mul_f32 {v(T+i,2)}, {v(T+i,2)}, {v(Y+i,2)}")
            pb = []
            if 0 <= p-1 < NU:
                T = Tr(p-1)
                pb = [f"v_pk_fma_f32 {v(T+i,2)}, {v(T+i,2)}, {s(sA,2)}, {s(sA,2)}" for i in range(0, 16, 2)]
            pq = []
            if 0 <= p-2 < NU:
                u = p-2; T = Tr(u); S_ = Sr(u)
                for rt in range(4):
                    for d in (0, 2):
                        if rt == 0: pq.append(f"v_pk_mul_f32 {v(S_+d,2)}, {v(T+d,2)}, {v(T+d,2)}")
                        else: pq.append(f"v_pk_fma_f32 {v(S_+d,2)}, {v(T+4*rt+d,2)}, {v(T+4*rt+d,2)}, {v(S_+d,2)}")
            while pb or pq:
                if pq: A(pq.pop(0))
                if pb: A(pb.pop(0))
            if has_m:
                if p == 0: A("s_nop 7"); A("s_nop 0")
                T = Tr(p); Y = Yr(p)
                for i in range(0, 16, 2): A(f"v_pk_fma_f32 {v(T+i,2)}, {v(Y+i,2)}, {v(Y+i,2)}, {s(sK,2)}")
                for i in range(0, 16, 2): A(f"v_pk_mul_f32 {v(T+i,2)}, {v(T+i,2)}, {v(Y+i,2)} neg_lo:[1,0] neg_hi:[1,0]")
            if lastp:
                A.lines.append('@LOOPBR'); A.pc += 4
                A("s_nop 0")
        blocks.append(A.lines[start:])
        del A.lines[start:]
    A.pc = 0
    roll(A, blocks, 'k1', sCNT)
    stamp(A, 2, SW, 1, 10)
    A("s_waitcnt lgkmcnt(0)")
    A("s_barrier")
    A("v_lshlrev_b32 v9, 4, v0")
    A(f"v_add_u32 v9, {LDS_SUM:#x}, v9")
    for q in range(6): A(f"ds_read_b128 {v(16+4*q,4)}, v9 offset:{q*4096}")
    A("v_and_b32 v10, 0xe3, v0")
    A("v_bfe_u32 v11, v0, 2, 2")
    A("v_lshl_add_u32 v10, v11, 3, v10")
    A("v_bfe_u32 v11, v0, 4, 1")
    A("v_lshl_add_u32 v10, v11, 2, v10")
    A("v_lshlrev_b32 v10, 2, v10")
    A(f"s_and_b32 s25, s2, {NREP-1}")
    A("s_mul_i32 s25, s25, 6144")
    A(f"s_add_u32 s25, s25, {SUMS:#x}")
    A("s_add_u32 s26, s25, 3072")
    for q in range(6):
        A(f"s_waitcnt lgkmcnt({5-q})")
        r = 16+4*q
        A(f"v_add_f32 {v(r)}, {v(r)}, {v(r+1)}")
        A(f"v_add_f32 {v(r+2)}, {v(r+2)}, {v(r+3)}")
        A(f"v_add_f32 {v(r)}, {v(r)}, {v(r+2)}")
        A(f"buffer_atomic_add_f32 {v(r)}, v10, {s(SW,4)}, {'s25' if q < 3 else 's26'} offen offset:{(q%3)*1024}")
    if OPT['stamps']:
        A("s_waitcnt vmcnt(0)")
        stamp(A, 3, SW, 1, 10)
    A.label("L_k1_end")
    A("s_endpgm")
    return A.text(), LDS_SUM + 24576


def gen_k3():
    A = Asm()
    SX, SW, SO = 4, 8, 12
    sWAVE, sWOFF, sHOFF, sM0B, sXO = 16, 17, 18, 19, 20
    vL16, vLb, vLc, vX = 112, 113, 114, 115
    BS, AR, XF, SEL = 0, 64, 96, 104
    def acc(t, rt): return (a(16*t + 4*rt, 4) if t < 16 else v(128 + 16*(t-16) + 4*rt, 4))
    A("s_cmp_ge_u32 s2, 256")
    A("s_cbranch_scc1 L_k3_end")
    A("s_load_dwordx2 s[4:5], s[0:1], 0")
    A("s_load_dwordx2 s[12:13], s[0:1], 48")
    A("s_load_dwordx2 s[8:9], s[0:1], 64")
    A("v_lshrrev_b32 v1, 6, v0")
    A("v_and_b32 v6, 63, v0")
    A(f"v_readfirstlane_b32 {s(sWAVE)}, v1")
    A(f"v_lshlrev_b32 {v(vL16)}, 4, v6")
    A(f"v_add_u32 {v(vLb)}, {49152:#x}, {v(vL16)}")
    A(f"v_add_u32 {v(vLc)}, {2*49152:#x}, {v(vL16)}")
    A("v_lshrrev_b32 v7, 4, v6")
    A("v_and_b32 v8, 15, v6")
    A(f"v_mul_u32_u24 {v(vX)}, 768, v8")
    A(f"v_lshl_add_u32 {v(vX)}, v7, 4, {v(vX)}")
    A("v_lshlrev_b32 v116, 5, v7")
    A("s_lshl_b32 s25, s2, 2")
    A(f"s_add_u32 s25, s25, {s(sWAVE)}")
    A(f"s_mul_i32 {s(sXO)}, s25, {64*768}")
    for rt in range(1, 4): A(f"s_add_u32 {s(sXO+rt)}, {s(sXO)}, {rt*16*768}")
    A(f"s_lshl_b32 {s(sHOFF)}, s25, 12")
    A(f"s_mul_i32 {s(sM0B)}, {s(sWAVE)}, 12288")
    A(f"s_add_u32 {s(sWOFF)}, {s(sM0B)}, {W2P:#x}")
    A(f"s_mov_b32 s26, {BIAS:#x}")
    A("v_lshrrev_b32 v9, 2, v8")
    A("v_cmp_eq_u32 vcc, v9, v7")
    A("v_and_b32 v10, 1, v8")
    A("v_lshlrev_b32 v10, 4, v10")
    A("v_mov_b32 v11, 0x3f80")
    A("v_lshlrev_b32 v11, v10, v11")
    A("v_cndmask_b32 v11, 0, v11, vcc")
    A("v_and_b32 v10, 2, v8")
    A("v_cmp_eq_u32 vcc, 0, v10")
    for i in (0, 1, 4, 5): A(f"v_mov_b32 {v(SEL+i)}, 0")
    A(f"v_cndmask_b32 {v(SEL+2)}, 0, v11, vcc")
    A(f"v_sub_u32 {v(SEL+3)}, v11, {v(SEL+2)}")
    A("s_waitcnt lgkmcnt(0)")
    srd(A, SX, 4, X_BYTES)
    srd(A, SW, 8, WS_BYTES)
    srd(A, SO, 12, X_BYTES)
    stamp(A, 0, SW, 3, 120)
    NB = 24
    def dma_ops(kb):
        ops = []
        for i in range(12):
            pre = []
            if i % 4 == 0:
                if i or kb: pre.append(f"s_add_u32 {s(sWOFF)}, {s(sWOFF)}, {4096 if i else 49152-8192:#x}")
                pre.append(f"s_add_u32 m0, {s(sM0B)}, {(kb % 3)*49152 + i*1024:#x}")
            ops.append((pre, f"buffer_load_dwordx4 {v(vL16)}, {s(SW,4)}, {s(sWOFF)} offen offset:{(i%4)*1024} lds", ('w', kb)))
        return ops
    def h_ops(kb):
        ops = []
        for k2 in range(2):
            for rt in range(4):
                pre = []
                if rt == 0 and (kb or k2): pre.append(f"s_add_u32 {s(sHOFF)}, {s(sHOFF)}, {256*16384:#x}")
                ops.append((pre, f"buffer_load_dwordx4 {v(BS + 32*(kb%2) + (k2*4+rt)*4, 4)}, {v(vL16)}, {s(SW,4)}, {s(sHOFF)} offen offset:{rt*1024}", ('h', kb)))
        return ops
    xlist = [(u, rt) for u in range(12) for rt in range(4)]
    xsched = {kb: [] for kb in range(NB)}
    gi = 0
    for kb in range(1, 23):
        xsched[kb].append(gi); gi += 1
    xsched[10].append(gi); gi += 1
    xsched[16].append(gi); gi += 1
    order = []
    for kb in range(NB):
        n = len(xsched[kb])
        for j in range(n): order.append((kb, 13 if n == 1 else (3, 17)[j]))
    assert len(order) == 24
    def x_ops(gidx):
        ops = []
        for j in range(2):
            u, rt = xlist[2*gidx+j]
            ops.append(([], f"buffer_load_dwordx4 {v(XF+4*j,4)}, {v(vX)}, {s(SX,4)}, {s(sXO+rt)} offen offset:{u*64} {OPT['x3pol']}", ('x', gidx)))
        return ops
    def now(ops):
        for pre, l, tg in ops:
            for p_ in pre: A(p_)
            if pre: A("s_nop 0")
            A.vmem(l, tg)
    now(dma_ops(0))
    now(h_ops(0))
    for t in range(24):
        A.vmem(f"buffer_load_dwordx4 {acc(t,0)}, v116, {s(SW,4)}, s26 offen offset:{(t>>1)*128 + (t&1)*16}", ('b', t))
    A.wait_vm(lambda t: t == ('w', 0))
    A("s_barrier")
    bases = [vL16, vLb, vLc]
    def dsread(gt, k2):
        kb, t = divmod(gt, 24)
        return (f"ds_read_b128 {v(AR + 8*(gt % 4) + 4*k2, 4)}, {v(bases[kb % 3])} offset:{(t*2+k2)*1024}", ('a', gt))
    for gt in range(3):
        for k2 in range(2): A.lds(*dsread(gt, k2))
    vq = dma_ops(1) + x_ops(0)
    A.wait_vm(lambda t: t == ('b', 23))
    A.wait_lg(lambda t: t == ('a', 0))
    stamp(A, 1, SW, 3, 120)
    epi = []
    ET = BS
    ecount = 0
    def epi_ops(u):
        nonlocal ecount
        ops = []
        for rt in range(4):
            P = ET + 16 + 4*(ecount % 4)
            for e in range(2):
                t = 2*u + e
                if t < 16:
                    T = ET + 8*(ecount % 2) + 4*e
                    for r in range(4): ops.append(('v', f"v_accvgpr_read_b32 {v(T+r)}, {a(16*t+4*rt+r)}"))
                else:
                    T = 128 + 16*(t-16) + 4*rt
                for d in range(2): ops.append(('v', f"v_cvt_pk_bf16_f32 {v(P+2*e+d)}, {v(T+2*d)}, {v(T+2*d+1)}"))
            ops.append(('s', f"buffer_store_dwordx4 {v(P,4)}, {v(vX)}, {s(SO,4)}, {s(sXO+rt)} offen offset:{u*64} {OPT['opol']}"))
            ecount += 1
        return ops
    xnext = 0
    for kb in range(NB):
        if kb + 1 < NB: vq = h_ops(kb+1) + vq
        for t in range(24):
            gt = kb*24 + t
            rts = (3, 2, 1, 0) if kb == 0 else (0, 1, 2, 3)
            seq = [(rt, k2 if i % 2 == 0 else 1-k2, k2) for i, rt in enumerate(rts) for k2 in range(2)]
            mf = []
            for (rt, kk, first) in seq:
                D = acc(t, rt)
                Cc = acc(t, 0) if (kb == 0 and first == 0) else D
                mf.append(f"v_mfma_f32_16x16x32_bf16 {D}, {v(AR+8*(gt%4)+4*kk,4)}, {v(BS+32*(kb%2)+(kk*4+rt)*4,4)}, {Cc}")
            xg = None
            if xnext < 24 and order[xnext] == (kb, t):
                xg = xnext; xnext += 1
                for j in range(2):
                    u, rt = xlist[2*xg+j]
                    for e in range(2):
                        D = acc(2*u+e, rt)
                        mf.append(f"v_mfma_f32_16x16x32_bf16 {D}, {v(SEL+2-2*e,4)}, {v(XF+4*j,4)}, {D}")
            if kb == NB-1 and t >= 3 and t % 2 == 1: epi += epi_ops((t-3)//2)
            scal = []
            for n, l in enumerate(mf):
                A(l)
                slots = 2
                if n == 7 and xg is not None:
                    assert not any(o[2] == ('x', xg) for o in vq)
                    A.wait_vm(lambda tg: tg == ('x', xg))
                if n == len(mf)-1:
                    w1 = A.wait_lg_str(lambda tg: tg == ('a', gt+1))
                    w2 = A.wait_vm_str(lambda tg: tg == ('h', kb+1)) if t == 23 else None
                    if w1 and w2: A(w2 + ' ' + w1.split()[1])
                    elif w1 or w2: A(w1 or w2)
                    if xg is not None and xg+1 < 24: vq = x_ops(xg+1) + vq
                if t == 20 and n == 6 and kb+1 < NB:
                    assert not any(o[2] == ('w', kb+1) for o in vq), kb
                    A.wait_vm(lambda tg: tg == ('w', kb+1))
                    A("s_barrier")
                    if kb+2 < NB: vq = vq + dma_ops(kb+2)
                    slots = 0
                if n in (0, 1) and gt+3 < NB*24:
                    A.lds(*dsread(gt+3, n)); slots -= 1
                elif n in (2, 3) and vq and vq[0][0]:
                    A(vq[0][0].pop(0))
                elif n in (4, 6) and slots and vq and not vq[0][0] and (n == 4 or len(vq) > 18 - t):
                    _, l2, tg = vq.pop(0)
                    A.vmem(l2, tg); slots = 0
                while slots and epi:
                    if epi[0][0] == 's':
                        if slots == 2: A.vmem(epi.pop(0)[1], 'o')
                        slots = 0
                    else:
                        A(epi.pop(0)[1]); slots -= 1
    assert not vq
    stamp(A, 2, SW, 3, 120)
    epi += epi_ops(11)
    A("s_nop 7")
    for kind, l in epi:
        A(l)
    if OPT['stamps']:
        A("s_waitcnt vmcnt(0)")
        stamp(A, 3, SW, 3, 120)
    A.label("L_k3_end")
    A("s_endpgm")
    return A.text(), 3*49152


def main():
    k1, lds1 = gen_k1()
    k3, lds3 = gen_k3()
    head = open('standalone__modern_conv_block_slak__vision.s.ref').read().split('; Override launch')[0]
    out = head
    out += "; @launch kernel=prep_kernel grid=(288,1,1) block=(256,1,1) lds=0\n"
    out += f"; @launch kernel=k1_kernel grid=(256,1,1) block=(256,1,1) lds={lds1}\n"
    out += "; @launch kernel=scale_kernel grid=(288,1,1) block=(256,1,1) lds=8192\n"
    out += f"; @launch kernel=k3_kernel grid=(256,1,1) block=(256,1,1) lds={lds3}\n"
    out += '.amdgcn_target "amdgcn-amd-amdhsa--gfx950"\n'
    out += kernel_text('prep_kernel', gen_prep())
    out += kernel_text('k1_kernel', k1)
    out += kernel_text('scale_kernel', gen_scale())
    out += kernel_text('k3_kernel', k3)
    out += '.section .rodata,"a"\n'
    out += descriptor('prep_kernel', 24, 24)
    out += descriptor('k1_kernel', 512, 256)
    out += descriptor('scale_kernel', 32 + 6*NREP + 16, 32 + 6*NREP + 16)
    out += descriptor('k3_kernel', 512, 256)
    open(sys.argv[1], 'w').write(out)
    print(f"wrote {sys.argv[1]}: {len(out)} bytes, {out.count(chr(10))} lines")

main()
```

```python
import sys, math
from asmlib import *

OPT = dict(xpol='nt', hpol='sc1', x3pol='nt', opol='', stamps=0, R=8, nost=0, nodma=0, noh=0, nox=0, samew=0, drop='', pf=1)
for arg in sys.argv[2:]:
    k, val = arg.split('=')
    OPT[k] = type(OPT[k])(val.replace('+', ' '))
NREP = OPT['R']

WS_BYTES = 0x10000000
X_BYTES = 65536 * 768
H_OFF = 0
HSTR = 0xC3000
W1P = 0xC400000
W2P = 0xC520000
SUMS = 0xC640000
BIAS = SUMS + NREP * 6144
STAMP = 0xC800000

KG = 2.0 * math.sqrt(2.0 / math.pi) * math.log2(math.e)
A_SC = (KG * 0.044715) ** (1.0 / 3.0)
K_SC = KG / A_SC


def srd(A, d, src, nbytes):
    if d != src:
        A(f"s_mov_b32 {s(d)}, {s(src)}")
        A(f"s_mov_b32 {s(d+1)}, {s(src+1)}")
    A(f"s_mov_b32 {s(d+2)}, {nbytes:#x}")
    A(f"s_mov_b32 {s(d+3)}, 0x20000")


def xlane_sum(A, r, t):
    for op in ('v_permlane16_swap_b32', 'v_permlane32_swap_b32'):
        A(f"v_mov_b32 {v(t)}, {v(r)}")
        A("s_nop 1")
        A(f"{op} {v(r)}, {v(t)}")
        A("s_nop 1")
        A(f"v_add_f32 {v(r)}, {v(r)}, {v(t)}")


def stamp(A, idx, ws_srd, kern, tmp):
    if not OPT['stamps']: return
    A("s_memrealtime s[90:91]")
    A("s_memtime s[92:93]")
    A("s_lshl_b32 s94, s2, 2")
    A("s_add_u32 s94, s94, s16")
    A("s_lshl_b32 s94, s94, 7")
    A(f"s_add_u32 s94, s94, {STAMP + kern*0x40000 + idx*8:#x}")
    A("s_waitcnt lgkmcnt(0)"); A.lg = []
    A(f"v_mov_b32 {v(tmp)}, s90")
    A(f"v_mov_b32 {v(tmp+1)}, s92")
    A(f"v_mov_b32 {v(tmp+2)}, 0")
    A("s_mov_b64 exec, 1")
    A.vmem(f"buffer_store_dwordx2 {v(tmp,2)}, {v(tmp+2)}, {s(ws_srd,4)}, s94 offen", 'stamp')
    A("s_mov_b64 exec, -1")


def code_prefetch_setup(A, name, vt, st):
    A(f"s_getpc_b64 {s(st,2)}")
    A.label(f"L_{name}_pc")
    A(f"s_sub_u32 {s(st)}, {s(st)}, L_{name}_pc-{name}_kernel"); A.pc += 4
    A(f"s_subb_u32 {s(st+1)}, {s(st+1)}, 0")


def code_prefetch(A, name, vt, st, first, n):
    code_prefetch_setup(A, name, vt, st)
    for i in range(first, first+n):
        A(f"v_lshlrev_b32 {v(vt+2)}, 6, v0")
        if i: A(f"v_add_u32 {v(vt+2)}, {i*16384:#x}, {v(vt+2)}")
        A(f"v_min_u32 {v(vt+2)}, L_{name}_end-{name}_kernel, {v(vt+2)}"); A.pc += 4
        A(f"v_mov_b32 {v(vt+1)}, {s(st+1)}")
        A(f"v_add_co_u32 {v(vt)}, vcc, {s(st)}, {v(vt+2)}")
        A("s_nop 1")
        A(f"v_addc_co_u32 {v(vt+1)}, vcc, 0, {v(vt+1)}, vcc")
        A.vmem(f"global_load_dword {v(vt+3)}, {v(vt,2)}, off", 'pf')


def gen_prep():
    A = Asm()
    A("s_cmp_ge_u32 s2, 288")
    A("s_cbranch_scc1 L_prep_end")
    A("s_load_dwordx2 s[4:5], s[0:1], 16")
    A("s_load_dwordx2 s[8:9], s[0:1], 64")
    A("v_lshrrev_b32 v1, 6, v0")
    A("v_and_b32 v2, 63, v0")
    A("v_readfirstlane_b32 s16, v1")
    A("v_lshrrev_b32 v3, 4, v2")
    A("v_and_b32 v4, 3, v2")
    A("v_bfe_u32 v5, v2, 2, 2")
    A("v_lshl_add_u32 v4, v5, 3, v4")
    A("v_lshlrev_b32 v4, 1, v4")
    A(f"v_mul_u32_u24 v3, {8*3072}, v3")
    A("v_add_u32 v3, v3, v4")
    A("s_lshl_b32 s17, s2, 2")
    A("s_add_u32 s17, s17, s16")
    A("s_mul_hi_u32 s18, s17, 0xAAAAAAB")
    A("s_mul_i32 s19, s18, 24")
    A("s_sub_u32 s19, s17, s19")
    A("s_cmp_ge_u32 s19, 12")
    A("s_cselect_b32 s20, 1, 0")
    A("s_mul_i32 s21, s20, 12")
    A("s_sub_u32 s21, s19, s21")
    A(f"s_mul_i32 s21, s21, {32*3072}")
    A("s_lshl_b32 s18, s18, 6")
    A("s_lshl_b32 s20, s20, 3")
    A("s_add_u32 s21, s21, s18")
    A("s_add_u32 s21, s21, s20")
    A("s_waitcnt lgkmcnt(0)")
    srd(A, 4, 4, 384*1536*2)
    srd(A, 8, 8, WS_BYTES)
    for j in range(8):
        A(f"buffer_load_ushort {v(8+j)}, v3, s[4:7], s21 offen")
        A("s_add_u32 s21, s21, 3072")
    A("v_lshlrev_b32 v6, 4, v2")
    A("s_lshl_b32 s22, s17, 10")
    A(f"s_add_u32 s22, s22, {W1P:#x}")
    A(f"s_cmp_ge_u32 s2, {6*NREP+2}")
    A("s_cbranch_scc1 L_prep_nozero")
    A("v_lshlrev_b32 v7, 2, v0")
    A("v_mov_b32 v20, 0")
    A("s_lshl_b32 s23, s2, 10")
    A(f"s_add_u32 s23, s23, {SUMS:#x}")
    A("buffer_store_dword v20, v7, s[8:11], s23 offen")
    A.label("L_prep_nozero")
    A("s_waitcnt vmcnt(0)")
    for d in range(4):
        A(f"v_lshl_or_b32 {v(16+d)}, {v(9+2*d)}, 16, {v(8+2*d)}")
    A("buffer_store_dwordx4 v[16:19], v6, s[8:11], s22 offen")
    A.label("L_prep_end")
    A("s_endpgm")
    return A.text()


def gen_scale():
    A = Asm()
    A("s_cmp_ge_u32 s2, 288")
    A("s_cbranch_scc1 L_scale_end")
    A("s_load_dwordx2 s[4:5], s[0:1], 24")
    A("s_load_dwordx2 s[8:9], s[0:1], 64")
    A("s_load_dwordx2 s[12:13], s[0:1], 32")
    A("s_load_dwordx2 s[28:29], s[0:1], 40")
    A("v_lshrrev_b32 v1, 6, v0")
    A("v_and_b32 v2, 63, v0")
    A("v_readfirstlane_b32 s16, v1")
    A("v_lshrrev_b32 v3, 4, v2")
    A("v_and_b32 v4, 3, v2")
    A("v_bfe_u32 v5, v2, 2, 2")
    A("v_lshl_add_u32 v4, v5, 3, v4")
    A("v_lshlrev_b32 v5, 1, v4")
    A(f"v_mul_u32_u24 v6, {8*768}, v3")
    A("v_add_u32 v5, v5, v6")
    A("v_lshlrev_b32 v6, 4, v3")
    A("v_lshlrev_b32 v7, 3, v0")
    A("s_lshl_b32 s17, s2, 2")
    A("s_add_u32 s17, s17, s16")
    A("s_mul_hi_u32 s18, s17, 0x5555556")
    A("s_mul_i32 s19, s18, 48")
    A("s_sub_u32 s19, s17, s19")
    A("s_and_b32 s20, s19, 1")
    A("s_lshl_b32 s18, s18, 1")
    A("s_add_u32 s18, s18, s20")
    A("s_lshr_b32 s20, s19, 2")
    A("s_lshl_b32 s20, s20, 5")
    A("s_and_b32 s21, s19, 2")
    A("s_lshl_b32 s21, s21, 1")
    A("s_add_u32 s20, s20, s21")
    A(f"s_mul_i32 s21, s18, {32*768}")
    A("s_lshl_b32 s22, s20, 1")
    A("s_add_u32 s21, s21, s22")
    A("s_add_u32 s22, s21, 3072")
    A("s_lshl_b32 s23, s18, 6")
    A("s_waitcnt lgkmcnt(0)")
    srd(A, 4, 4, 384*1536*2)
    srd(A, 8, 8, WS_BYTES)
    srd(A, 12, 12, 3072)
    srd(A, 28, 28, 3072)
    SB = 32
    for r in range(NREP):
        A(f"s_mov_b32 s24, {SUMS + r*6144:#x}")
        A(f"s_mov_b32 s25, {SUMS + r*6144 + 4096:#x}")
        for q in range(3):
            reg = SB + (r*3+q)*2
            A(f"buffer_load_dwordx2 {v(reg,2)}, v7, s[8:11], {'s25' if q == 2 else 's24'} offen offset:{(q%2)*2048}")
    for j in range(8):
        A(f"buffer_load_ushort {v(8+j)}, v5, s[4:7], {'s21' if j < 4 else 's22'} offen offset:{(j%4)*768}")
    A("buffer_load_dwordx4 v[16:19], v6, s[12:15], s23 offen")
    A("buffer_load_dwordx4 v[20:23], v6, s[28:31], s23 offen")
    A("s_waitcnt vmcnt(10)")
    for r in range(1, NREP):
        for i in range(6):
            A(f"v_add_f32 {v(SB+i)}, {v(SB+i)}, {v(SB+r*6+i)}")
    for i in range(6):
        A(f"v_add_f32 {v(SB+i)}, {f2u(1e-6):#x}, {v(SB+i)}")
    for i in range(6):
        A(f"v_sqrt_f32 {v(SB+i)}, {v(SB+i)}")
    A("s_nop 0")
    for q in range(3):
        A(f"ds_write_b64 v7, {v(SB+2*q,2)} offset:{q*2048}")
    A(f"v_add_f32 v24, {v(SB)}, {v(SB+1)}")
    for i in range(2, 6):
        A(f"v_add_f32 v24, v24, {v(SB+i)}")
    for n in (8, 4, 2, 1):
        A("s_nop 1")
        A(f"v_add_f32_dpp v24, v24, v24 row_ror:{n} row_mask:0xf bank_mask:0xf")
    xlane_sum(A, 24, 25)
    A("v_lshlrev_b32 v25, 2, v1")
    A("ds_write_b32 v25, v24 offset:6144")
    A("v_lshlrev_b32 v26, 5, v3")
    A("s_lshl_b32 s24, s18, 7")
    A("v_add_u32 v26, s24, v26")
    A("v_mov_b32 v27, 0")
    A("s_waitcnt lgkmcnt(0)")
    A("s_barrier")
    A("ds_read_b128 v[28:31], v27 offset:6144")
    A("ds_read_b128 v[32:35], v26")
    A("ds_read_b128 v[36:39], v26 offset:16")
    A("s_waitcnt vmcnt(0) lgkmcnt(0)")
    A("v_add_f32 v28, v28, v29")
    A("v_add_f32 v30, v30, v31")
    A("v_add_f32 v28, v28, v30")
    A(f"v_mov_b32 v29, {f2u(1e-6):#x}")
    A(f"v_fmac_f32 v29, {f2u(1.0/1536):#x}, v28")
    A("v_rcp_f32 v29, v29")
    A("v_mov_b32 v56, 0")
    for j in range(8):
        gsrc, bsrc = 16 + j//2, 20 + j//2
        if j % 2 == 0:
            A(f"v_lshlrev_b32 v40, 16, {v(gsrc)}")
            A(f"v_lshlrev_b32 v41, 16, {v(bsrc)}")
        else:
            A(f"v_and_b32 v40, 0xffff0000, {v(gsrc)}")
            A(f"v_and_b32 v41, 0xffff0000, {v(bsrc)}")
        A(f"v_lshlrev_b32 {v(8+j)}, 16, {v(8+j)}")
        A(f"v_mul_f32 v42, {v(32+j)}, v29")
        A(f"v_fma_f32 v42, v40, v42, 1.0")
        A(f"v_fmac_f32 v56, v41, {v(8+j)}")
        A(f"v_mul_f32 {v(44+j)}, v42, {v(8+j)}")
    for d in range(4):
        A(f"v_cvt_pk_bf16_f32 {v(52+d)}, {v(44+2*d)}, {v(45+2*d)}")
    A("v_lshlrev_b32 v6, 4, v2")
    A("s_lshl_b32 s22, s17, 10")
    A(f"s_add_u32 s22, s22, {W2P:#x}")
    A("buffer_store_dwordx4 v[52:55], v6, s[8:11], s22 offen")
    xlane_sum(A, 56, 57)
    A("v_lshlrev_b32 v4, 2, v4")
    A("s_lshl_b32 s20, s20, 2")
    A(f"s_add_u32 s20, s20, {BIAS:#x}")
    A("s_mov_b64 exec, 0xffff")
    A("buffer_atomic_add_f32 v56, v4, s[8:11], s20 offen")
    A.label("L_scale_end")
    A("s_endpgm")
    return A.text()


def roll(A, blocks, name, cnt_reg):
    i = 0
    nloop = 0
    while i < len(blocks):
        j = i
        while j + 1 < len(blocks) and blocks[j+1] == blocks[i]: j += 1
        n = j - i + 1
        if n == 1:
            for l in blocks[i]:
                if l != '@LOOPBR': A(l)
                else: A("s_nop 0")
        else:
            lab = f"L_{name}_loop{nloop}"; nloop += 1
            A(f"s_mov_b32 {s(cnt_reg)}, {n}")
            if A.pc % 8: A("s_nop 0")
            A.label(lab)
            for l in blocks[i]:
                if l == '@LOOPBR': A(f"s_cbranch_scc1 {lab}")
                else: A(l)
        i = j + 1


def gen_k1():
    A = Asm()
    SX, SW, SH, SD = 4, 8, 32, 36
    sWAVE, sWOFF, sCNT, sK, sA, sM0B, sH4 = 16, 17, 19, 20, 22, 24, 28
    LDS_SUM = 4 * 24576 + 256
    vL16, vL16b, vSUMA, vH = 2, 3, 4, 5
    A("s_cmp_ge_u32 s2, 256")
    A("s_cbranch_scc1 L_k1_end")
    A("s_load_dwordx2 s[4:5], s[0:1], 0")
    A("s_load_dwordx2 s[12:13], s[0:1], 8")
    A("s_load_dwordx2 s[8:9], s[0:1], 64")
    A("v_lshrrev_b32 v1, 6, v0")
    A("v_and_b32 v6, 63, v0")
    A(f"v_readfirstlane_b32 {s(sWAVE)}, v1")
    A(f"v_lshlrev_b32 {v(vL16)}, 4, v6")
    A(f"v_add_u32 {v(vL16b)}, {2*24576:#x}, {v(vL16)}")
    A(f"v_and_b32 {v(vSUMA)}, 60, v6")
    A(f"v_mul_u32_u24 v9, 6144, v1")
    A(f"v_add_u32 {v(vSUMA)}, {LDS_SUM - 3*64:#x}, {v(vSUMA)}")
    A(f"v_add_u32 {v(vSUMA)}, v9, {v(vSUMA)}")
    A("v_lshrrev_b32 v7, 4, v6")
    A("v_lshlrev_b32 v7, 4, v7")
    A("v_and_b32 v8, 15, v6")
    A("v_mul_u32_u24 v8, 768, v8")
    A("v_add_u32 v8, v8, v7")
    A("s_lshl_b32 s25, s2, 2")
    A(f"s_add_u32 s25, s25, {s(sWAVE)}")
    A(f"s_mul_i32 s26, s25, {64*768}")
    A(f"s_lshl_b32 s27, {s(sWAVE)}, 10")
    for rt in range(4):
        A(f"s_sub_u32 {s(sH4+rt)}, s27, {(2 + rt//2)*16384 - (rt << 12):#x}")
    A(f"s_mul_i32 {s(sM0B)}, {s(sWAVE)}, 6144")
    A(f"s_mov_b32 {s(sWOFF)}, {s(sM0B)}")
    A(f"s_mov_b32 {s(sK)}, {f2u(K_SC):#x}")
    A(f"s_mov_b32 {s(sK+1)}, {f2u(K_SC):#x}")
    A(f"s_mov_b32 {s(sA)}, {f2u(A_SC):#x}")
    A(f"s_mov_b32 {s(sA+1)}, {f2u(A_SC):#x}")
    A("s_waitcnt lgkmcnt(0)")
    srd(A, SX, 4, X_BYTES)
    srd(A, SW, 8, WS_BYTES)
    srd(A, 12, 12, 768)
    A(f"s_mul_i32 s27, s2, {HSTR:#x}")
    A(f"s_add_u32 {s(SH)}, s8, s27")
    A(f"s_addc_u32 {s(SH+1)}, s9, 0")
    A(f"s_mov_b32 {s(SH+2)}, 0")
    A(f"s_mov_b32 {s(SH+3)}, 0x20000")
    A(f"s_add_u32 {s(SD)}, s8, {W1P:#x}")
    A(f"s_addc_u32 {s(SD+1)}, s9, 0")
    A(f"s_mov_b32 {s(SD+2)}, {48*24576:#x}")
    A(f"s_mov_b32 {s(SD+3)}, 0x20000")
    stamp(A, 0, SW, 1, 10)
    if OPT['pf']: code_prefetch(A, 'k1', 10, 40, 0, 2)
    DWL, DWH, Y0, T0 = 16, 64, 112, 208
    for ks in range(12):
        A.vmem(f"buffer_load_dwordx4 {v(DWH+4*ks,4)}, v7, s[12:15], 0 offen offset:{ks*64}", 'dw')
    def xload(rt, ks):
        if ks == 0 and rt: A(f"s_add_u32 s26, s26, {16*768}")
        A.vmem(f"buffer_load_dwordx4 {a(rt*48+ks*4,4)}, v8, {s(SX,4)}, s26 offen offset:{ks*64} {OPT['xpol']}", ('x', rt, ks))
    def dma(c, half, setup=True):
        ld = []
        for i in range(3):
            ld.append(f"buffer_load_dwordx4 {v(vL16)}, {s(SD,4)}, {s(sWOFF)} offen offset:{i*1024} lds")
        m0 = [f"s_add_u32 m0, {s(sM0B)}, {(c % 4)*24576 + half*3072:#x}"]
        adv = [f"s_add_u32 {s(sWOFF)}, {s(sWOFF)}, {3072 if half == 0 else 24576-3072:#x}"]
        if OPT['samew'] and half == 1 and c % 4 == 3: adv = [f"s_sub_u32 {s(sWOFF)}, {s(sWOFF)}, {3*24576+3072:#x}"]
        return m0, ld, adv
    def dma_now(c, half):
        m0, ld, adv = dma(c, half)
        A(m0[0]); A("s_nop 0")
        for l in ld: A.vmem(l, ('w', c))
        if (c, half) != (2, 1): A(adv[0])
    for ks in range(12): xload(0, ks)
    for ks in range(12): xload(1, ks)
    A.wait_vm(lambda t: t == 'dw')
    for i in range(48):
        A(f"v_and_b32 {v(DWL+i)}, 0xffff, {v(DWH+i)}")
        A(f"v_and_b32 {v(DWH+i)}, 0xffff0000, {v(DWH+i)}")
    S0, S1, Q0, Q1, C0 = T0+8, T0+10, T0+12, T0+14, T0+16
    for rt in range(4):
        extra = []
        if rt < 2: extra = [lambda ks=ks: xload(rt+2, ks) for ks in range(12)]
        elif rt == 2: extra = [lambda c=c, h=h: dma_now(c, h) for c in range(3) for h in range(2)]
        for ks in range(12):
            A.wait_vm(lambda t: t == ('x', rt, ks))
            for d in range(4):
                A(f"v_accvgpr_read_b32 {v(T0+d)}, {a(rt*48+ks*4+d)}")
            for d in range(4):
                i = ks*4 + d
                A(f"v_dot2_f32_bf16 {v(Y0+2*i)}, {v(T0+d)}, {v(DWL+i)}, 0")
                A(f"v_dot2_f32_bf16 {v(Y0+2*i+1)}, {v(T0+d)}, {v(DWH+i)}, 0")
            if extra: extra.pop(0)()
            if ks == 0:
                A("s_nop 2")
                A(f"v_pk_add_f32 {v(S0,2)}, {v(Y0,2)}, {v(Y0+4,2)}")
                A(f"v_pk_mul_f32 {v(Q0,2)}, {v(Y0,2)}, {v(Y0,2)}")
                A(f"v_pk_add_f32 {v(S1,2)}, {v(Y0+2,2)}, {v(Y0+6,2)}")
                A(f"v_pk_mul_f32 {v(Q1,2)}, {v(Y0+2,2)}, {v(Y0+2,2)}")
                A(f"v_pk_fma_f32 {v(Q0,2)}, {v(Y0+4,2)}, {v(Y0+4,2)}, {v(Q0,2)}")
                A(f"v_pk_fma_f32 {v(Q1,2)}, {v(Y0+6,2)}, {v(Y0+6,2)}, {v(Q1,2)}")
            else:
                for d in range(4):
                    y = Y0 + 2*(ks*4+d)
                    S_, Q_ = (S0, Q0) if d % 2 == 0 else (S1, Q1)
                    A(f"v_pk_add_f32 {v(S_,2)}, {v(S_,2)}, {v(y,2)}")
                    A(f"v_pk_fma_f32 {v(Q_,2)}, {v(y,2)}, {v(y,2)}, {v(Q_,2)}")
        A(f"v_pk_add_f32 {v(S0,2)}, {v(S0,2)}, {v(S1,2)}")
        A(f"v_pk_add_f32 {v(Q0,2)}, {v(Q0,2)}, {v(Q1,2)}")
        A(f"v_add_f32 {v(S0)}, {v(S0)}, {v(S0+1)}")
        A(f"v_add_f32 {v(Q0)}, {v(Q0)}, {v(Q0+1)}")
        xlane_sum(A, S0, S1)
        xlane_sum(A, Q0, Q1)
        A(f"v_mul_f32 {v(S0)}, {f2u(1.0/384):#x}, {v(S0)}")
        A(f"v_mul_f32 {v(Q0)}, {f2u(1.0/384):#x}, {v(Q0)}")
        A(f"v_fma_f32 {v(Q0)}, -{v(S0)}, {v(S0)}, {v(Q0)}")
        A(f"v_max_f32 {v(Q0)}, 0, {v(Q0)}")
        A(f"v_cvt_pk_bf16_f32 {v(S1)}, {v(S0)}, {v(Q0)}")
        A(f"v_lshlrev_b32 {v(S0)}, 16, {v(S1)}")
        A(f"v_and_b32 {v(Q0)}, 0xffff0000, {v(S1)}")
        A(f"v_add_f32 {v(Q0)}, {f2u(1e-5):#x}, {v(Q0)}")
        A(f"v_cvt_pk_bf16_f32 {v(Q0)}, {v(Q0)}, {v(Q0)}")
        A(f"v_and_b32 {v(Q0)}, 0xffff0000, {v(Q0)}")
        A(f"v_sqrt_f32 {v(Q0)}, {v(Q0)}")
        A("s_nop 0")
        A(f"v_cvt_pk_bf16_f32 {v(Q0)}, {v(Q0)}, {v(Q0)}")
        A(f"v_and_b32 {v(Q0)}, 0xffff0000, {v(Q0)}")
        A(f"v_rcp_f32 {v(Q0)}, {v(Q0)}")
        A("s_nop 0")
        A(f"v_mul_f32 {v(C0)}, {s(sA)}, {v(Q0)}")
        A(f"v_mul_f32_e64 {v(C0+1)}, -{v(S0)}, {v(C0)}")
        if A.pc % 8: A("s_nop 0")
        for i0 in range(0, 48, 4):
            for i in range(i0, i0+4):
                A(f"v_pk_fma_f32 {v(Y0+2*i,2)}, {v(Y0+2*i,2)}, {v(C0,2)}, {v(C0,2)} op_sel:[0,0,1] op_sel_hi:[1,0,1]")
            for i in range(i0, i0+4):
                A(f"v_cvt_pk_bf16_f32 {v(T0+i%4)}, {v(Y0+2*i)}, {v(Y0+2*i+1)}")
            for i in range(i0, i0+4):
                A(f"v_accvgpr_write_b32 {a(rt*48+i)}, {v(T0+i%4)}")
    A.wait_vm(lambda t: t == ('w', 1))
    A.wait_lg(lambda t: True)
    A("s_barrier")
    stamp(A, 1, SW, 1, 10)
    A.vm = [('w', 1)] + ([] if OPT['nost'] else ['st']*4) + [('w', 2)]*6
    if OPT['nodma']: A.vm = []

    YB, TB, PB, SB_ = 16, 80, 144, 176
    AF = 192
    Yr = lambda u: YB + 16*(u % 4)
    Tr = lambda u: TB + 16*(u % 4)
    Pr = lambda c: PB + 16*(c % 2)
    Sr = lambda u: SB_ + 4*(u % 2)
    NU = 96
    def dsread(gb, i):
        u, kb = divmod(gb, 3)
        c, ht = divmod(u, 2)
        off = (c % 4)*24576 + (ht*12 + kb*4 + i)*1024
        base = vL16
        if off >= 2*24576: base, off = vL16b, off - 2*24576
        return (f"ds_read_b128 {a(AF + 16*(gb % 2) + 4*i, 4)}, {v(base)} offset:{off}", ('a', gb))
    for i in range(4): A.lds(*dsread(0, i))
    A.wait_lg(lambda t: True)
    if A.pc % 8: A("s_nop 0")
    blocks = []
    B = A
    for it in range(13):
        start = len(A.lines)
        for p in range(it*8, min(it*8+8, NU+3)):
            has_m = p < NU
            trans = []
            if p-1 < NU: trans += [f"v_exp_f32 {v(Tr(p-1)+i)}, {v(Tr(p-1)+i)}" for i in range(16)]
            if p-2 < NU: trans += [f"v_rcp_f32 {v(Tr(p-2)+i)}, {v(Tr(p-2)+i)}" for i in range(16)]
            plain = []
            dsadd = None
            if p-3 < NU:
                u = p-3; c, ht = divmod(u, 2); T = Tr(u); S_ = Sr(u)
                cv = [f"v_cvt_pk_bf16_f32 {v(Pr(c)+4*rt+2*ht+d)}, {v(T+4*rt+2*d)}, {v(T+4*rt+2*d+1)}" for rt in range(4) for d in range(2)]
                dp = [f"v_add_f32_dpp {v(S_)}, {v(S_)}, {v(S_)} row_ror:8 row_mask:0xf bank_mask:0x3",
                      f"v_add_f32_dpp {v(S_+1)}, {v(S_+1)}, {v(S_+1)} row_ror:8 row_mask:0xf bank_mask:0x3",
                      f"v_add_f32_dpp {v(S_)}, {v(S_+2)}, {v(S_+2)} row_ror:8 row_mask:0xf bank_mask:0xc",
                      f"v_add_f32_dpp {v(S_+1)}, {v(S_+3)}, {v(S_+3)} row_ror:8 row_mask:0xf bank_mask:0xc",
                      f"v_add_f32_dpp {v(S_)}, {v(S_)}, {v(S_)} row_shl:4 row_mask:0xf bank_mask:0x5",
                      f"v_add_f32_dpp {v(S_)}, {v(S_+1)}, {v(S_+1)} row_shr:4 row_mask:0xf bank_mask:0xa"]
                dp += [f"v_add_f32_dpp {v(S_)}, {v(S_)}, {v(S_)} quad_perm:[2,3,0,1] row_mask:0xf bank_mask:0xf",
                       f"v_add_f32_dpp {v(S_)}, {v(S_)}, {v(S_)} quad_perm:[1,0,3,2] row_mask:0xf bank_mask:0xf"]
                plain = dp[0:4] + cv[0:2] + dp[4:6] + cv[2:4] + dp[6:7] + cv[4:6] + dp[7:8] + cv[6:8]
                dsadd = f"ds_write_b32 {v(vSUMA)}, {v(S_)} offset:{(p % 8)*64}"
            stores = []
            if True:
                c, hf = divmod(p-4, 2)
                if c < 48:
                    stores = [f"buffer_store_dwordx4 {v(Pr(c)+4*rt,4)}, {v(vL16)}, {s(SH,4)}, {s(sH4+rt)} offen {OPT['hpol']}" for rt in (2*hf, 2*hf+1)]
            if p == NU+2:
                stores += [f"buffer_store_dwordx4 {v(Pr(47)+4*rt,4)}, {v(vL16)}, {s(SH,4)}, {s(sH4+rt)} offen {OPT['hpol']}" for rt in (2, 3)]
            k = p // 2
            dm = dma(k+3, p % 2) if has_m else None
            scal = []
            if p % 8 == 4: scal.append(f"s_mov_b32 {s(SH+2)}, {48*16384:#x}")
            if True:
                for rt in (2*((p-5) % 2), 2*((p-5) % 2)+1): scal.append(f"s_add_u32 {s(sH4+rt)}, {s(sH4+rt)}, {16384:#x}")
            if has_m: scal += dma((p-1)//2+3, (p-1) % 2)[2]
            if dm: scal += dm[0]
            lastp = (p % 8 == 7)
            if lastp: scal += [f"s_sub_u32 {s(sCNT)}, {s(sCNT)}, 1", f"s_cmp_lg_u32 {s(sCNT)}, 0"]
            if has_m:
                gap = 0
                for kb in range(3):
                    gb = p*3 + kb
                    seq = [(rt, ks if rt % 2 == 0 else 3-ks) for rt in range(4) for ks in range(4)]
                    if kb == 0: A.wait_lg(lambda t: t == ('a', gb))
                    for n, (rt, kk) in enumerate(seq):
                        D = v(Yr(p)+4*rt, 4)
                        Cc = '0' if (kb == 0 and n % 4 == 0) else D
                        A(f"v_mfma_f32_16x16x32_bf16 {D}, {a(AF+16*(gb%2)+4*kk,4)}, {a(rt*48+(kb*4+kk)*4,4)}, {Cc}")
                        if gap == 47: break
                        if n == 15: A.wait_lg(lambda t: t == ('a', gb+1))
                        elif gap == 46:
                            A.wait_lg(lambda t: t == ('a', gb+1))
                        elif scal and n % 2 == 0: A(scal.pop(0))
                        if n in (1, 3, 5, 7):
                            A.lds(*dsread(gb+1, n//2))
                            if plain: A(plain.pop(0))
                        elif gap == 41 and plain:
                            while len(plain) > 2: A(plain.pop(0))
                        elif gap == 43 and plain:
                            while plain: A(plain.pop(0))
                        elif gap == 45:
                            if dsadd: A.lds(dsadd, 's'); dsadd = None
                            if lastp: A(f"v_add_u32 {v(vSUMA)}, 512, {v(vSUMA)}")
                        elif trans: A(trans.pop(0))
                        gap += 1
                assert not trans and not plain and not dsadd and not scal, (p, trans, plain, scal)
            else:
                for l in scal: A(l)
                for l in trans: A(l)
                for i, l in enumerate(plain):
                    A(l)
                if dsadd: A.lds(dsadd, 's')
            if p % 2 == 0 and has_m:
                A.wait_vm(lambda t: t == ('w', k+1))
                A("s_barrier")
            burst = []
            dl = list(dm[1]) if dm else []
            st = list(stores)
            while st or dl:
                if st: burst.append((st.pop(0), 'st'))
                if dl: burst.append((dl.pop(0), ('w', k+3)))
            if A.pc % 8: A("s_nop 0")
            for l, tg in burst:
                if OPT['nost'] and tg == 'st': continue
                if OPT['nodma'] and tg != 'st': continue
                A.vmem(l, tg)
            if p-2 < NU:
                u = p-2; T = Tr(u); Y = Yr(u); S_ = Sr(u)
                for i in range(0, 16, 2): A(f"v_pk_mul_f32 {v(T+i,2)}, {v(T+i,2)}, {v(Y+i,2)}")
            pb = []
            if p-1 < NU:
                T = Tr(p-1)
                pb = [f"v_pk_fma_f32 {v(T+i,2)}, {v(T+i,2)}, {s(sA,2)}, {s(sA,2)}" for i in range(0, 16, 2)]
            pq = []
            if p-2 < NU:
                u = p-2; T = Tr(u); S_ = Sr(u)
                for rt in range(4):
                    for d in (0, 2):
                        if rt == 0: pq.append(f"v_pk_mul_f32 {v(S_+d,2)}, {v(T+d,2)}, {v(T+d,2)}")
                        else: pq.append(f"v_pk_fma_f32 {v(S_+d,2)}, {v(T+4*rt+d,2)}, {v(T+4*rt+d,2)}, {v(S_+d,2)}")
            while pb or pq:
                if pq: A(pq.pop(0))
                if pb: A(pb.pop(0))
            if has_m:
                T = Tr(p); Y = Yr(p)
                for i in range(0, 16, 2): A(f"v_pk_fma_f32 {v(T+i,2)}, {v(Y+i,2)}, {v(Y+i,2)}, {s(sK,2)}")
                for i in range(0, 16, 2): A(f"v_pk_mul_f32 {v(T+i,2)}, {v(T+i,2)}, {v(Y+i,2)} neg_lo:[1,0] neg_hi:[1,0]")
            if lastp:
                A.lines.append('@LOOPBR'); A.pc += 4
                A("s_nop 0")
        blk = A.lines[start:]
        if OPT['drop']:
            import re
            blk = [l for l in blk if not re.match(OPT['drop'], l)]
        blocks.append(blk)
        del A.lines[start:]
    A.pc = 0
    roll(A, blocks, 'k1', sCNT)
    stamp(A, 2, SW, 1, 10)
    A("s_waitcnt lgkmcnt(0)")
    A("s_barrier")
    A("v_lshlrev_b32 v9, 2, v0")
    A(f"v_add_u32 v9, {LDS_SUM:#x}, v9")
    for q in range(6):
        for w in range(4): A(f"ds_read_b32 {v(16+4*q+w)}, v9 offset:{w*6144 + q*1024}")
    A("v_and_b32 v10, 0xe3, v0")
    A("v_bfe_u32 v11, v0, 2, 2")
    A("v_lshl_add_u32 v10, v11, 3, v10")
    A("v_bfe_u32 v11, v0, 4, 1")
    A("v_lshl_add_u32 v10, v11, 2, v10")
    A("v_lshlrev_b32 v10, 2, v10")
    A(f"s_and_b32 s25, s2, {NREP-1}")
    A("s_mul_i32 s25, s25, 6144")
    A(f"s_add_u32 s25, s25, {SUMS:#x}")
    A("s_add_u32 s26, s25, 3072")
    for q in range(6):
        A(f"s_waitcnt lgkmcnt({min(15, 4*(5-q))})")
        r = 16+4*q
        A(f"v_add_f32 {v(r)}, {v(r)}, {v(r+1)}")
        A(f"v_add_f32 {v(r+2)}, {v(r+2)}, {v(r+3)}")
        A(f"v_add_f32 {v(r)}, {v(r)}, {v(r+2)}")
        A(f"buffer_atomic_add_f32 {v(r)}, v10, {s(SW,4)}, {'s25' if q < 3 else 's26'} offen offset:{(q%3)*1024}")
    if OPT['stamps']:
        A("s_waitcnt vmcnt(0)")
        stamp(A, 3, SW, 1, 10)
    A.label("L_k1_end")
    A("s_endpgm")
    return A.text(), LDS_SUM + 24576


def gen_k3():
    A = Asm()
    SX, SW, SO = 4, 8, 12
    sWAVE, sWOFF, sHOFF, sM0B, sXO = 16, 17, 18, 19, 20
    vL16, vLb, vLc, vX = 112, 113, 114, 115
    BS, AR, XF, SEL = 0, 64, 96, 104
    def acc(t, rt): return (a(16*t + 4*rt, 4) if t < 16 else v(128 + 16*(t-16) + 4*rt, 4))
    A("s_cmp_ge_u32 s2, 256")
    A("s_cbranch_scc1 L_k3_end")
    A("s_load_dwordx2 s[4:5], s[0:1], 0")
    A("s_load_dwordx2 s[12:13], s[0:1], 48")
    A("s_load_dwordx2 s[8:9], s[0:1], 64")
    A("v_lshrrev_b32 v1, 6, v0")
    A("v_and_b32 v6, 63, v0")
    A(f"v_readfirstlane_b32 {s(sWAVE)}, v1")
    A(f"v_lshlrev_b32 {v(vL16)}, 4, v6")
    A(f"v_add_u32 {v(vLb)}, {49152:#x}, {v(vL16)}")
    A(f"v_add_u32 {v(vLc)}, {2*49152:#x}, {v(vL16)}")
    A("v_lshrrev_b32 v7, 4, v6")
    A("v_and_b32 v8, 15, v6")
    A(f"v_mul_u32_u24 {v(vX)}, 768, v8")
    A(f"v_lshl_add_u32 {v(vX)}, v7, 4, {v(vX)}")
    A("v_lshlrev_b32 v116, 5, v7")
    A("s_lshl_b32 s25, s2, 2")
    A(f"s_add_u32 s25, s25, {s(sWAVE)}")
    A(f"s_mul_i32 {s(sXO)}, s25, {64*768}")
    for rt in range(1, 4): A(f"s_add_u32 {s(sXO+rt)}, {s(sXO)}, {rt*16*768}")
    A(f"s_mul_i32 {s(sHOFF)}, s2, {HSTR:#x}")
    A(f"s_lshl_b32 s27, {s(sWAVE)}, 10")
    A(f"s_add_u32 {s(sHOFF)}, {s(sHOFF)}, s27")
    A(f"s_mul_i32 {s(sM0B)}, {s(sWAVE)}, 12288")
    A(f"s_add_u32 {s(sWOFF)}, {s(sM0B)}, {W2P:#x}")
    A(f"s_mov_b32 s26, {BIAS:#x}")
    A("v_lshrrev_b32 v9, 2, v8")
    A("v_cmp_eq_u32 vcc, v9, v7")
    A("v_and_b32 v10, 1, v8")
    A("v_lshlrev_b32 v10, 4, v10")
    A("v_mov_b32 v11, 0x3f80")
    A("v_lshlrev_b32 v11, v10, v11")
    A("v_cndmask_b32 v11, 0, v11, vcc")
    A("v_and_b32 v10, 2, v8")
    A("v_cmp_eq_u32 vcc, 0, v10")
    for i in (0, 1, 4, 5): A(f"v_mov_b32 {v(SEL+i)}, 0")
    A(f"v_cndmask_b32 {v(SEL+2)}, 0, v11, vcc")
    A(f"v_sub_u32 {v(SEL+3)}, v11, {v(SEL+2)}")
    A("s_waitcnt lgkmcnt(0)")
    srd(A, SX, 4, X_BYTES)
    srd(A, SW, 8, WS_BYTES)
    srd(A, SO, 12, X_BYTES)
    stamp(A, 0, SW, 3, 120)
    if OPT['pf'] == 1: code_prefetch(A, 'k3', 120, 40, 0, 4)
    if OPT['pf'] >= 2:
        code_prefetch(A, 'k3', 120, 40, 0, 1 if OPT['pf'] == 2 else 4)
        A("v_lshlrev_b32 v122, 6, v6")
        A("v_mov_b32 v119, s41")
        A("v_add_co_u32 v118, vcc, s40, v122")
        A("s_nop 1")
        A("v_addc_co_u32 v119, vcc, 0, v119, vcc")
    NB = 24
    def dma_ops(kb):
        ops = []
        for i in range(12):
            pre = []
            if i % 4 == 0:
                if OPT['samew'] and i == 0 and kb and kb % 2 == 0: pre.append(f"s_sub_u32 {s(sWOFF)}, {s(sWOFF)}, {49152+8192:#x}")
                elif i or kb: pre.append(f"s_add_u32 {s(sWOFF)}, {s(sWOFF)}, {4096 if i else 49152-8192:#x}")
                pre.append(f"s_add_u32 m0, {s(sM0B)}, {(kb % 3)*49152 + i*1024:#x}")
            ops.append((pre, f"buffer_load_dwordx4 {v(vL16)}, {s(SW,4)}, {s(sWOFF)} offen offset:{(i%4)*1024} lds", ('w', kb)))
        return ops
    def h_ops(kb):
        ops = []
        for k2 in range(2):
            for rt in range(4):
                pre = []
                if kb or k2 or rt: pre.append(f"s_add_u32 {s(sHOFF)}, {s(sHOFF)}, {1 << 12:#x}")
                ops.append((pre, f"buffer_load_dwordx4 {v(BS + 32*(kb%2) + (k2*4+rt)*4, 4)}, {v(vL16)}, {s(SW,4)}, {s(sHOFF)} offen", ('h', kb)))
        return ops
    xlist = [(u, rt) for u in range(12) for rt in range(4)]
    xsched = {kb: [] for kb in range(NB)}
    gi = 0
    for kb in range(1, 23):
        xsched[kb].append(gi); gi += 1
    xsched[10].append(gi); gi += 1
    xsched[16].append(gi); gi += 1
    order = []
    for kb in range(NB):
        n = len(xsched[kb])
        for j in range(n): order.append((kb, 13 if n == 1 else (3, 17)[j]))
    assert len(order) == 24
    def x_ops(gidx):
        ops = []
        for j in range(2):
            u, rt = xlist[2*gidx+j]
            ops.append(([], f"buffer_load_dwordx4 {v(XF+4*j,4)}, {v(vX)}, {s(SX,4)}, {s(sXO+rt)} offen offset:{u*64} {OPT['x3pol']}", ('x', gidx)))
        return ops
    def now(ops):
        for pre, l, tg in ops:
            for p_ in pre: A(p_)
            if pre: A("s_nop 0")
            A.vmem(l, tg)
    now(dma_ops(0))
    now(h_ops(0))
    for t in range(24):
        A.vmem(f"buffer_load_dwordx4 {acc(t,0)}, v116, {s(SW,4)}, s26 offen offset:{(t>>1)*128 + (t&1)*16}", ('b', t))
    A.wait_vm(lambda t: t == ('w', 0))
    A("s_barrier")
    bases = [vL16, vLb, vLc]
    def dsread(gt, k2):
        kb, t = divmod(gt, 24)
        return (f"ds_read_b128 {v(AR + 8*(gt % 4) + 4*k2, 4)}, {v(bases[kb % 3])} offset:{(t*2+k2)*1024}", ('a', gt))
    for gt in range(3):
        for k2 in range(2): A.lds(*dsread(gt, k2))
    vq = dma_ops(1) + x_ops(0)
    A.wait_vm(lambda t: t == ('b', 23))
    A.wait_lg(lambda t: t == ('a', 0))
    stamp(A, 1, SW, 3, 120)
    epi = []
    ET = BS
    ecount = 0
    def epi_ops(u):
        nonlocal ecount
        ops = []
        for rt in range(4):
            P = ET + 16 + 4*(ecount % 4)
            for e in range(2):
                t = 2*u + e
                if t < 16:
                    T = ET + 8*(ecount % 2) + 4*e
                    for r in range(4): ops.append(('v', f"v_accvgpr_read_b32 {v(T+r)}, {a(16*t+4*rt+r)}"))
                else:
                    T = 128 + 16*(t-16) + 4*rt
                for d in range(2): ops.append(('v', f"v_cvt_pk_bf16_f32 {v(P+2*e+d)}, {v(T+2*d)}, {v(T+2*d+1)}"))
            ops.append(('s', f"buffer_store_dwordx4 {v(P,4)}, {v(vX)}, {s(SO,4)}, {s(sXO+rt)} offen offset:{u*64} {OPT['opol']}"))
            ecount += 1
        return ops
    xnext = 0
    for kb in range(NB):
        if kb + 1 < NB: vq = h_ops(kb+1) + vq
        A.label(f"L_k3_b{kb}")
        if OPT['stamps']: A(f"s_memtime {s(42+2*kb,2)}")
        for t in range(24):
            gt = kb*24 + t
            rts = (3, 2, 1, 0) if kb == 0 else (0, 1, 2, 3)
            seq = [(rt, k2 if i % 2 == 0 else 1-k2, k2) for i, rt in enumerate(rts) for k2 in range(2)]
            mf = []
            for (rt, kk, first) in seq:
                D = acc(t, rt)
                Cc = acc(t, 0) if (kb == 0 and first == 0) else D
                mf.append(f"v_mfma_f32_16x16x32_bf16 {D}, {v(AR+8*(gt%4)+4*kk,4)}, {v(BS+32*(kb%2)+(kk*4+rt)*4,4)}, {Cc}")
            xg = None
            if xnext < 24 and order[xnext] == (kb, t):
                xg = xnext; xnext += 1
                for j in range(2):
                    u, rt = xlist[2*xg+j]
                    for e in range(2):
                        D = acc(2*u+e, rt)
                        mf.append(f"v_mfma_f32_16x16x32_bf16 {D}, {v(SEL+2-2*e,4)}, {v(XF+4*j,4)}, {D}")
            if kb == NB-1 and t >= 3 and t % 2 == 1: epi += epi_ops((t-3)//2)
            scal = []
            for n, l in enumerate(mf):
                A(l)
                slots = 2
                if n == 7 and xg is not None:
                    assert not any(o[2] == ('x', xg) for o in vq)
                    A.wait_vm(lambda tg: tg == ('x', xg))
                if n == len(mf)-1:
                    w1 = A.wait_lg_str(lambda tg: tg == ('a', gt+1))
                    w2 = A.wait_vm_str(lambda tg: tg == ('h', kb+1)) if t == 23 else None
                    if w1 and w2: A(w2 + ' ' + w1.split()[1])
                    elif w1 or w2: A(w1 or w2)
                    if xg is not None and xg+1 < 24: vq = x_ops(xg+1) + vq
                if t == 20 and n == 6 and kb+1 < NB:
                    assert not any(o[2] == ('w', kb+1) for o in vq), kb
                    A.wait_vm(lambda tg: tg == ('w', kb+1))
                    A("s_barrier")
                    if kb+2 < NB: vq = vq + dma_ops(kb+2)
                    slots = 0
                if n in (0, 1) and gt+3 < NB*24:
                    A.lds(*dsread(gt+3, n)); slots -= 1
                elif n in (2, 3, 5) and vq and vq[0][0]:
                    A(vq[0][0].pop(0))
                elif n in (4, 6) and slots and vq and not vq[0][0] and (n == 4 or len(vq) > 18 - t):
                    _, l2, tg = vq.pop(0)
                    if not ((OPT['nodma'] and tg[0] == 'w') or (OPT['noh'] and tg[0] == 'h') or (OPT['nox'] and tg[0] == 'x')):
                        A.vmem(l2, tg)
                    slots = 0
                if OPT['pf'] >= 2 and t == 22 and 2 <= kb <= 21:
                    tgt = kb + 3
                    prev = 'k3_kernel' if kb == 2 else (f"L_k3_b{tgt-1}")
                    cur = f"L_k3_b{tgt}" if tgt < NB else "L_k3_pfend"
                    if n == 2: A(f"v_add_co_u32 v118, vcc, {cur}-{prev}, v118"); A.pc += 4
                    if n == 5: A("v_addc_co_u32 v119, vcc, 0, v119, vcc")
                    if n == 7: A.vmem("global_load_dword v117, v[118:119], off", 'pf')
                while slots and epi:
                    if epi[0][0] == 's':
                        if slots == 2: A.vmem(epi.pop(0)[1], 'o')
                        slots = 0
                    else:
                        A(epi.pop(0)[1]); slots -= 1
    assert not vq
    stamp(A, 2, SW, 3, 120)
    epi += epi_ops(11)
    A("s_nop 7")
    for kind, l in epi:
        A(l)
    if OPT['stamps']:
        A("s_waitcnt vmcnt(0)")
        stamp(A, 3, SW, 3, 120)
        A("s_add_u32 s94, s94, 8")
        A("s_mov_b64 exec, 1")
        for kb in range(24):
            A(f"v_mov_b32 v124, {s(42+2*kb)}")
            A(f"buffer_store_dword v124, v122, {s(SW,4)}, s94 offen offset:{4*kb}")
    A.label("L_k3_end")
    A(".set L_k3_pfend, L_k3_end-4096")
    A("s_endpgm")
    return A.text(), 3*49152


def main():
    k1, lds1 = gen_k1()
    k3, lds3 = gen_k3()
    head = open('standalone__modern_conv_block_slak__vision.s.ref').read().split('; Override launch')[0]
    out = head
    out += "; @launch kernel=prep_kernel grid=(288,1,1) block=(256,1,1) lds=0\n"
    out += f"; @launch kernel=k1_kernel grid=(256,1,1) block=(256,1,1) lds={lds1}\n"
    out += "; @launch kernel=scale_kernel grid=(288,1,1) block=(256,1,1) lds=8192\n"
    out += f"; @launch kernel=k3_kernel grid=(256,1,1) block=(256,1,1) lds={lds3}\n"
    out += '.amdgcn_target "amdgcn-amd-amdhsa--gfx950"\n'
    out += kernel_text('prep_kernel', gen_prep())
    out += kernel_text('k1_kernel', k1)
    out += kernel_text('scale_kernel', gen_scale())
    out += kernel_text('k3_kernel', k3)
    out += '.section .rodata,"a"\n'
    out += descriptor('prep_kernel', 24, 24)
    out += descriptor('k1_kernel', 512, 256)
    out += descriptor('scale_kernel', 32 + 6*NREP + 16, 32 + 6*NREP + 16)
    out += descriptor('k3_kernel', 512, 256)
    open(sys.argv[1], 'w').write(out)
    print(f"wrote {sys.argv[1]}: {len(out)} bytes, {out.count(chr(10))} lines")

main()
```

```python
import sys, math
from asmlib import *

OPT = dict(xpol='', hpol='sc1', x3pol='', opol='sc1', empty=0, stamps=0, R=8, nost=0, nodma=0, noh=0, nox=0, samew=0, drop='', pf=1)
for arg in sys.argv[2:]:
    k, val = arg.split('=')
    OPT[k] = type(OPT[k])(val.replace('+', ' '))
NREP = OPT['R']

WS_BYTES = 0x10000000
X_BYTES = 65536 * 768
H_OFF = 0
HSTR = 0xC3000
W1P = 0xC400000
W2P = 0xC520000
SUMS = 0xC640000
BIAS = SUMS + NREP * 6144
STAMP = 0xC800000

KG = 2.0 * math.sqrt(2.0 / math.pi) * math.log2(math.e)
A_SC = (KG * 0.044715) ** (1.0 / 3.0)
K_SC = KG / A_SC


def srd(A, d, src, nbytes):
    if d != src:
        A(f"s_mov_b32 {s(d)}, {s(src)}")
        A(f"s_mov_b32 {s(d+1)}, {s(src+1)}")
    A(f"s_mov_b32 {s(d+2)}, {nbytes:#x}")
    A(f"s_mov_b32 {s(d+3)}, 0x20000")


def xlane_sum(A, r, t):
    for op in ('v_permlane16_swap_b32', 'v_permlane32_swap_b32'):
        A(f"v_mov_b32 {v(t)}, {v(r)}")
        A("s_nop 1")
        A(f"{op} {v(r)}, {v(t)}")
        A("s_nop 1")
        A(f"v_add_f32 {v(r)}, {v(r)}, {v(t)}")


def stamp(A, idx, ws_srd, kern, tmp):
    if not OPT['stamps']: return
    A("s_memrealtime s[90:91]")
    A("s_memtime s[92:93]")
    A("s_lshl_b32 s94, s2, 2")
    A("s_add_u32 s94, s94, s16")
    A("s_lshl_b32 s94, s94, 7")
    A(f"s_add_u32 s94, s94, {STAMP + kern*0x40000 + idx*8:#x}")
    A("s_waitcnt lgkmcnt(0)"); A.lg = []
    A(f"v_mov_b32 {v(tmp)}, s90")
    A(f"v_mov_b32 {v(tmp+1)}, s92")
    A(f"v_mov_b32 {v(tmp+2)}, 0")
    A("s_mov_b64 exec, 1")
    A.vmem(f"buffer_store_dwordx2 {v(tmp,2)}, {v(tmp+2)}, {s(ws_srd,4)}, s94 offen", 'stamp')
    A("s_mov_b64 exec, -1")


def code_prefetch_setup(A, name, vt, st):
    A(f"s_getpc_b64 {s(st,2)}")
    A.label(f"L_{name}_pc")
    A(f"s_sub_u32 {s(st)}, {s(st)}, L_{name}_pc-{name}_kernel"); A.pc += 4
    A(f"s_subb_u32 {s(st+1)}, {s(st+1)}, 0")


def code_prefetch(A, name, vt, st, first, n):
    code_prefetch_setup(A, name, vt, st)
    for i in range(first, first+n):
        A(f"v_lshlrev_b32 {v(vt+2)}, 6, v0")
        if i: A(f"v_add_u32 {v(vt+2)}, {i*16384:#x}, {v(vt+2)}")
        A(f"v_min_u32 {v(vt+2)}, L_{name}_end-{name}_kernel, {v(vt+2)}"); A.pc += 4
        A(f"v_mov_b32 {v(vt+1)}, {s(st+1)}")
        A(f"v_add_co_u32 {v(vt)}, vcc, {s(st)}, {v(vt+2)}")
        A("s_nop 1")
        A(f"v_addc_co_u32 {v(vt+1)}, vcc, 0, {v(vt+1)}, vcc")
        A.vmem(f"global_load_dword {v(vt+3)}, {v(vt,2)}, off", 'pf')


def gen_prep():
    A = Asm()
    A("s_cmp_ge_u32 s2, 288")
    A("s_cbranch_scc1 L_prep_end")
    A("s_load_dwordx2 s[4:5], s[0:1], 16")
    A("s_load_dwordx2 s[8:9], s[0:1], 64")
    A("v_lshrrev_b32 v1, 6, v0")
    A("v_and_b32 v2, 63, v0")
    A("v_readfirstlane_b32 s16, v1")
    A("v_lshrrev_b32 v3, 4, v2")
    A("v_and_b32 v4, 3, v2")
    A("v_bfe_u32 v5, v2, 2, 2")
    A("v_lshl_add_u32 v4, v5, 3, v4")
    A("v_lshlrev_b32 v4, 1, v4")
    A(f"v_mul_u32_u24 v3, {8*3072}, v3")
    A("v_add_u32 v3, v3, v4")
    A("s_lshl_b32 s17, s2, 2")
    A("s_add_u32 s17, s17, s16")
    A("s_mul_hi_u32 s18, s17, 0xAAAAAAB")
    A("s_mul_i32 s19, s18, 24")
    A("s_sub_u32 s19, s17, s19")
    A("s_cmp_ge_u32 s19, 12")
    A("s_cselect_b32 s20, 1, 0")
    A("s_mul_i32 s21, s20, 12")
    A("s_sub_u32 s21, s19, s21")
    A(f"s_mul_i32 s21, s21, {32*3072}")
    A("s_lshl_b32 s18, s18, 6")
    A("s_lshl_b32 s20, s20, 3")
    A("s_add_u32 s21, s21, s18")
    A("s_add_u32 s21, s21, s20")
    A("s_waitcnt lgkmcnt(0)")
    srd(A, 4, 4, 384*1536*2)
    srd(A, 8, 8, WS_BYTES)
    for j in range(8):
        A(f"buffer_load_ushort {v(8+j)}, v3, s[4:7], s21 offen")
        A("s_add_u32 s21, s21, 3072")
    A("v_lshlrev_b32 v6, 4, v2")
    A("s_lshl_b32 s22, s17, 10")
    A(f"s_add_u32 s22, s22, {W1P:#x}")
    A(f"s_cmp_ge_u32 s2, {6*NREP+2}")
    A("s_cbranch_scc1 L_prep_nozero")
    A("v_lshlrev_b32 v7, 2, v0")
    A("v_mov_b32 v20, 0")
    A("s_lshl_b32 s23, s2, 10")
    A(f"s_add_u32 s23, s23, {SUMS:#x}")
    A("buffer_store_dword v20, v7, s[8:11], s23 offen")
    A.label("L_prep_nozero")
    A("s_waitcnt vmcnt(0)")
    for d in range(4):
        A(f"v_lshl_or_b32 {v(16+d)}, {v(9+2*d)}, 16, {v(8+2*d)}")
    A("buffer_store_dwordx4 v[16:19], v6, s[8:11], s22 offen")
    A.label("L_prep_end")
    A("s_endpgm")
    return A.text()


def gen_scale():
    A = Asm()
    A("s_cmp_ge_u32 s2, 288")
    A("s_cbranch_scc1 L_scale_end")
    A("s_load_dwordx2 s[4:5], s[0:1], 24")
    A("s_load_dwordx2 s[8:9], s[0:1], 64")
    A("s_load_dwordx2 s[12:13], s[0:1], 32")
    A("s_load_dwordx2 s[28:29], s[0:1], 40")
    A("v_lshrrev_b32 v1, 6, v0")
    A("v_and_b32 v2, 63, v0")
    A("v_readfirstlane_b32 s16, v1")
    A("v_lshrrev_b32 v3, 4, v2")
    A("v_and_b32 v4, 3, v2")
    A("v_bfe_u32 v5, v2, 2, 2")
    A("v_lshl_add_u32 v4, v5, 3, v4")
    A("v_lshlrev_b32 v5, 1, v4")
    A(f"v_mul_u32_u24 v6, {8*768}, v3")
    A("v_add_u32 v5, v5, v6")
    A("v_lshlrev_b32 v6, 4, v3")
    A("v_lshlrev_b32 v7, 3, v0")
    A("s_lshl_b32 s17, s2, 2")
    A("s_add_u32 s17, s17, s16")
    A("s_mul_hi_u32 s18, s17, 0x5555556")
    A("s_mul_i32 s19, s18, 48")
    A("s_sub_u32 s19, s17, s19")
    A("s_and_b32 s20, s19, 1")
    A("s_lshl_b32 s18, s18, 1")
    A("s_add_u32 s18, s18, s20")
    A("s_lshr_b32 s20, s19, 2")
    A("s_lshl_b32 s20, s20, 5")
    A("s_and_b32 s21, s19, 2")
    A("s_lshl_b32 s21, s21, 1")
    A("s_add_u32 s20, s20, s21")
    A(f"s_mul_i32 s21, s18, {32*768}")
    A("s_lshl_b32 s22, s20, 1")
    A("s_add_u32 s21, s21, s22")
    A("s_add_u32 s22, s21, 3072")
    A("s_lshl_b32 s23, s18, 6")
    A("s_waitcnt lgkmcnt(0)")
    srd(A, 4, 4, 384*1536*2)
    srd(A, 8, 8, WS_BYTES)
    srd(A, 12, 12, 3072)
    srd(A, 28, 28, 3072)
    SB = 32
    for r in range(NREP):
        A(f"s_mov_b32 s24, {SUMS + r*6144:#x}")
        A(f"s_mov_b32 s25, {SUMS + r*6144 + 4096:#x}")
        for q in range(3):
            reg = SB + (r*3+q)*2
            A(f"buffer_load_dwordx2 {v(reg,2)}, v7, s[8:11], {'s25' if q == 2 else 's24'} offen offset:{(q%2)*2048}")
    for j in range(8):
        A(f"buffer_load_ushort {v(8+j)}, v5, s[4:7], {'s21' if j < 4 else 's22'} offen offset:{(j%4)*768}")
    A("buffer_load_dwordx4 v[16:19], v6, s[12:15], s23 offen")
    A("buffer_load_dwordx4 v[20:23], v6, s[28:31], s23 offen")
    A("s_waitcnt vmcnt(10)")
    for r in range(1, NREP):
        for i in range(6):
            A(f"v_add_f32 {v(SB+i)}, {v(SB+i)}, {v(SB+r*6+i)}")
    for i in range(6):
        A(f"v_add_f32 {v(SB+i)}, {f2u(1e-6):#x}, {v(SB+i)}")
    for i in range(6):
        A(f"v_sqrt_f32 {v(SB+i)}, {v(SB+i)}")
    A("s_nop 0")
    for q in range(3):
        A(f"ds_write_b64 v7, {v(SB+2*q,2)} offset:{q*2048}")
    A(f"v_add_f32 v24, {v(SB)}, {v(SB+1)}")
    for i in range(2, 6):
        A(f"v_add_f32 v24, v24, {v(SB+i)}")
    for n in (8, 4, 2, 1):
        A("s_nop 1")
        A(f"v_add_f32_dpp v24, v24, v24 row_ror:{n} row_mask:0xf bank_mask:0xf")
    xlane_sum(A, 24, 25)
    A("v_lshlrev_b32 v25, 2, v1")
    A("ds_write_b32 v25, v24 offset:6144")
    A("v_lshlrev_b32 v26, 5, v3")
    A("s_lshl_b32 s24, s18, 7")
    A("v_add_u32 v26, s24, v26")
    A("v_mov_b32 v27, 0")
    A("s_waitcnt lgkmcnt(0)")
    A("s_barrier")
    A("ds_read_b128 v[28:31], v27 offset:6144")
    A("ds_read_b128 v[32:35], v26")
    A("ds_read_b128 v[36:39], v26 offset:16")
    A("s_waitcnt vmcnt(0) lgkmcnt(0)")
    A("v_add_f32 v28, v28, v29")
    A("v_add_f32 v30, v30, v31")
    A("v_add_f32 v28, v28, v30")
    A(f"v_mov_b32 v29, {f2u(1e-6):#x}")
    A(f"v_fmac_f32 v29, {f2u(1.0/1536):#x}, v28")
    A("v_rcp_f32 v29, v29")
    A("v_mov_b32 v56, 0")
    for j in range(8):
        gsrc, bsrc = 16 + j//2, 20 + j//2
        if j % 2 == 0:
            A(f"v_lshlrev_b32 v40, 16, {v(gsrc)}")
            A(f"v_lshlrev_b32 v41, 16, {v(bsrc)}")
        else:
            A(f"v_and_b32 v40, 0xffff0000, {v(gsrc)}")
            A(f"v_and_b32 v41, 0xffff0000, {v(bsrc)}")
        A(f"v_lshlrev_b32 {v(8+j)}, 16, {v(8+j)}")
        A(f"v_mul_f32 v42, {v(32+j)}, v29")
        A(f"v_fma_f32 v42, v40, v42, 1.0")
        A(f"v_fmac_f32 v56, v41, {v(8+j)}")
        A(f"v_mul_f32 {v(44+j)}, v42, {v(8+j)}")
    for d in range(4):
        A(f"v_cvt_pk_bf16_f32 {v(52+d)}, {v(44+2*d)}, {v(45+2*d)}")
    A("v_lshlrev_b32 v6, 4, v2")
    A("s_lshl_b32 s22, s17, 10")
    A(f"s_add_u32 s22, s22, {W2P:#x}")
    A("buffer_store_dwordx4 v[52:55], v6, s[8:11], s22 offen")
    xlane_sum(A, 56, 57)
    A("v_lshlrev_b32 v4, 2, v4")
    A("s_lshl_b32 s20, s20, 2")
    A(f"s_add_u32 s20, s20, {BIAS:#x}")
    A("s_mov_b64 exec, 0xffff")
    A("buffer_atomic_add_f32 v56, v4, s[8:11], s20 offen")
    A.label("L_scale_end")
    A("s_endpgm")
    return A.text()


def roll(A, blocks, name, cnt_reg):
    i = 0
    nloop = 0
    while i < len(blocks):
        j = i
        while j + 1 < len(blocks) and blocks[j+1] == blocks[i]: j += 1
        n = j - i + 1
        if n == 1:
            for l in blocks[i]:
                if l != '@LOOPBR': A(l)
                else: A("s_nop 0")
        else:
            lab = f"L_{name}_loop{nloop}"; nloop += 1
            A(f"s_mov_b32 {s(cnt_reg)}, {n}")
            if A.pc % 8: A("s_nop 0")
            A.label(lab)
            for l in blocks[i]:
                if l == '@LOOPBR': A(f"s_cbranch_scc1 {lab}")
                else: A(l)
        i = j + 1


def gen_k1():
    A = Asm()
    SX, SW, SH, SD = 4, 8, 32, 36
    sWAVE, sWOFF, sCNT, sK, sA, sM0B, sH4 = 16, 17, 19, 20, 22, 24, 28
    LDS_SUM = 4 * 24576 + 256
    vL16, vL16b, vSUMA, vH = 2, 3, 4, 5
    A("s_cmp_ge_u32 s2, 256")
    A("s_cbranch_scc1 L_k1_end")
    A("s_load_dwordx2 s[4:5], s[0:1], 0")
    A("s_load_dwordx2 s[12:13], s[0:1], 8")
    A("s_load_dwordx2 s[8:9], s[0:1], 64")
    A("v_lshrrev_b32 v1, 6, v0")
    A("v_and_b32 v6, 63, v0")
    A(f"v_readfirstlane_b32 {s(sWAVE)}, v1")
    A(f"v_lshlrev_b32 {v(vL16)}, 4, v6")
    A(f"v_add_u32 {v(vL16b)}, {2*24576:#x}, {v(vL16)}")
    A(f"v_and_b32 {v(vSUMA)}, 60, v6")
    A(f"v_mul_u32_u24 v9, 6144, v1")
    A(f"v_add_u32 {v(vSUMA)}, {LDS_SUM - 3*64:#x}, {v(vSUMA)}")
    A(f"v_add_u32 {v(vSUMA)}, v9, {v(vSUMA)}")
    A("v_lshrrev_b32 v7, 4, v6")
    A("v_lshlrev_b32 v7, 4, v7")
    A("v_and_b32 v8, 15, v6")
    A("v_mul_u32_u24 v8, 768, v8")
    A("v_add_u32 v8, v8, v7")
    A("s_lshl_b32 s25, s2, 2")
    A(f"s_add_u32 s25, s25, {s(sWAVE)}")
    A(f"s_mul_i32 s26, s25, {64*768}")
    A(f"s_lshl_b32 s27, {s(sWAVE)}, 10")
    for rt in range(4):
        A(f"s_sub_u32 {s(sH4+rt)}, s27, {(2 + rt//2)*16384 - (rt << 12):#x}")
    A(f"s_mul_i32 {s(sM0B)}, {s(sWAVE)}, 6144")
    A(f"s_mov_b32 {s(sWOFF)}, {s(sM0B)}")
    A(f"s_mov_b32 {s(sK)}, {f2u(K_SC):#x}")
    A(f"s_mov_b32 {s(sK+1)}, {f2u(K_SC):#x}")
    A(f"s_mov_b32 {s(sA)}, {f2u(A_SC):#x}")
    A(f"s_mov_b32 {s(sA+1)}, {f2u(A_SC):#x}")
    A("s_waitcnt lgkmcnt(0)")
    srd(A, SX, 4, X_BYTES)
    srd(A, SW, 8, WS_BYTES)
    srd(A, 12, 12, 768)
    A(f"s_mul_i32 s27, s2, {HSTR:#x}")
    A(f"s_add_u32 {s(SH)}, s8, s27")
    A(f"s_addc_u32 {s(SH+1)}, s9, 0")
    A(f"s_mov_b32 {s(SH+2)}, 0")
    A(f"s_mov_b32 {s(SH+3)}, 0x20000")
    A(f"s_add_u32 {s(SD)}, s8, {W1P:#x}")
    A(f"s_addc_u32 {s(SD+1)}, s9, 0")
    A(f"s_mov_b32 {s(SD+2)}, {48*24576:#x}")
    A(f"s_mov_b32 {s(SD+3)}, 0x20000")
    stamp(A, 0, SW, 1, 10)
    if OPT['pf']: code_prefetch(A, 'k1', 10, 40, 0, 2)
    DWL, DWH, Y0, T0 = 16, 64, 112, 208
    for ks in range(12):
        A.vmem(f"buffer_load_dwordx4 {v(DWH+4*ks,4)}, v7, s[12:15], 0 offen offset:{ks*64}", 'dw')
    def xload(rt, ks):
        if ks == 0 and rt: A(f"s_add_u32 s26, s26, {16*768}")
        A.vmem(f"buffer_load_dwordx4 {a(rt*48+ks*4,4)}, v8, {s(SX,4)}, s26 offen offset:{ks*64} {OPT['xpol']}", ('x', rt, ks))
    def dma(c, half, setup=True):
        ld = []
        for i in range(3):
            ld.append(f"buffer_load_dwordx4 {v(vL16)}, {s(SD,4)}, {s(sWOFF)} offen offset:{i*1024} lds")
        m0 = [f"s_add_u32 m0, {s(sM0B)}, {(c % 4)*24576 + half*3072:#x}"]
        adv = [f"s_add_u32 {s(sWOFF)}, {s(sWOFF)}, {3072 if half == 0 else 24576-3072:#x}"]
        if OPT['samew'] and half == 1 and c % 4 == 3: adv = [f"s_sub_u32 {s(sWOFF)}, {s(sWOFF)}, {3*24576+3072:#x}"]
        return m0, ld, adv
    def dma_now(c, half):
        m0, ld, adv = dma(c, half)
        A(m0[0]); A("s_nop 0")
        for l in ld: A.vmem(l, ('w', c))
        if (c, half) != (2, 1): A(adv[0])
    for ks in range(12): xload(0, ks)
    for ks in range(12): xload(1, ks)
    A.wait_vm(lambda t: t == 'dw')
    for i in range(48):
        A(f"v_and_b32 {v(DWL+i)}, 0xffff, {v(DWH+i)}")
        A(f"v_and_b32 {v(DWH+i)}, 0xffff0000, {v(DWH+i)}")
    S0, S1, Q0, Q1, C0 = T0+8, T0+10, T0+12, T0+14, T0+16
    for rt in range(4):
        extra = []
        if rt < 2: extra = [lambda ks=ks: xload(rt+2, ks) for ks in range(12)]
        elif rt == 2: extra = [lambda c=c, h=h: dma_now(c, h) for c in range(3) for h in range(2)]
        for ks in range(12):
            A.wait_vm(lambda t: t == ('x', rt, ks))
            for d in range(4):
                A(f"v_accvgpr_read_b32 {v(T0+d)}, {a(rt*48+ks*4+d)}")
            for d in range(4):
                i = ks*4 + d
                A(f"v_dot2_f32_bf16 {v(Y0+2*i)}, {v(T0+d)}, {v(DWL+i)}, 0")
                A(f"v_dot2_f32_bf16 {v(Y0+2*i+1)}, {v(T0+d)}, {v(DWH+i)}, 0")
            if extra: extra.pop(0)()
            if ks == 0:
                A("s_nop 2")
                A(f"v_pk_add_f32 {v(S0,2)}, {v(Y0,2)}, {v(Y0+4,2)}")
                A(f"v_pk_mul_f32 {v(Q0,2)}, {v(Y0,2)}, {v(Y0,2)}")
                A(f"v_pk_add_f32 {v(S1,2)}, {v(Y0+2,2)}, {v(Y0+6,2)}")
                A(f"v_pk_mul_f32 {v(Q1,2)}, {v(Y0+2,2)}, {v(Y0+2,2)}")
                A(f"v_pk_fma_f32 {v(Q0,2)}, {v(Y0+4,2)}, {v(Y0+4,2)}, {v(Q0,2)}")
                A(f"v_pk_fma_f32 {v(Q1,2)}, {v(Y0+6,2)}, {v(Y0+6,2)}, {v(Q1,2)}")
            else:
                for d in range(4):
                    y = Y0 + 2*(ks*4+d)
                    S_, Q_ = (S0, Q0) if d % 2 == 0 else (S1, Q1)
                    A(f"v_pk_add_f32 {v(S_,2)}, {v(S_,2)}, {v(y,2)}")
                    A(f"v_pk_fma_f32 {v(Q_,2)}, {v(y,2)}, {v(y,2)}, {v(Q_,2)}")
        A(f"v_pk_add_f32 {v(S0,2)}, {v(S0,2)}, {v(S1,2)}")
        A(f"v_pk_add_f32 {v(Q0,2)}, {v(Q0,2)}, {v(Q1,2)}")
        A(f"v_add_f32 {v(S0)}, {v(S0)}, {v(S0+1)}")
        A(f"v_add_f32 {v(Q0)}, {v(Q0)}, {v(Q0+1)}")
        xlane_sum(A, S0, S1)
        xlane_sum(A, Q0, Q1)
        A(f"v_mul_f32 {v(S0)}, {f2u(1.0/384):#x}, {v(S0)}")
        A(f"v_mul_f32 {v(Q0)}, {f2u(1.0/384):#x}, {v(Q0)}")
        A(f"v_fma_f32 {v(Q0)}, -{v(S0)}, {v(S0)}, {v(Q0)}")
        A(f"v_max_f32 {v(Q0)}, 0, {v(Q0)}")
        A(f"v_cvt_pk_bf16_f32 {v(S1)}, {v(S0)}, {v(Q0)}")
        A(f"v_lshlrev_b32 {v(S0)}, 16, {v(S1)}")
        A(f"v_and_b32 {v(Q0)}, 0xffff0000, {v(S1)}")
        A(f"v_add_f32 {v(Q0)}, {f2u(1e-5):#x}, {v(Q0)}")
        A(f"v_cvt_pk_bf16_f32 {v(Q0)}, {v(Q0)}, {v(Q0)}")
        A(f"v_and_b32 {v(Q0)}, 0xffff0000, {v(Q0)}")
        A(f"v_sqrt_f32 {v(Q0)}, {v(Q0)}")
        A("s_nop 0")
        A(f"v_cvt_pk_bf16_f32 {v(Q0)}, {v(Q0)}, {v(Q0)}")
        A(f"v_and_b32 {v(Q0)}, 0xffff0000, {v(Q0)}")
        A(f"v_rcp_f32 {v(Q0)}, {v(Q0)}")
        A("s_nop 0")
        A(f"v_mul_f32 {v(C0)}, {s(sA)}, {v(Q0)}")
        A(f"v_mul_f32_e64 {v(C0+1)}, -{v(S0)}, {v(C0)}")
        if A.pc % 8: A("s_nop 0")
        for i0 in range(0, 48, 4):
            for i in range(i0, i0+4):
                A(f"v_pk_fma_f32 {v(Y0+2*i,2)}, {v(Y0+2*i,2)}, {v(C0,2)}, {v(C0,2)} op_sel:[0,0,1] op_sel_hi:[1,0,1]")
            for i in range(i0, i0+4):
                A(f"v_cvt_pk_bf16_f32 {v(T0+i%4)}, {v(Y0+2*i)}, {v(Y0+2*i+1)}")
            for i in range(i0, i0+4):
                A(f"v_accvgpr_write_b32 {a(rt*48+i)}, {v(T0+i%4)}")
    A.wait_vm(lambda t: t == ('w', 1))
    A.wait_lg(lambda t: True)
    A("s_barrier")
    stamp(A, 1, SW, 1, 10)
    A.vm = [('w', 1)] + ([] if OPT['nost'] else ['st']*4) + [('w', 2)]*6
    if OPT['nodma']: A.vm = []

    YB, TB, PB, SB_ = 16, 80, 144, 176
    AF = 192
    Yr = lambda u: YB + 16*(u % 4)
    Tr = lambda u: TB + 16*(u % 4)
    Pr = lambda c: PB + 16*(c % 2)
    Sr = lambda u: SB_ + 4*(u % 2)
    NU = 96
    def dsread(gb, i):
        u, kb = divmod(gb, 3)
        c, ht = divmod(u, 2)
        off = (c % 4)*24576 + (ht*12 + kb*4 + i)*1024
        base = vL16
        if off >= 2*24576: base, off = vL16b, off - 2*24576
        return (f"ds_read_b128 {a(AF + 16*(gb % 2) + 4*i, 4)}, {v(base)} offset:{off}", ('a', gb))
    for i in range(4): A.lds(*dsread(0, i))
    A.wait_lg(lambda t: True)
    if A.pc % 8: A("s_nop 0")
    blocks = []
    B = A
    for it in range(13):
        start = len(A.lines)
        for p in range(it*8, min(it*8+8, NU+3)):
            has_m = p < NU
            trans = []
            if p-1 < NU: trans += [f"v_exp_f32 {v(Tr(p-1)+i)}, {v(Tr(p-1)+i)}" for i in range(16)]
            if p-2 < NU: trans += [f"v_rcp_f32 {v(Tr(p-2)+i)}, {v(Tr(p-2)+i)}" for i in range(16)]
            plain = []
            dsadd = None
            if p-3 < NU:
                u = p-3; c, ht = divmod(u, 2); T = Tr(u); S_ = Sr(u)
                cv = [f"v_cvt_pk_bf16_f32 {v(Pr(c)+4*rt+2*ht+d)}, {v(T+4*rt+2*d)}, {v(T+4*rt+2*d+1)}" for rt in range(4) for d in range(2)]
                dp = [f"v_add_f32_dpp {v(S_)}, {v(S_)}, {v(S_)} row_ror:8 row_mask:0xf bank_mask:0x3",
                      f"v_add_f32_dpp {v(S_+1)}, {v(S_+1)}, {v(S_+1)} row_ror:8 row_mask:0xf bank_mask:0x3",
                      f"v_add_f32_dpp {v(S_)}, {v(S_+2)}, {v(S_+2)} row_ror:8 row_mask:0xf bank_mask:0xc",
                      f"v_add_f32_dpp {v(S_+1)}, {v(S_+3)}, {v(S_+3)} row_ror:8 row_mask:0xf bank_mask:0xc",
                      f"v_add_f32_dpp {v(S_)}, {v(S_)}, {v(S_)} row_shl:4 row_mask:0xf bank_mask:0x5",
                      f"v_add_f32_dpp {v(S_)}, {v(S_+1)}, {v(S_+1)} row_shr:4 row_mask:0xf bank_mask:0xa"]
                dp += [f"v_add_f32_dpp {v(S_)}, {v(S_)}, {v(S_)} quad_perm:[2,3,0,1] row_mask:0xf bank_mask:0xf",
                       f"v_add_f32_dpp {v(S_)}, {v(S_)}, {v(S_)} quad_perm:[1,0,3,2] row_mask:0xf bank_mask:0xf"]
                plain = dp[0:4] + cv[0:2] + dp[4:6] + cv[2:4] + dp[6:7] + cv[4:6] + dp[7:8] + cv[6:8]
                dsadd = f"ds_write_b32 {v(vSUMA)}, {v(S_)} offset:{(p % 8)*64}"
            stores = []
            if True:
                c, hf = divmod(p-4, 2)
                if c < 48:
                    stores = [f"buffer_store_dwordx4 {v(Pr(c)+4*rt,4)}, {v(vL16)}, {s(SH,4)}, {s(sH4+rt)} offen {OPT['hpol']}" for rt in (2*hf, 2*hf+1)]
            if p == NU+2:
                stores += [f"buffer_store_dwordx4 {v(Pr(47)+4*rt,4)}, {v(vL16)}, {s(SH,4)}, {s(sH4+rt)} offen {OPT['hpol']}" for rt in (2, 3)]
            k = p // 2
            dm = dma(k+3, p % 2) if has_m else None
            scal = []
            if p % 8 == 4: scal.append(f"s_mov_b32 {s(SH+2)}, {48*16384:#x}")
            if True:
                for rt in (2*((p-5) % 2), 2*((p-5) % 2)+1): scal.append(f"s_add_u32 {s(sH4+rt)}, {s(sH4+rt)}, {16384:#x}")
            if has_m: scal += dma((p-1)//2+3, (p-1) % 2)[2]
            if dm: scal += dm[0]
            lastp = (p % 8 == 7)
            if lastp: scal += [f"s_sub_u32 {s(sCNT)}, {s(sCNT)}, 1", f"s_cmp_lg_u32 {s(sCNT)}, 0"]
            if has_m:
                gap = 0
                for kb in range(3):
                    gb = p*3 + kb
                    seq = [(rt, ks if rt % 2 == 0 else 3-ks) for rt in range(4) for ks in range(4)]
                    if kb == 0: A.wait_lg(lambda t: t == ('a', gb))
                    for n, (rt, kk) in enumerate(seq):
                        D = v(Yr(p)+4*rt, 4)
                        Cc = '0' if (kb == 0 and n % 4 == 0) else D
                        A(f"v_mfma_f32_16x16x32_bf16 {D}, {a(AF+16*(gb%2)+4*kk,4)}, {a(rt*48+(kb*4+kk)*4,4)}, {Cc}")
                        if gap == 47: break
                        if n == 15: A.wait_lg(lambda t: t == ('a', gb+1))
                        elif gap == 46:
                            A.wait_lg(lambda t: t == ('a', gb+1))
                        elif scal and n % 2 == 0: A(scal.pop(0))
                        if n in (1, 3, 5, 7):
                            A.lds(*dsread(gb+1, n//2))
                            if plain: A(plain.pop(0))
                        elif gap == 41 and plain:
                            while len(plain) > 2: A(plain.pop(0))
                        elif gap == 43 and plain:
                            while plain: A(plain.pop(0))
                        elif gap == 45:
                            if dsadd: A.lds(dsadd, 's'); dsadd = None
                            if lastp: A(f"v_add_u32 {v(vSUMA)}, 512, {v(vSUMA)}")
                        elif trans: A(trans.pop(0))
                        gap += 1
                assert not trans and not plain and not dsadd and not scal, (p, trans, plain, scal)
            else:
                for l in scal: A(l)
                for l in trans: A(l)
                for i, l in enumerate(plain):
                    A(l)
                if dsadd: A.lds(dsadd, 's')
            if p % 2 == 0 and has_m:
                A.wait_vm(lambda t: t == ('w', k+1))
                A("s_barrier")
            burst = []
            dl = list(dm[1]) if dm else []
            st = list(stores)
            while st or dl:
                if st: burst.append((st.pop(0), 'st'))
                if dl: burst.append((dl.pop(0), ('w', k+3)))
            if A.pc % 8: A("s_nop 0")
            for l, tg in burst:
                if OPT['nost'] and tg == 'st': continue
                if OPT['nodma'] and tg != 'st': continue
                A.vmem(l, tg)
            if p-2 < NU:
                u = p-2; T = Tr(u); Y = Yr(u); S_ = Sr(u)
                for i in range(0, 16, 2): A(f"v_pk_mul_f32 {v(T+i,2)}, {v(T+i,2)}, {v(Y+i,2)}")
            pb = []
            if p-1 < NU:
                T = Tr(p-1)
                pb = [f"v_pk_fma_f32 {v(T+i,2)}, {v(T+i,2)}, {s(sA,2)}, {s(sA,2)}" for i in range(0, 16, 2)]
            pq = []
            if p-2 < NU:
                u = p-2; T = Tr(u); S_ = Sr(u)
                for rt in range(4):
                    for d in (0, 2):
                        if rt == 0: pq.append(f"v_pk_mul_f32 {v(S_+d,2)}, {v(T+d,2)}, {v(T+d,2)}")
                        else: pq.append(f"v_pk_fma_f32 {v(S_+d,2)}, {v(T+4*rt+d,2)}, {v(T+4*rt+d,2)}, {v(S_+d,2)}")
            while pb or pq:
                if pq: A(pq.pop(0))
                if pb: A(pb.pop(0))
            if has_m:
                T = Tr(p); Y = Yr(p)
                for i in range(0, 16, 2): A(f"v_pk_fma_f32 {v(T+i,2)}, {v(Y+i,2)}, {v(Y+i,2)}, {s(sK,2)}")
                for i in range(0, 16, 2): A(f"v_pk_mul_f32 {v(T+i,2)}, {v(T+i,2)}, {v(Y+i,2)} neg_lo:[1,0] neg_hi:[1,0]")
            if lastp:
                A.lines.append('@LOOPBR'); A.pc += 4
                A("s_nop 0")
        blk = A.lines[start:]
        if OPT['drop']:
            import re
            blk = [l for l in blk if not re.match(OPT['drop'], l)]
        blocks.append(blk)
        del A.lines[start:]
    A.pc = 0
    roll(A, blocks, 'k1', sCNT)
    stamp(A, 2, SW, 1, 10)
    A("s_waitcnt lgkmcnt(0)")
    A("s_barrier")
    A("v_lshlrev_b32 v9, 2, v0")
    A(f"v_add_u32 v9, {LDS_SUM:#x}, v9")
    for q in range(6):
        for w in range(4): A(f"ds_read_b32 {v(16+4*q+w)}, v9 offset:{w*6144 + q*1024}")
    A("v_and_b32 v10, 0xe3, v0")
    A("v_bfe_u32 v11, v0, 2, 2")
    A("v_lshl_add_u32 v10, v11, 3, v10")
    A("v_bfe_u32 v11, v0, 4, 1")
    A("v_lshl_add_u32 v10, v11, 2, v10")
    A("v_lshlrev_b32 v10, 2, v10")
    A(f"s_and_b32 s25, s2, {NREP-1}")
    A("s_mul_i32 s25, s25, 6144")
    A(f"s_add_u32 s25, s25, {SUMS:#x}")
    A("s_add_u32 s26, s25, 3072")
    for q in range(6):
        A(f"s_waitcnt lgkmcnt({min(15, 4*(5-q))})")
        r = 16+4*q
        A(f"v_add_f32 {v(r)}, {v(r)}, {v(r+1)}")
        A(f"v_add_f32 {v(r+2)}, {v(r+2)}, {v(r+3)}")
        A(f"v_add_f32 {v(r)}, {v(r)}, {v(r+2)}")
        A(f"buffer_atomic_add_f32 {v(r)}, v10, {s(SW,4)}, {'s25' if q < 3 else 's26'} offen offset:{(q%3)*1024}")
    if OPT['stamps']:
        A("s_waitcnt vmcnt(0)")
        stamp(A, 3, SW, 1, 10)
    A.label("L_k1_end")
    A("s_endpgm")
    return A.text(), LDS_SUM + 24576


def gen_k3():
    A = Asm()
    SX, SW, SO = 4, 8, 12
    sWAVE, sWOFF, sHOFF, sM0B, sXO = 16, 17, 18, 19, 20
    vL16, vLb, vLc, vX = 112, 113, 114, 115
    BS, AR, XF, SEL = 0, 64, 96, 104
    def acc(t, rt): return (a(16*t + 4*rt, 4) if t < 16 else v(128 + 16*(t-16) + 4*rt, 4))
    A("s_cmp_ge_u32 s2, 256")
    A("s_cbranch_scc1 L_k3_end")
    A("s_load_dwordx2 s[4:5], s[0:1], 0")
    A("s_load_dwordx2 s[12:13], s[0:1], 48")
    A("s_load_dwordx2 s[8:9], s[0:1], 64")
    A("v_lshrrev_b32 v1, 6, v0")
    A("v_and_b32 v6, 63, v0")
    A(f"v_readfirstlane_b32 {s(sWAVE)}, v1")
    A(f"v_lshlrev_b32 {v(vL16)}, 4, v6")
    A(f"v_add_u32 {v(vLb)}, {49152:#x}, {v(vL16)}")
    A(f"v_add_u32 {v(vLc)}, {2*49152:#x}, {v(vL16)}")
    A("v_lshrrev_b32 v7, 4, v6")
    A("v_and_b32 v8, 15, v6")
    A(f"v_mul_u32_u24 {v(vX)}, 768, v8")
    A(f"v_lshl_add_u32 {v(vX)}, v7, 4, {v(vX)}")
    A("v_lshlrev_b32 v116, 5, v7")
    A("s_lshl_b32 s25, s2, 2")
    A(f"s_add_u32 s25, s25, {s(sWAVE)}")
    A(f"s_mul_i32 {s(sXO)}, s25, {64*768}")
    for rt in range(1, 4): A(f"s_add_u32 {s(sXO+rt)}, {s(sXO)}, {rt*16*768}")
    A(f"s_mul_i32 {s(sHOFF)}, s2, {HSTR:#x}")
    A(f"s_lshl_b32 s27, {s(sWAVE)}, 10")
    A(f"s_add_u32 {s(sHOFF)}, {s(sHOFF)}, s27")
    A(f"s_mul_i32 {s(sM0B)}, {s(sWAVE)}, 12288")
    A(f"s_add_u32 {s(sWOFF)}, {s(sM0B)}, {W2P:#x}")
    A(f"s_mov_b32 s26, {BIAS:#x}")
    A("v_lshrrev_b32 v9, 2, v8")
    A("v_cmp_eq_u32 vcc, v9, v7")
    A("v_and_b32 v10, 1, v8")
    A("v_lshlrev_b32 v10, 4, v10")
    A("v_mov_b32 v11, 0x3f80")
    A("v_lshlrev_b32 v11, v10, v11")
    A("v_cndmask_b32 v11, 0, v11, vcc")
    A("v_and_b32 v10, 2, v8")
    A("v_cmp_eq_u32 vcc, 0, v10")
    for i in (0, 1, 4, 5): A(f"v_mov_b32 {v(SEL+i)}, 0")
    A(f"v_cndmask_b32 {v(SEL+2)}, 0, v11, vcc")
    A(f"v_sub_u32 {v(SEL+3)}, v11, {v(SEL+2)}")
    A("s_waitcnt lgkmcnt(0)")
    srd(A, SX, 4, X_BYTES)
    srd(A, SW, 8, WS_BYTES)
    srd(A, SO, 12, X_BYTES)
    stamp(A, 0, SW, 3, 120)
    if OPT['pf'] == 1: code_prefetch(A, 'k3', 120, 40, 0, 4)
    if OPT['pf'] >= 2:
        code_prefetch(A, 'k3', 120, 40, 0, 1 if OPT['pf'] == 2 else 4)
        A("v_lshlrev_b32 v122, 6, v6")
        A("v_mov_b32 v119, s41")
        A("v_add_co_u32 v118, vcc, s40, v122")
        A("s_nop 1")
        A("v_addc_co_u32 v119, vcc, 0, v119, vcc")
    NB = 24
    def dma_ops(kb):
        ops = []
        for i in range(12):
            pre = []
            if i % 4 == 0:
                if OPT['samew'] and i == 0 and kb and kb % 2 == 0: pre.append(f"s_sub_u32 {s(sWOFF)}, {s(sWOFF)}, {49152+8192:#x}")
                elif i or kb: pre.append(f"s_add_u32 {s(sWOFF)}, {s(sWOFF)}, {4096 if i else 49152-8192:#x}")
                pre.append(f"s_add_u32 m0, {s(sM0B)}, {(kb % 3)*49152 + i*1024:#x}")
            ops.append((pre, f"buffer_load_dwordx4 {v(vL16)}, {s(SW,4)}, {s(sWOFF)} offen offset:{(i%4)*1024} lds", ('w', kb)))
        return ops
    def h_ops(kb):
        ops = []
        for k2 in range(2):
            for rt in range(4):
                pre = []
                if kb or k2 or rt: pre.append(f"s_add_u32 {s(sHOFF)}, {s(sHOFF)}, {1 << 12:#x}")
                ops.append((pre, f"buffer_load_dwordx4 {v(BS + 32*(kb%2) + (k2*4+rt)*4, 4)}, {v(vL16)}, {s(SW,4)}, {s(sHOFF)} offen", ('h', kb)))
        return ops
    xlist = [(u, rt) for u in range(12) for rt in range(4)]
    xsched = {kb: [] for kb in range(NB)}
    gi = 0
    for kb in range(1, 23):
        xsched[kb].append(gi); gi += 1
    xsched[10].append(gi); gi += 1
    xsched[16].append(gi); gi += 1
    order = []
    for kb in range(NB):
        n = len(xsched[kb])
        for j in range(n): order.append((kb, 13 if n == 1 else (3, 17)[j]))
    assert len(order) == 24
    def x_ops(gidx):
        ops = []
        for j in range(2):
            u, rt = xlist[2*gidx+j]
            ops.append(([], f"buffer_load_dwordx4 {v(XF+4*j,4)}, {v(vX)}, {s(SX,4)}, {s(sXO+rt)} offen offset:{u*64} {OPT['x3pol']}", ('x', gidx)))
        return ops
    def now(ops):
        for pre, l, tg in ops:
            for p_ in pre: A(p_)
            if pre: A("s_nop 0")
            A.vmem(l, tg)
    now(dma_ops(0))
    now(h_ops(0))
    for t in range(24):
        A.vmem(f"buffer_load_dwordx4 {acc(t,0)}, v116, {s(SW,4)}, s26 offen offset:{(t>>1)*128 + (t&1)*16}", ('b', t))
    A.wait_vm(lambda t: t == ('w', 0))
    A("s_barrier")
    bases = [vL16, vLb, vLc]
    def dsread(gt, k2):
        kb, t = divmod(gt, 24)
        return (f"ds_read_b128 {v(AR + 8*(gt % 4) + 4*k2, 4)}, {v(bases[kb % 3])} offset:{(t*2+k2)*1024}", ('a', gt))
    for gt in range(3):
        for k2 in range(2): A.lds(*dsread(gt, k2))
    vq = dma_ops(1) + x_ops(0)
    A.wait_vm(lambda t: t == ('b', 23))
    A.wait_lg(lambda t: t == ('a', 0))
    stamp(A, 1, SW, 3, 120)
    epi = []
    ET = BS
    ecount = 0
    def epi_ops(u):
        nonlocal ecount
        ops = []
        for rt in range(4):
            P = ET + 16 + 4*(ecount % 4)
            for e in range(2):
                t = 2*u + e
                if t < 16:
                    T = ET + 8*(ecount % 2) + 4*e
                    for r in range(4): ops.append(('v', f"v_accvgpr_read_b32 {v(T+r)}, {a(16*t+4*rt+r)}"))
                else:
                    T = 128 + 16*(t-16) + 4*rt
                for d in range(2): ops.append(('v', f"v_cvt_pk_bf16_f32 {v(P+2*e+d)}, {v(T+2*d)}, {v(T+2*d+1)}"))
            ops.append(('s', f"buffer_store_dwordx4 {v(P,4)}, {v(vX)}, {s(SO,4)}, {s(sXO+rt)} offen offset:{u*64} {OPT['opol']}"))
            ecount += 1
        return ops
    xnext = 0
    for kb in range(NB):
        if kb + 1 < NB: vq = h_ops(kb+1) + vq
        A.label(f"L_k3_b{kb}")
        if OPT['stamps']: A(f"s_memtime {s(42+2*kb,2)}")
        for t in range(24):
            gt = kb*24 + t
            rts = (3, 2, 1, 0) if kb == 0 else (0, 1, 2, 3)
            seq = [(rt, k2 if i % 2 == 0 else 1-k2, k2) for i, rt in enumerate(rts) for k2 in range(2)]
            mf = []
            for (rt, kk, first) in seq:
                D = acc(t, rt)
                Cc = acc(t, 0) if (kb == 0 and first == 0) else D
                mf.append(f"v_mfma_f32_16x16x32_bf16 {D}, {v(AR+8*(gt%4)+4*kk,4)}, {v(BS+32*(kb%2)+(kk*4+rt)*4,4)}, {Cc}")
            xg = None
            if xnext < 24 and order[xnext] == (kb, t):
                xg = xnext; xnext += 1
                for j in range(2):
                    u, rt = xlist[2*xg+j]
                    for e in range(2):
                        D = acc(2*u+e, rt)
                        mf.append(f"v_mfma_f32_16x16x32_bf16 {D}, {v(SEL+2-2*e,4)}, {v(XF+4*j,4)}, {D}")
            if kb == NB-1 and t >= 3 and t % 2 == 1: epi += epi_ops((t-3)//2)
            scal = []
            for n, l in enumerate(mf):
                A(l)
                slots = 2
                if n == 7 and xg is not None:
                    assert not any(o[2] == ('x', xg) for o in vq)
                    A.wait_vm(lambda tg: tg == ('x', xg))
                if n == len(mf)-1:
                    w1 = A.wait_lg_str(lambda tg: tg == ('a', gt+1))
                    w2 = A.wait_vm_str(lambda tg: tg == ('h', kb+1)) if t == 23 else None
                    if w1 and w2: A(w2 + ' ' + w1.split()[1])
                    elif w1 or w2: A(w1 or w2)
                    if xg is not None and xg+1 < 24: vq = x_ops(xg+1) + vq
                if t == 20 and n == 6 and kb+1 < NB:
                    assert not any(o[2] == ('w', kb+1) for o in vq), kb
                    A.wait_vm(lambda tg: tg == ('w', kb+1))
                    A("s_barrier")
                    if kb+2 < NB: vq = vq + dma_ops(kb+2)
                    slots = 0
                if n in (0, 1) and gt+3 < NB*24:
                    A.lds(*dsread(gt+3, n)); slots -= 1
                elif n in (2, 3, 5) and vq and vq[0][0]:
                    A(vq[0][0].pop(0))
                elif n in (4, 6) and slots and vq and not vq[0][0] and (n == 4 or len(vq) > 18 - t):
                    _, l2, tg = vq.pop(0)
                    if not ((OPT['nodma'] and tg[0] == 'w') or (OPT['noh'] and tg[0] == 'h') or (OPT['nox'] and tg[0] == 'x')):
                        A.vmem(l2, tg)
                    slots = 0
                if OPT['pf'] >= 2 and t == 22 and 2 <= kb <= 21:
                    tgt = kb + 3
                    prev = 'k3_kernel' if kb == 2 else (f"L_k3_b{tgt-1}")
                    cur = f"L_k3_b{tgt}" if tgt < NB else "L_k3_pfend"
                    if n == 2: A(f"v_add_co_u32 v118, vcc, {cur}-{prev}, v118"); A.pc += 4
                    if n == 5: A("v_addc_co_u32 v119, vcc, 0, v119, vcc")
                    if n == 7: A.vmem("global_load_dword v117, v[118:119], off", 'pf')
                while slots and epi:
                    if epi[0][0] == 's':
                        if slots == 2: A.vmem(epi.pop(0)[1], 'o')
                        slots = 0
                    else:
                        A(epi.pop(0)[1]); slots -= 1
    assert not vq
    stamp(A, 2, SW, 3, 120)
    epi += epi_ops(11)
    A("s_nop 7")
    for kind, l in epi:
        A(l)
    if OPT['stamps']:
        A("s_waitcnt vmcnt(0)")
        stamp(A, 3, SW, 3, 120)
        A("s_add_u32 s94, s94, 8")
        A("s_mov_b64 exec, 1")
        for kb in range(24):
            A(f"v_mov_b32 v124, {s(42+2*kb)}")
            A(f"buffer_store_dword v124, v122, {s(SW,4)}, s94 offen offset:{4*kb}")
    A.label("L_k3_end")
    A(".set L_k3_pfend, L_k3_end-4096")
    A("s_endpgm")
    return A.text(), 3*49152


def main():
    k1, lds1 = gen_k1()
    k3, lds3 = gen_k3()
    head = open('standalone__modern_conv_block_slak__vision.s.ref').read().split('; Override launch')[0]
    out = head
    out += "; @launch kernel=prep_kernel grid=(288,1,1) block=(256,1,1) lds=0\n"
    out += f"; @launch kernel=k1_kernel grid=(256,1,1) block=(256,1,1) lds={lds1}\n"
    out += "; @launch kernel=scale_kernel grid=(288,1,1) block=(256,1,1) lds=8192\n"
    for i in range(OPT['empty']): out += "; @launch kernel=empty_kernel grid=(256,1,1) block=(256,1,1) lds=0\n"
    out += f"; @launch kernel=k3_kernel grid=(256,1,1) block=(256,1,1) lds={lds3}\n"
    out += '.amdgcn_target "amdgcn-amd-amdhsa--gfx950"\n'
    out += kernel_text('prep_kernel', gen_prep())
    out += kernel_text('k1_kernel', k1)
    out += kernel_text('scale_kernel', gen_scale())
    out += kernel_text('k3_kernel', k3)
    if OPT['empty']: out += kernel_text('empty_kernel', " s_endpgm\n")
    out += '.section .rodata,"a"\n'
    if OPT['empty']: out += descriptor('empty_kernel', 8, 8)
    out += descriptor('prep_kernel', 24, 24)
    out += descriptor('k1_kernel', 512, 256)
    out += descriptor('scale_kernel', 32 + 6*NREP + 16, 32 + 6*NREP + 16)
    out += descriptor('k3_kernel', 512, 256)
    open(sys.argv[1], 'w').write(out)
    print(f"wrote {sys.argv[1]}: {len(out)} bytes, {out.count(chr(10))} lines")

main()
```

```python
import sys, math, re
from asmlib import *

OPT = dict(xpol='', hpol='sc1', hlpol='', wpol='sc1', opol='sc1', stamps=0, R=4, skew=5, drop='', drop3='', sleep=4, leak='')
for arg in sys.argv[2:]:
    k, val = arg.split('=')
    OPT[k] = type(OPT[k])(val.replace('+', ' '))
NREP = OPT['R']
NAME = 'standalone__modern_conv_block_slak__vision_kernel'

WS_BYTES = 0x10000000
X_BYTES = 65536 * 768
W_BYTES = 384 * 1536 * 2
HSTR = 0xC3000
W1P = 0xC400000
W2P = 0xC520000
SUMS = 0xC640000
STAMP = 0xC800000
SPIN_MAX = 1 << 16

KG = 2.0 * math.sqrt(2.0 / math.pi) * math.log2(math.e)
A_SC = (KG * 0.044715) ** (1.0 / 3.0)
K_SC = KG / A_SC

SX, SW, ST, SH, SD, SP, SO, SDBG, SG, SBB = 4, 8, 12, 32, 36, 40, 44, 48, 52, 56
sWAVE, sWOFF, sGW, sCNT, sK, sA, sM0B = 16, 17, 18, 19, 20, 22, 24
sT0, sT1, sT2 = 25, 26, 27
sH4 = 28
sXO = 60
KA = 64
STB = 66

LDS_SUM = 4 * 24576 + 256
LDS_TAB = 3 * 49152
LDS_RED = LDS_TAB + 12288
LDS_BYTES = LDS_RED + 64

nstamp = [0]
LK = {}
def stamp(A, label):
    if OPT['leak']:
        if label in OPT['leak'].split(','):
            r = 96 + 2*OPT['leak'].split(',').index(label)
            A(f"s_memrealtime {s(r, 2)}")
        return
    if label == 'entry': return
    if not OPT['stamps']: return
    i = nstamp[0]; nstamp[0] += 1
    A(f"s_memrealtime {s(STB + 4*i, 2)}")
    A(f"s_memtime {s(STB + 4*i + 2, 2)}")
    assert STB + 4*i + 3 <= 101


def srd(A, d, src, nbytes, add=None):
    if add is None:
        A(f"s_mov_b32 {s(d)}, {s(src)}")
        A(f"s_mov_b32 {s(d+1)}, {s(src+1)}")
    else:
        A(f"s_add_u32 {s(d)}, {s(src)}, {add}")
        A(f"s_addc_u32 {s(d+1)}, {s(src+1)}, 0")
    A(f"s_mov_b32 {s(d+2)}, {nbytes:#x}")
    A(f"s_mov_b32 {s(d+3)}, 0x20000")


def xlane_sum(A, regs, tmps):
    for op in ('v_permlane16_swap_b32', 'v_permlane32_swap_b32'):
        for r, t in zip(regs, tmps): A(f"v_mov_b32 {v(t)}, {v(r)}")
        A("s_nop 1")
        for r, t in zip(regs, tmps): A(f"{op} {v(r)}, {v(t)}")
        A("s_nop 1")
        for r, t in zip(regs, tmps): A(f"v_add_f32 {v(r)}, {v(r)}, {v(t)}")


def align8(A):
    if A.pc % 8: A("s_nop 0")


def poll(A, name, vaddr, vdst, off, first_issued):
    ld = f"buffer_load_dword {v(vdst)}, {v(vaddr)}, {s(SDBG,4)}, 0 offen offset:{off} sc1"
    A(f"s_mov_b32 {s(sT0)}, {SPIN_MAX}")
    if first_issued:
        A.wait_vm(lambda t: t == name)
        A(f"v_cmp_gt_u32 vcc, 64, {v(vdst)}")
        A("s_nop 4")
        A(f"s_cbranch_vccz L_{name}_ok")
    A.label(f"L_{name}_spin")
    if OPT['sleep']: A(f"s_sleep {OPT['sleep']}")
    A(ld)
    A(f"s_sub_u32 {s(sT0)}, {s(sT0)}, 1")
    A("s_waitcnt vmcnt(0)")
    A(f"s_cbranch_scc1 L_{name}_ok")
    A(f"v_cmp_gt_u32 vcc, 64, {v(vdst)}")
    A("s_nop 4")
    A(f"s_cbranch_vccnz L_{name}_spin")
    A.label(f"L_{name}_ok")
    return ld


def signal(A, name, vt, off):
    A(f"s_cmp_lg_u32 {s(sWAVE)}, 0")
    A(f"s_cbranch_scc1 L_{name}_nosig")
    A(f"s_lshr_b32 {s(sT0)}, s2, 3")
    A(f"s_and_b32 {s(sT0)}, {s(sT0)}, 3")
    A(f"s_lshl_b32 {s(sT0)}, {s(sT0)}, 6")
    A(f"v_mov_b32 {v(vt)}, 1")
    A(f"v_mov_b32 {v(vt+1)}, {s(sT0)}")
    A("s_mov_b64 exec, 1")
    A(f"buffer_atomic_add {v(vt)}, {v(vt+1)}, {s(SDBG,4)}, 0 offen offset:{off} sc1")
    A("s_mov_b64 exec, -1")
    A.label(f"L_{name}_nosig")


def gen():
    A = Asm()
    A("s_cmp_ge_u32 s2, 256")
    A("s_cbranch_scc1 L_exit_early")
    stamp(A, 'entry')
    A(f"s_load_dwordx16 {s(KA,16)}, s[0:1], 0")
    A(f"s_load_dwordx2 {s(KA+16,2)}, s[0:1], 64")
    A("s_getpc_b64 s[26:27]")
    A.label("L_pc")
    A(f"s_sub_u32 s26, s26, L_pc-{NAME}"); A.pc += 4
    A("s_subb_u32 s27, s27, 0")
    NPF = 6
    for i in range(NPF):
        t = 16 + 4*i
        A(f"v_lshlrev_b32 {v(t+2)}, 6, v0")
        if i: A(f"v_add_u32 {v(t+2)}, {i*16384:#x}, {v(t+2)}")
        A(f"v_min_u32 {v(t+2)}, L_end-{NAME}, {v(t+2)}"); A.pc += 4
        A(f"v_mov_b32 {v(t+1)}, s27")
        A(f"v_add_co_u32 {v(t)}, vcc, s26, {v(t+2)}")
        A("s_nop 1")
        A(f"v_addc_co_u32 {v(t+1)}, vcc, 0, {v(t+1)}, vcc")
        A.vmem(f"global_load_dword {v(t+3)}, {v(t,2)}, off", 'pf')
    vL16, vXO = 0, 1
    A("v_lshrrev_b32 v2, 6, v0")
    A("v_and_b32 v3, 63, v0")
    A(f"v_readfirstlane_b32 {s(sWAVE)}, v2")
    A(f"v_lshlrev_b32 {v(vL16)}, 4, v3")
    A("v_lshrrev_b32 v4, 4, v3")
    A("v_and_b32 v5, 15, v3")
    A(f"v_mul_u32_u24 {v(vXO)}, 768, v5")
    A(f"v_lshl_add_u32 {v(vXO)}, v4, 4, {v(vXO)}")
    A("v_lshlrev_b32 v6, 4, v4")
    A(f"s_lshl_b32 {s(sGW)}, s2, 2")
    A(f"s_add_u32 {s(sGW)}, {s(sGW)}, {s(sWAVE)}")
    A(f"s_mul_i32 {s(sXO)}, {s(sGW)}, {64*768}")
    for rt in range(1, 4): A(f"s_add_u32 {s(sXO+rt)}, {s(sXO)}, {rt*16*768}")
    sSEL, sTASK, sVAL, sSTR, sSRC, sDST, sD1, sD2 = 82, 83, 84, 85, 86, 87, 88, 89
    A(f"s_mov_b32 {s(sTASK)}, s2")
    A(f"s_mov_b32 {s(sSEL)}, {s(sWAVE)}")
    A(f"s_mov_b32 {s(sVAL)}, {W_BYTES:#x}")
    A(f"s_cmp_lt_u32 {s(sWAVE)}, 2")
    A("s_cbranch_scc1 L_task_ok")
    A(f"s_lshr_b32 {s(sTASK)}, s2, 3")
    A(f"s_add_u32 {s(sTASK)}, {s(sTASK)}, 256")
    A(f"s_bfe_u32 {s(sSEL)}, s2, 0x10002")
    A(f"s_and_b32 {s(sT0)}, s2, 3")
    A(f"s_sub_u32 {s(sT1)}, {s(sWAVE)}, 2")
    A(f"s_or_b32 {s(sT0)}, {s(sT0)}, {s(sT1)}")
    A(f"s_cmp_eq_u32 {s(sT0)}, 0")
    A(f"s_cselect_b32 {s(sVAL)}, {s(sVAL)}, 0")
    A.label("L_task_ok")
    A(f"s_cmp_eq_u32 {s(sSEL)}, 0")
    A("s_cbranch_scc0 L_task_w2")
    A(f"s_mul_hi_u32 {s(sT0)}, {s(sTASK)}, 0x15555556")
    A(f"s_mul_i32 {s(sT1)}, {s(sT0)}, 12")
    A(f"s_sub_u32 {s(sT1)}, {s(sTASK)}, {s(sT1)}")
    A(f"s_mov_b32 {s(sSTR)}, 3072")
    A(f"s_mul_i32 {s(sDST)}, {s(sT0)}, {2*24576}")
    A(f"s_lshl_b32 {s(sT2)}, {s(sT1)}, 10")
    A(f"s_add_u32 {s(sDST)}, {s(sDST)}, {s(sT2)}")
    A(f"s_mov_b32 {s(sD1)}, 12288")
    A(f"s_mov_b32 {s(sD2)}, 24576")
    A("s_branch L_task_j")
    A.label("L_task_w2")
    A(f"s_mul_hi_u32 {s(sT1)}, {s(sTASK)}, 0x2AAAAAAB")
    A(f"s_mul_i32 {s(sT0)}, {s(sT1)}, 6")
    A(f"s_sub_u32 {s(sT0)}, {s(sTASK)}, {s(sT0)}")
    A(f"s_mov_b32 {s(sSTR)}, 768")
    A(f"s_lshr_b32 {s(sT2)}, {s(sT1)}, 1")
    A(f"s_mul_i32 {s(sDST)}, {s(sT2)}, 49152")
    A(f"s_and_b32 {s(sT2)}, {s(sT1)}, 1")
    A(f"s_lshl_b32 {s(sT2)}, {s(sT2)}, 10")
    A(f"s_add_u32 {s(sDST)}, {s(sDST)}, {s(sT2)}")
    A(f"s_lshl_b32 {s(sT2)}, {s(sT0)}, 13")
    A(f"s_add_u32 {s(sDST)}, {s(sDST)}, {s(sT2)}")
    A(f"s_mov_b32 {s(sD1)}, 2048")
    A(f"s_mov_b32 {s(sD2)}, 4096")
    A.label("L_task_j")
    A(f"s_mul_i32 {s(sSRC)}, {s(sT1)}, {s(sSTR)}")
    A(f"s_lshl_b32 {s(sSRC)}, {s(sSRC)}, 5")
    A(f"s_lshl_b32 {s(sT0)}, {s(sT0)}, 7")
    A(f"s_add_u32 {s(sSRC)}, {s(sSRC)}, {s(sT0)}")
    A(f"s_lshl_b32 {s(sT0)}, {s(sSTR)}, 3")
    A(f"v_mul_lo_u32 v7, v4, {s(sT0)}")
    A("v_lshl_add_u32 v7, v5, 3, v7")
    A("s_waitcnt lgkmcnt(0)")
    A(f"s_cmp_eq_u32 {s(sSEL)}, 0")
    A(f"s_cselect_b32 {s(SP)}, {s(KA+4)}, {s(KA+6)}")
    A(f"s_cselect_b32 {s(SP+1)}, {s(KA+5)}, {s(KA+7)}")
    A(f"s_cselect_b32 {s(sT2)}, 0, {W2P-W1P:#x}")
    A(f"s_mov_b32 {s(SP+2)}, {s(sVAL)}")
    A(f"s_mov_b32 {s(SP+3)}, 0x20000")
    GA = 112
    for j in range(8):
        A.vmem(f"buffer_load_dwordx2 {v(GA+2*j,2)}, v7, {s(SP,4)}, {s(sSRC)} offen", 'ga')
        if j < 7: A(f"s_add_u32 {s(sSRC)}, {s(sSRC)}, {s(sSTR)}")
    srd(A, ST, KA+2, 768)
    srd(A, SX, KA+0, X_BYTES)
    DWL, DWH, Y0 = 16, 64, 112
    for ks in range(12):
        A.vmem(f"buffer_load_dwordx4 {v(DWH+4*ks,4)}, v6, {s(ST,4)}, 0 offen offset:{ks*64}", 'dw')
    def xraw(rt, i, n=1):
        if rt < 2: return a(rt*48+i, n)
        if rt == 2: return a(208+i, n)
        return v(208+i, n)
    def xload(rt, ks):
        A.vmem(f"buffer_load_dwordx4 {xraw(rt, ks*4, 4)}, {v(vXO)}, {s(SX,4)}, {s(sXO+rt)} offen offset:{ks*64} {OPT['xpol']}", ('x', rt, ks))
    for ks in range(12): xload(0, ks)
    srd(A, SW, KA+16, WS_BYTES)
    A(f"s_mul_i32 {s(sT0)}, s2, {HSTR:#x}")
    srd(A, SH, KA+16, 0, add=s(sT0))
    srd(A, SD, KA+16, W_BYTES, add=f"{W1P:#x}")
    srd(A, SO, KA+12, X_BYTES)
    srd(A, SDBG, KA+14, 256)
    srd(A, SG, KA+8, 3072)
    srd(A, SBB, KA+10, 3072)
    A(f"s_add_u32 {s(SP)}, {s(SD)}, {s(sT2)}")
    A(f"s_addc_u32 {s(SP+1)}, {s(SD+1)}, 0")
    srd(A, ST, KA+16, NREP*6144, add=f"{SUMS:#x}")
    stamp(A, 'start')
    A(f"s_lshl_b32 {s(sT0)}, {s(sWAVE)}, 10")
    for rt in range(4):
        A(f"s_sub_u32 {s(sH4+rt)}, {s(sT0)}, {(2 + rt//2)*16384 - (rt << 12):#x}")
    A(f"s_mul_i32 {s(sM0B)}, {s(sWAVE)}, 6144")
    A(f"s_mov_b32 {s(sWOFF)}, {s(sM0B)}")
    A(f"s_mov_b32 {s(sK)}, {f2u(K_SC):#x}")
    A(f"s_mov_b32 {s(sK+1)}, {f2u(K_SC):#x}")
    A(f"s_mov_b32 {s(sA)}, {f2u(A_SC):#x}")
    A(f"s_mov_b32 {s(sA+1)}, {f2u(A_SC):#x}")
    A("v_lshrrev_b32 v8, 3, v5")
    A("v_and_b32 v9, 1, v5")
    A("v_lshl_add_u32 v8, v8, 1, v9")
    A("v_lshlrev_b32 v8, 10, v8")
    A("v_lshl_add_u32 v8, v4, 8, v8")
    A("v_bfe_u32 v9, v5, 1, 2")
    A("v_lshl_add_u32 v8, v9, 6, v8")
    A(f"s_lshl_b32 {s(sT0)}, {s(sWAVE)}, 12")
    A(f"s_add_u32 {s(sT0)}, {s(sT0)}, {LDS_SUM:#x}")
    A(f"v_add_u32 v8, {s(sT0)}, v8")
    A(f"v_add_u32 v9, {s(sT0)}, {v(vL16)}")
    A(f"s_lshl_b32 {s(sT0)}, {s(sGW)}, 10")
    A(f"v_add_u32 v10, {s(sT0)}, {v(vL16)}")
    A(f"s_mov_b32 {s(sT0)}, 0x05040100")
    A(f"s_mov_b32 {s(sT1)}, 0x07060302")
    for i in range(4): A(f"v_mov_b32 {v(12+i)}, 0")
    A.wait_vm(lambda t: t == 'ga')
    PB_ = 128
    for i in range(4):
        for d in range(4):
            A(f"v_perm_b32 {v(PB_+4*i+d)}, {v(GA+2*(2*d+1)+(i>>1))}, {v(GA+2*(2*d)+(i>>1))}, {s(sT1 if i & 1 else sT0)}")
        A.lds(f"ds_write_b128 v8, {v(PB_+4*i,4)} offset:{16*i}", 'bw')
    A.wait_lg(lambda t: True)
    for f in range(4):
        A.lds(f"ds_read_b128 {v(144+4*f,4)}, v9 offset:{1024*f}", ('br', f))
    A.vmem(f"buffer_store_dwordx4 v[12:15], v10, {s(ST,4)}, 0 offen sc1", 'pub')
    A(f"s_add_u32 {s(sT0)}, {s(sDST)}, {s(sD1)}")
    A(f"s_add_u32 {s(sT1)}, {s(sDST)}, {s(sD2)}")
    A(f"s_add_u32 {s(sT2)}, {s(sT1)}, {s(sD1)}")
    for f, so in enumerate((sDST, sT0, sT1, sT2)):
        A.wait_lg(lambda t: t == ('br', f))
        A.vmem(f"buffer_store_dwordx4 {v(144+4*f,4)}, {v(vL16)}, {s(SP,4)}, {s(so)} offen sc1", 'pub')
    for ks in range(12): xload(1, ks)
    A.wait_vm(lambda t: t == 'dw')
    for i in range(48):
        A(f"v_and_b32 {v(DWL+i)}, 0xffff, {v(DWH+i)}")
        A(f"v_and_b32 {v(DWH+i)}, 0xffff0000, {v(DWH+i)}")

    def dma1(c, half):
        ld = [f"buffer_load_dwordx4 {v(vL16)}, {s(SD,4)}, {s(sWOFF)} offen offset:{i*1024} {OPT['wpol']} lds" for i in range(3)]
        m0 = [f"s_add_u32 m0, {s(sM0B)}, {(c % 4)*24576 + half*3072:#x}"]
        adv = [f"s_add_u32 {s(sWOFF)}, {s(sWOFF)}, {3072 if half == 0 else 24576-3072:#x}"]
        return m0, ld, adv
    def dma1_now(c, half):
        m0, ld, adv = dma1(c, half)
        A(m0[0]); A("s_nop 0")
        for l in ld: A.vmem(l, ('w', c))
        if (c, half) != (2, 1): A(adv[0])

    T0, S0, S1, Q0, Q1, C0 = 2, 6, 8, 10, 12, 14
    vPA, vPD = 14, 15
    for rt in range(4):
        extra = []
        if rt < 2: extra = [lambda ks=ks: xload(rt+2, ks) for ks in range(12)]
        if rt == 2:
            A(f"v_and_b32 {v(vPA)}, 48, {v(vL16)}")
            A(f"v_lshlrev_b32 {v(vPA)}, 2, {v(vPA)}")
            A.vmem(f"buffer_load_dword {v(vPD)}, {v(vPA)}, {s(SDBG,4)}, 0 offen sc1", 'pollA')
        for ks in range(12):
            A.wait_vm(lambda t: t == ('x', rt, ks))
            if rt < 3:
                for d in range(4): A(f"v_accvgpr_read_b32 {v(T0+d)}, {xraw(rt, ks*4+d)}")
            for d in range(4):
                i = ks*4 + d
                src = v(T0+d) if rt < 3 else xraw(rt, i)
                A(f"v_dot2_f32_bf16 {v(Y0+2*i)}, {src}, {v(DWL+i)}, 0")
                A(f"v_dot2_f32_bf16 {v(Y0+2*i+1)}, {src}, {v(DWH+i)}, 0")
            if extra: extra.pop(0)()
            if ks == 0:
                A("s_nop 2")
                A(f"v_pk_add_f32 {v(S0,2)}, {v(Y0,2)}, {v(Y0+4,2)}")
                A(f"v_pk_mul_f32 {v(Q0,2)}, {v(Y0,2)}, {v(Y0,2)}")
                A(f"v_pk_add_f32 {v(S1,2)}, {v(Y0+2,2)}, {v(Y0+6,2)}")
                A(f"v_pk_mul_f32 {v(Q1,2)}, {v(Y0+2,2)}, {v(Y0+2,2)}")
                A(f"v_pk_fma_f32 {v(Q0,2)}, {v(Y0+4,2)}, {v(Y0+4,2)}, {v(Q0,2)}")
                A(f"v_pk_fma_f32 {v(Q1,2)}, {v(Y0+6,2)}, {v(Y0+6,2)}, {v(Q1,2)}")
            else:
                for d in range(4):
                    y = Y0 + 2*(ks*4+d)
                    S_, Q_ = (S0, Q0) if d % 2 == 0 else (S1, Q1)
                    A(f"v_pk_add_f32 {v(S_,2)}, {v(S_,2)}, {v(y,2)}")
                    A(f"v_pk_fma_f32 {v(Q_,2)}, {v(y,2)}, {v(y,2)}, {v(Q_,2)}")
        if rt == 0:
            A.wait_vm(lambda t: t == 'pub')
            A("s_barrier")
            signal(A, 'sigA', T0, 0)
        if rt == 2:
            pass
        A(f"v_pk_add_f32 {v(S0,2)}, {v(S0,2)}, {v(S1,2)}")
        A(f"v_pk_add_f32 {v(Q0,2)}, {v(Q0,2)}, {v(Q1,2)}")
        A(f"v_add_f32 {v(S0)}, {v(S0)}, {v(S0+1)}")
        A(f"v_add_f32 {v(Q0)}, {v(Q0)}, {v(Q0+1)}")
        xlane_sum(A, (S0, Q0), (S1, Q1))
        A(f"v_mul_f32 {v(S0)}, {f2u(1.0/384):#x}, {v(S0)}")
        A(f"v_mul_f32 {v(Q0)}, {f2u(1.0/384):#x}, {v(Q0)}")
        A(f"v_fma_f32 {v(Q0)}, -{v(S0)}, {v(S0)}, {v(Q0)}")
        A(f"v_max_f32 {v(Q0)}, 0, {v(Q0)}")
        A(f"v_cvt_pk_bf16_f32 {v(S1)}, {v(S0)}, {v(Q0)}")
        A(f"v_lshlrev_b32 {v(S0)}, 16, {v(S1)}")
        A(f"v_and_b32 {v(Q0)}, 0xffff0000, {v(S1)}")
        A(f"v_add_f32 {v(Q0)}, {f2u(1e-5):#x}, {v(Q0)}")
        A(f"v_cvt_pk_bf16_f32 {v(Q0)}, {v(Q0)}, {v(Q0)}")
        A(f"v_and_b32 {v(Q0)}, 0xffff0000, {v(Q0)}")
        A(f"v_sqrt_f32 {v(Q0)}, {v(Q0)}")
        A("s_nop 0")
        A(f"v_cvt_pk_bf16_f32 {v(Q0)}, {v(Q0)}, {v(Q0)}")
        A(f"v_and_b32 {v(Q0)}, 0xffff0000, {v(Q0)}")
        A(f"v_rcp_f32 {v(Q0)}, {v(Q0)}")
        A("s_nop 0")
        A(f"v_mul_f32 {v(S1)}, {s(sA)}, {v(Q0)}")
        A(f"v_mul_f32_e64 {v(S1+1)}, -{v(S0)}, {v(S1)}")
        align8(A)
        for i0 in range(0, 48, 4):
            for i in range(i0, i0+4):
                A(f"v_pk_fma_f32 {v(Y0+2*i,2)}, {v(Y0+2*i,2)}, {v(S1,2)}, {v(S1,2)} op_sel:[0,0,1] op_sel_hi:[1,0,1]")
            for i in range(i0, i0+4):
                A(f"v_cvt_pk_bf16_f32 {v(T0+i%4)}, {v(Y0+2*i)}, {v(Y0+2*i+1)}")
            for i in range(i0, i0+4):
                A(f"v_accvgpr_write_b32 {a(rt*48+i)}, {v(T0+i%4)}")
        if rt == 2:
            stamp(A, 'ln2')
            poll(A, 'pollA', vPA, vPD, 0, True)
            for c in range(3):
                for h in range(2): dma1_now(c, h)
    vL16b, vSUMA = 2, 3
    A(f"v_add_u32 {v(vL16b)}, {2*24576:#x}, {v(vL16)}")
    A(f"v_lshrrev_b32 {v(vSUMA)}, 4, {v(vL16)}")
    A(f"v_and_b32 {v(vSUMA)}, 60, {v(vSUMA)}")
    A(f"s_add_u32 {s(sT0)}, {s(sM0B)}, {LDS_SUM - 3*64:#x}")
    A(f"v_add_u32 {v(vSUMA)}, {s(sT0)}, {v(vSUMA)}")
    A.wait_vm(lambda t: t == ('w', 1))
    A("s_barrier")
    stamp(A, 'k1')

    YB, TB, PB, SB_ = 16, 80, 144, 176
    def AFr(gb, i): return a(192 + 4*i, 4) if gb % 2 == 0 else v(184 + 4*i, 4)
    Yr = lambda u: YB + 16*(u % 4)
    Tr = lambda u: TB + 16*(u % 4)
    Pr = lambda c: PB + 16*(c % 2)
    Sr = lambda u: SB_ + 4*(u % 2)
    NU = 96
    def dsread(gb, i):
        u, kb = divmod(gb, 3)
        c, ht = divmod(u, 2)
        off = (c % 4)*24576 + (ht*12 + kb*4 + i)*1024
        base = vL16
        if off >= 2*24576: base, off = vL16b, off - 2*24576
        return (f"ds_read_b128 {AFr(gb, i)}, {v(base)} offset:{off}", ('a', gb))
    def period(A, p, bargap):
        has_m = p < NU
        trans = []
        if p-1 < NU: trans += [f"v_exp_f32 {v(Tr(p-1)+i)}, {v(Tr(p-1)+i)}" for i in range(16)]
        if p-2 < NU: trans += [f"v_rcp_f32 {v(Tr(p-2)+i)}, {v(Tr(p-2)+i)}" for i in range(16)]
        u = p-3; c, ht = divmod(u, 2); T = Tr(u); S_ = Sr(u)
        cv = [f"v_cvt_pk_bf16_f32 {v(Pr(c)+4*rt+2*ht+d)}, {v(T+4*rt+2*d)}, {v(T+4*rt+2*d+1)}" for rt in range(4) for d in range(2)]
        dp = [f"v_add_f32_dpp {v(S_)}, {v(S_)}, {v(S_)} row_ror:8 row_mask:0xf bank_mask:0x3",
              f"v_add_f32_dpp {v(S_+1)}, {v(S_+1)}, {v(S_+1)} row_ror:8 row_mask:0xf bank_mask:0x3",
              f"v_add_f32_dpp {v(S_)}, {v(S_+2)}, {v(S_+2)} row_ror:8 row_mask:0xf bank_mask:0xc",
              f"v_add_f32_dpp {v(S_+1)}, {v(S_+3)}, {v(S_+3)} row_ror:8 row_mask:0xf bank_mask:0xc",
              f"v_add_f32_dpp {v(S_)}, {v(S_)}, {v(S_)} row_shl:4 row_mask:0xf bank_mask:0x5",
              f"v_add_f32_dpp {v(S_)}, {v(S_+1)}, {v(S_+1)} row_shr:4 row_mask:0xf bank_mask:0xa",
              f"v_add_f32_dpp {v(S_)}, {v(S_)}, {v(S_)} quad_perm:[2,3,0,1] row_mask:0xf bank_mask:0xf",
              f"v_add_f32_dpp {v(S_)}, {v(S_)}, {v(S_)} quad_perm:[1,0,3,2] row_mask:0xf bank_mask:0xf"]
        plain = dp[0:4] + cv[0:2] + dp[4:6] + cv[2:4] + dp[6:7] + cv[4:6] + dp[7:8] + cv[6:8]
        dsw = f"ds_write_b32 {v(vSUMA)}, {v(S_)} offset:{(p % 8)*64}"
        c2, hf = divmod(p-4, 2)
        rts = [2*hf, 2*hf+1] + ([2, 3] if p == NU+2 else [])
        stores = [f"buffer_store_dwordx4 {v(Pr(c2)+4*rt,4)}, {v(vL16)}, {s(SH,4)}, {s(sH4+rt)} offen {OPT['hpol']}" for rt in rts]
        k = p // 2
        dm = dma1(k+3, p % 2) if has_m else None
        scal = []
        if p % 8 == 4: scal.append(f"s_mov_b32 {s(SH+2)}, {48*16384:#x}")
        for rt in (2*((p-5) % 2), 2*((p-5) % 2)+1): scal.append(f"s_add_u32 {s(sH4+rt)}, {s(sH4+rt)}, {16384:#x}")
        if has_m: scal += dma1((p-1)//2+3, (p-1) % 2)[2] + dm[0]
        lastp = (p % 8 == 7)
        if lastp: scal += [f"s_sub_u32 {s(sCNT)}, {s(sCNT)}, 1", f"s_cmp_lg_u32 {s(sCNT)}, 0"]
        bar = has_m and p % 2 == 0
        if has_m:
            gap = 0
            for kb in range(3):
                gb = p*3 + kb
                seq = [(rt, ks if rt % 2 == 0 else 3-ks) for rt in range(4) for ks in range(4)]
                for n, (rt, kk) in enumerate(seq):
                    D = v(Yr(p)+4*rt, 4)
                    Cc = '0' if (kb == 0 and n % 4 == 0) else D
                    A(f"v_mfma_f32_16x16x32_bf16 {D}, {AFr(gb, kk)}, {a(rt*48+(kb*4+kk)*4,4)}, {Cc}")
                    w1 = A.wait_lg_str(lambda t: t == ('a', gb+1)) if (gap in (15, 31, 46)) else None
                    w2 = A.wait_vm_str(lambda t: t == ('w', k+1)) if (bar and gap == bargap-1) else None
                    if w1 and w2: A(w2 + ' ' + w1.split()[1])
                    elif w1 or w2: A(w1 or w2)
                    elif bar and gap == bargap: pass
                    elif scal and n % 2 == 0: A(scal.pop(0))
                    if bar and gap == bargap: A("s_barrier")
                    if gap == 47: break
                    if n in (1, 3, 5, 7):
                        A.lds(*dsread(gb+1, n//2))
                        A(plain.pop(0))
                    elif gap in (41, 43):
                        A(plain.pop(0)); A(plain.pop(0))
                    elif gap == 45:
                        A.lds(dsw, 's')
                        if lastp: A(f"v_add_u32 {v(vSUMA)}, 512, {v(vSUMA)}")
                    else:
                        l = trans.pop(0)
                        if gap == 46:
                            extra4 = 4 if (bar and bargap == 47) else 0
                            if (A.pc + 4 + extra4) % 8: l = l.replace('_f32', '_f32_e64')
                        A(l)
                    gap += 1
            assert not trans and not plain and not scal, (p, trans, plain, scal)
            assert A.pc % 8 == 0
        else:
            for l in scal + trans + plain: A(l)
            A.lds(dsw, 's')
            align8(A)
        dl = list(dm[1]) if dm else []
        st = list(stores)
        while st or dl:
            if st: A.vmem(st.pop(0), 'st')
            if dl: A.vmem(dl.pop(0), ('w', k+3))
        pb, pq = [], []
        if p-2 < NU:
            u = p-2; T = Tr(u); Y = Yr(u); S_ = Sr(u)
            for i in range(0, 16, 2): A(f"v_pk_mul_f32 {v(T+i,2)}, {v(T+i,2)}, {v(Y+i,2)}")
            for rt in range(4):
                for d in (0, 2):
                    if rt == 0: pq.append(f"v_pk_mul_f32 {v(S_+d,2)}, {v(T+d,2)}, {v(T+d,2)}")
                    else: pq.append(f"v_pk_fma_f32 {v(S_+d,2)}, {v(T+4*rt+d,2)}, {v(T+4*rt+d,2)}, {v(S_+d,2)}")
        if p-1 < NU:
            T = Tr(p-1)
            pb = [f"v_pk_fma_f32 {v(T+i,2)}, {v(T+i,2)}, {s(sA,2)}, {s(sA,2)}" for i in range(0, 16, 2)]
        while pb or pq:
            if pq: A(pq.pop(0))
            if pb: A(pb.pop(0))
        if has_m:
            T = Tr(p); Y = Yr(p)
            for i in range(0, 16, 2): A(f"v_pk_fma_f32 {v(T+i,2)}, {v(Y+i,2)}, {v(Y+i,2)}, {s(sK,2)}")
            for i in range(0, 16, 2): A(f"v_pk_mul_f32 {v(T+i,2)}, {v(T+i,2)}, {v(Y+i,2)} neg_lo:[1,0] neg_hi:[1,0]")

    for i in range(4): A.lds(*dsread(0, i))
    A(f"s_mov_b32 {s(sCNT)}, 12")
    ncopy = 4 if OPT['skew'] else 1
    for w in range(1, ncopy):
        A(f"s_cmp_eq_u32 {s(sWAVE)}, {w}")
        A(f"s_cbranch_scc1 L_k1_pre{w}")
    final_state = None
    for w in range(ncopy):
        A.label(f"L_k1_pre{w}")
        A("s_waitcnt lgkmcnt(0)")
        align8(A)
        bodies = []
        B = Asm()
        B.vm = [('w', 1)] + ['st']*4 + [('w', 2)]*6
        for it in range(12):
            start = len(B.lines)
            for p in range(it*8, it*8+8): period(B, p, 47 - OPT['skew']*w)
            bodies.append(B.lines[start:])
        assert all(b == bodies[0] for b in bodies)
        A.label(f"L_k1_loop{w}")
        for l in bodies[0]:
            if OPT['drop'] and re.match(OPT['drop'], l): continue
            A(l)
        A(f"s_cbranch_scc1 L_k1_loop{w}")
        if w < ncopy-1: A("s_branch L_k1_tail")
        final_state = (B.vm, B.lg)
    A.label("L_k1_tail")
    A.vm, A.lg = list(final_state[0]), list(final_state[1])
    for p in range(NU, NU+3): period(A, p, 0)
    stamp(A, 'k1end')

    def acc(t, rt):
        r = {3: 0, 2: 96, 0: 192, 1: 288}[rt] + 4*t
        return a(r, 4) if r < 256 else v(r - 128, 4)
    def accname(t, rt, i):
        r = {3: 0, 2: 96, 0: 192, 1: 288}[rt] + 4*t + i
        return ('a', r) if r < 256 else ('v', r - 128)
    A.wait_vm(lambda t: isinstance(t, tuple) and t[0] == 'w')
    A("s_waitcnt lgkmcnt(0)"); A.lg = []
    A("s_barrier")
    vTID4 = 4
    A(f"v_lshrrev_b32 {v(vTID4)}, 2, {v(vL16)}")
    A(f"s_lshl_b32 {s(sT0)}, {s(sWAVE)}, 8")
    A(f"v_add_u32 {v(vTID4)}, {s(sT0)}, {v(vTID4)}")
    A(f"v_add_u32 v5, {LDS_SUM:#x}, {v(vTID4)}")
    RB = 8
    for q in range(6):
        for w in range(4): A.lds(f"ds_read_b32 {v(RB+4*q+w)}, v5 offset:{w*6144 + q*1024}", ('r', q))
    A(f"v_and_b32 v6, {0xe3*4:#x}, {v(vTID4)}")
    A(f"v_bfe_u32 v7, {v(vTID4)}, 4, 2")
    A("v_lshl_add_u32 v6, v7, 5, v6")
    A(f"v_bfe_u32 v7, {v(vTID4)}, 6, 1")
    A("v_lshl_add_u32 v6, v7, 4, v6")
    A(f"s_lshr_b32 {s(sT0)}, s2, 3")
    A(f"s_and_b32 {s(sT0)}, {s(sT0)}, {NREP-1}")
    A(f"s_mul_i32 {s(sT0)}, {s(sT0)}, 6144")
    A(f"s_add_u32 {s(sT1)}, {s(sT0)}, 3072")
    for q in range(6):
        A.wait_lg(lambda t: t == ('r', q))
        r = RB+4*q
        A(f"v_add_f32 {v(r)}, {v(r)}, {v(r+1)}")
        A(f"v_add_f32 {v(r+2)}, {v(r+2)}, {v(r+3)}")
        A(f"v_add_f32 {v(r)}, {v(r)}, {v(r+2)}")
        A.vmem(f"buffer_atomic_add_f32 {v(r)}, v6, {s(ST,4)}, {s(sT0 if q < 3 else sT1)} offen offset:{(q%3)*1024} sc1", 'at')
    XR = 32
    for rt in range(2):
        for u in range(12):
            A.vmem(f"buffer_load_dwordx4 {v(XR+48*rt+4*u,4)}, {v(vXO)}, {s(SX,4)}, {s(sXO+rt)} offen offset:{u*64} {OPT['xpol']}", ('xr', rt, u))
    SEL = 10
    A(f"v_lshrrev_b32 v5, 8, {v(vL16)}")
    A(f"v_bfe_u32 v7, {v(vL16)}, 6, 2")
    A("v_cmp_eq_u32 vcc, v5, v7")
    A(f"v_and_b32 v5, 16, {v(vL16)}")
    A("v_mov_b32 v7, 0x3f80")
    A("v_lshlrev_b32 v7, v5, v7")
    A("v_cndmask_b32 v7, 0, v7, vcc")
    A(f"v_and_b32 v5, 32, {v(vL16)}")
    A("v_cmp_eq_u32 vcc, 0, v5")
    for i in (0, 1, 4, 5): A(f"v_mov_b32 {v(SEL+i)}, 0")
    A(f"v_cndmask_b32 {v(SEL+2)}, 0, v7, vcc")
    A(f"v_sub_u32 {v(SEL+3)}, v7, {v(SEL+2)}")
    A("s_nop 1")
    def xinit(rt, u, src):
        for e in range(2):
            A(f"v_mfma_f32_16x16x32_bf16 {acc(2*u+e, rt)}, {v(SEL+2-2*e,4)}, {src}, 0")
    for rt in (3, 2):
        for u in range(12): xinit(rt, u, xraw(rt, 4*u, 4))
    A.wait_vm(lambda t: t == 'at')
    A("s_barrier")
    signal(A, 'sigB', 6, 4)
    stamp(A, 'sigB')
    sHOFF, sRB, sWB = 28, 29, 30
    A(f"s_add_u32 {s(SD)}, {s(SD)}, {W2P-W1P:#x}")
    A(f"s_addc_u32 {s(SD+1)}, {s(SD+1)}, 0")
    A(f"s_mul_i32 {s(sM0B)}, {s(sWAVE)}, 12288")
    A(f"s_mov_b32 {s(sWOFF)}, {s(sM0B)}")
    A(f"s_lshl_b32 {s(sHOFF)}, {s(sWAVE)}, 10")
    vPA, vPD = 8, 9
    A(f"v_and_b32 {v(vPA)}, 48, {v(vL16)}")
    A(f"v_lshlrev_b32 {v(vPA)}, 2, {v(vPA)}")
    A.vmem(f"buffer_load_dword {v(vPD)}, {v(vPA)}, {s(SDBG,4)}, 0 offen offset:4 sc1", 'pollB')
    GB = 16
    for q in range(3):
        A.vmem(f"buffer_load_dword {v(GB+q)}, {v(vTID4)}, {s(SG,4)}, 0 offen offset:{q*1024}", 'gb')
        A.vmem(f"buffer_load_dword {v(GB+3+q)}, {v(vTID4)}, {s(SBB,4)}, 0 offen offset:{q*1024}", 'gb')
    def dma2_line(i): return f"buffer_load_dwordx4 {v(vL16)}, {s(SD,4)}, {s(sWOFF)} offen offset:{(i%4)*1024} {OPT['wpol']} lds"
    for i in range(12):
        if i % 4 == 0:
            if i: A(f"s_add_u32 {s(sWOFF)}, {s(sWOFF)}, 4096")
            A(f"s_add_u32 m0, {s(sM0B)}, {i*1024}")
            A("s_nop 0")
        A.vmem(dma2_line(i), ('w2', 0))
    for rt in range(2):
        for u in range(12):
            A.wait_vm(lambda t: t == ('xr', rt, u))
            xinit(rt, u, v(XR+48*rt+4*u, 4))
    vAB, vTAB = 2, 3
    TMP, RAW, BS, AR = 4, 16, 32, 96
    SBRs = (8, 120)
    def hline(dst): return f"buffer_load_dwordx4 {v(dst,4)}, {v(vL16)}, {s(SH,4)}, {s(sHOFF)} offen {OPT['hlpol']}"
    hadv = f"s_add_u32 {s(sHOFF)}, {s(sHOFF)}, 4096"
    for i in range(8):
        A.vmem(hline(BS + 4*i), ('h', 0, i//4))
        A(hadv)
    A(f"s_cmp_lg_u32 {s(sWAVE)}, 0")
    A("s_cbranch_scc1 L_pollB_ok")
    keep = list(A.vm)
    poll(A, 'pollB', vPA, vPD, 4, True)
    A.vm = keep
    A("s_barrier")
    stamp(A, 'go')
    SR = 64
    assert NREP*6 <= 32
    A(f"v_lshlrev_b32 v5, 1, {v(vTID4)}")
    for r in range(NREP):
        A(f"s_mov_b32 {s(sT0)}, {r*6144:#x}")
        A(f"s_mov_b32 {s(sT1)}, {r*6144 + 4096:#x}")
        for q in range(3):
            A.vmem(f"buffer_load_dwordx2 {v(SR+(r*3+q)*2,2)}, v5, {s(ST,4)}, {s(sT1 if q == 2 else sT0)} offen offset:{(q%2)*2048} sc1", 'sum')
    A.wait_vm(lambda t: t == 'gb')
    GF, BF = 96, 102
    for q in range(3):
        A(f"v_lshlrev_b32 {v(GF+2*q)}, 16, {v(GB+q)}")
        A(f"v_and_b32 {v(GF+2*q+1)}, 0xffff0000, {v(GB+q)}")
        A(f"v_lshlrev_b32 {v(BF+2*q)}, 16, {v(GB+3+q)}")
        A(f"v_and_b32 {v(BF+2*q+1)}, 0xffff0000, {v(GB+3+q)}")
    A(f"v_add_u32 v5, {LDS_TAB:#x}, v5")
    for q in range(3): A.lds(f"ds_write_b64 v5, {v(BF+2*q,2)} offset:{6144 + q*2048}", 'tb')
    for i in range(4):
        A.vmem(hline(RAW + 4*i), ('h', 1, 0))
        A(hadv)
    A.wait_vm(lambda t: t == 'sum')
    for r in range(1, NREP):
        for i in range(6): A(f"v_add_f32 {v(SR+i)}, {v(SR+i)}, {v(SR+r*6+i)}")
    for i in range(6): A(f"v_add_f32 {v(SR+i)}, {f2u(1e-6):#x}, {v(SR+i)}")
    for i in range(6): A(f"v_sqrt_f32 {v(SR+i)}, {v(SR+i)}")
    A("s_nop 0")
    A(f"v_add_f32 v6, {v(SR)}, {v(SR+1)}")
    for i in range(2, 6): A(f"v_add_f32 v6, v6, {v(SR+i)}")
    for i in range(6): A(f"v_mul_f32 {v(SR+i)}, {v(SR+i)}, {v(GF+i)}")
    for n in (8, 4, 2, 1):
        A(f"v_add_f32_dpp v6, v6, v6 row_ror:{n} row_mask:0xf bank_mask:0xf")
        A("s_nop 1")
    xlane_sum(A, (6,), (7,))
    A(f"s_lshl_b32 {s(sT0)}, {s(sWAVE)}, 2")
    A(f"s_add_u32 {s(sT0)}, {s(sT0)}, {LDS_RED:#x}")
    A(f"v_mov_b32 v7, {s(sT0)}")
    A.lds("ds_write_b32 v7, v6", 'tb')
    A(f"v_mov_b32 v7, {LDS_RED:#x}")
    A.wait_lg(lambda t: True)
    A("s_barrier")
    A.lds("ds_read_b128 v[8:11], v7", 'red')
    A(f"v_mov_b32 v6, {f2u(1e-6):#x}")
    A.wait_lg(lambda t: True)
    A("v_add_f32 v8, v8, v9")
    A("v_add_f32 v10, v10, v11")
    A("v_add_f32 v8, v8, v10")
    A(f"v_fmac_f32 v6, {f2u(1.0/1536):#x}, v8")
    A("v_rcp_f32 v6, v6")
    A("s_nop 0")
    for i in range(6): A(f"v_fma_f32 {v(SR+i)}, {v(SR+i)}, v6, 1.0")
    for q in range(3): A.lds(f"ds_write_b64 v5, {v(SR+2*q,2)} offset:{q*2048}", 'tb')
    A(f"v_lshrrev_b32 {v(vTAB)}, 8, {v(vL16)}")
    A(f"v_lshlrev_b32 {v(vTAB)}, 5, {v(vTAB)}")
    A(f"v_add_u32 {v(vTAB)}, {LDS_TAB:#x}, {v(vTAB)}")
    A(f"v_mov_b32 {v(vAB)}, {v(vL16)}")
    A.wait_lg(lambda t: True)
    A.wait_vm(lambda t: t == ('w2', 0))
    A("s_barrier")
    S8 = 64
    for k2 in range(2):
        for hh in range(2):
            A.lds(f"ds_read_b128 {v(S8+16*k2+4*hh,4)}, {v(vTAB)} offset:{k2*128 + hh*16}", ('t0', k2))
            A.lds(f"ds_read_b128 {v(S8+16*k2+8+4*hh,4)}, {v(vTAB)} offset:{6144 + k2*128 + hh*16}", ('t0', k2))
    def dsA(gt_local, k2, tag):
        return (f"ds_read_b128 {v(AR + 8*(gt_local % 3) + 4*k2, 4)}, {v(vAB)} offset:{((gt_local % 24)*2+k2)*1024}", tag)
    for gt in range(2):
        for k2 in range(2): A.lds(*dsA(gt, k2, ('a2', gt)))
    A(f"s_mov_b32 {s(sRB)}, 49152")
    A(f"s_mov_b32 {s(sWB)}, 49152")
    NPRE = 4
    A(f"s_add_u32 {s(sWOFF)}, {s(sWOFF)}, {49152-8192}")
    A(f"s_add_u32 m0, {s(sM0B)}, {s(sWB)}")
    A("s_nop 0")
    for i in range(NPRE): A.vmem(dma2_line(i), ('w2', 1))
    for k2 in range(2):
        A.wait_lg(lambda t: t == ('t0', k2))
        A.wait_vm(lambda t: t == ('h', 0, k2))
        for rt in range(4):
            F = BS + (k2*4+rt)*4
            for d in range(4):
                A(f"v_lshlrev_b32 {v(TMP+2*d)}, 16, {v(F+d)}")
                A(f"v_and_b32 {v(TMP+2*d+1)}, 0xffff0000, {v(F+d)}")
            for d in range(4):
                A(f"v_pk_fma_f32 {v(TMP+2*d,2)}, {v(TMP+2*d,2)}, {v(S8+16*k2+2*d,2)}, {v(S8+16*k2+8+2*d,2)}")
            for d in range(4):
                A(f"v_cvt_pk_bf16_f32 {v(F+d)}, {v(TMP+2*d)}, {v(TMP+2*d+1)}")
    A(f"s_mov_b32 {s(sT2)}, 0xffff0000")
    A(f"s_mov_b32 {s(sCNT)}, 11")
    A.wait_lg(lambda t: t == ('a2', 0))
    align8(A)
    stamp(A, 'k3')

    NB = 24
    ecount = [0]
    def epi_ops(u, ET):
        ops = []
        for rt in range(4):
            P = ET + 16 + 4*(ecount[0] % 4)
            for e in range(2):
                t = 2*u + e
                f, r0 = accname(t, rt, 0)
                if f == 'a':
                    T = ET + 8*(ecount[0] % 2) + 4*e
                    for r in range(4): ops.append(('v', f"v_accvgpr_read_b32 {v(T+r)}, {a(r0+r)}"))
                else:
                    T = r0
                for d in range(2): ops.append(('v', f"v_cvt_pk_bf16_f32 {v(P+2*e+d)}, {v(T+2*d)}, {v(T+2*d+1)}"))
            ops.append(('s', f"buffer_store_dwordx4 {v(P,4)}, {v(vXO)}, {s(SO,4)}, {s(sXO+rt)} offen offset:{u*64} {OPT['opol']}"))
            ecount[0] += 1
        return ops
    epi = []
    def block(A, kb):
        par = kb % 2
        nxt = BS + 32*(1-par)
        vm = {t: [] for t in range(24)}
        if kb+1 < NB:
            for i in range(4): vm[i//2].append(([], hline(nxt + 16 + 4*i), ('h', kb+1, 1), [hadv]))
            for i in range(NPRE, 12):
                pre = []
                if i % 4 == 0: pre = [f"s_add_u32 {s(sWOFF)}, {s(sWOFF)}, 4096", f"s_add_u32 m0, m0, 4096"]
                vm[2 + i - NPRE].append((pre, dma2_line(i), ('w2', kb+1), []))
        if kb+2 < NB:
            for i in range(4): vm[16 + i//2].append(([], hline(RAW + 4*i), ('h', kb+2, 0), [hadv]))
            for i in range(NPRE):
                pre = []
                if i == 0: pre = [f"s_add_u32 {s(sWOFF)}, {s(sWOFF)}, {49152-8192}", f"s_add_u32 m0, {s(sM0B)}, {s(sWB)}"]
                vm[(22, 22, 23, 23)[i]].append((pre, dma2_line(i), ('w2', kb+2), []))
        groups = []
        if kb+1 < NB:
            for g4 in range(4):
                k2, hh = divmod(g4, 2)
                SBR = SBRs[g4 % 2]
                off = (par+1)*256 + k2*128 + hh*16
                rd = [f"ds_read_b128 {v(SBR,4)}, {v(vTAB)} offset:{off}", f"ds_read_b128 {v(SBR+4,4)}, {v(vTAB)} offset:{6144+off}"]
                ops = []
                for rt in range(4):
                    dst = nxt + (k2*4+rt)*4 + 2*hh
                    src = (RAW + 4*rt + 2*hh) if k2 == 0 else dst
                    for d in range(2):
                        ops.append(f"v_lshlrev_b32 {v(TMP+2*d)}, 16, {v(src+d)}")
                        ops.append(f"v_and_b32 {v(TMP+2*d+1)}, {s(sT2)}, {v(src+d)}")
                    for j in range(4): ops.append(f"v_fma_f32 {v(TMP+j)}, {v(TMP+j)}, {v(SBR+j)}, {v(SBR+4+j)}")
                    for d in range(2): ops.append(f"v_cvt_pk_bf16_f32 {v(dst+d)}, {v(TMP+2*d)}, {v(TMP+2*d+1)}")
                groups.append(dict(rd=rd, ops=ops, start=(9, 9, 16, 16)[g4], k2=k2))
        started = 0; tabdone = 0
        cq = []
        scal = []
        BT = 21
        for t in range(24):
            gt = kb*24 + t
            if kb == NB-1 and t >= 3 and t % 2 == 1: epi.extend(epi_ops((t-3)//2, BS))
            if t == 12 and kb+1 < NB:
                scal += [f"s_add_u32 {s(sWB)}, {s(sWB)}, 49152", f"s_cmp_eq_u32 {s(sWB)}, {3*49152}", f"s_cselect_b32 {s(sWB)}, 0, {s(sWB)}"]
            if t == 23 and par == 1 and kb < NB-2:
                scal += [f"s_sub_u32 {s(sCNT)}, {s(sCNT)}, 1", f"s_cmp_lg_u32 {s(sCNT)}, 0"]
            q = list(vm[t])
            for o in q: scal = o[0] + scal
            for n in range(8):
                rt, k2 = n//2, n % 2
                kk = k2 if rt % 2 == 0 else 1-k2
                D = acc(t, rt)
                A(f"v_mfma_f32_16x16x32_bf16 {D}, {v(AR+8*(gt%3)+4*kk,4)}, {v(BS+32*par+(kk*4+rt)*4,4)}, {D}")
                slots = 2
                isbar = (n == 6 and t == BT and kb+1 < NB)
                waits_lg, waits_vm = [], []
                if n == 7: waits_lg.append(('a2', gt+1))
                if n == 5 and t == BT and kb+1 < NB: waits_vm.append(('w2', kb+1))
                if not cq and started < len(groups) and t >= groups[started]['start'] and not isbar and not scal:
                    assert tabdone > started
                    waits_lg.append(('tab', started)); waits_vm.append(('h', kb+1, groups[started]['k2']))
                    cq = list(groups[started]['ops']); started += 1
                w1 = A.wait_lg_str(lambda tg: tg in waits_lg)
                w2 = A.wait_vm_str(lambda tg: tg in waits_vm)
                if w1 and w2: A(w2 + ' ' + w1.split()[1])
                elif w1 or w2: A(w1 or w2)
                elif isbar:
                    A("s_barrier"); slots = 0
                elif scal: A(scal.pop(0))
                if n in (0, 1) and gt+2 < NB*24:
                    A.lds(*dsA(gt+2, n, ('a2', gt+2))); slots -= 1
                elif n == 3 and t == BT and kb+1 < NB:
                    A(f"v_add_u32 {v(vAB)}, {s(sRB)}, {v(vL16)}"); slots -= 1
                    scal.append(f"s_mov_b32 {s(sRB)}, {s(sWB)}")
                elif n == 3 and t == 22 and par == 1 and kb+1 < NB:
                    assert tabdone == 4
                    A(f"v_add_u32 {v(vTAB)}, 512, {v(vTAB)}"); slots -= 1
                elif n in (4, 6) and q and slots == 2:
                    pre, l2, tg, post = q.pop(0)
                    assert not any(x in scal for x in pre) and hadv not in scal
                    if tg == ('h', kb+2, 0): assert started > 2 or (started == 2 and not cq)
                    A.vmem(l2, tg); slots = 0
                    scal = post + scal
                elif slots == 2 and t >= 5 and tabdone < len(groups) and tabdone <= max(started, 1) and not (tabdone == started+1 and cq):
                    if tabdone < 2 or started >= tabdone:
                        for l in groups[tabdone]['rd']: A.lds(l, ('tab', tabdone))
                        tabdone += 1; slots = 0
                while slots and cq:
                    A(cq.pop(0)); slots -= 1
                while slots and epi:
                    if epi[0][0] == 's':
                        if slots == 2: A.vmem(epi.pop(0)[1], 'o')
                        slots = 0
                    else:
                        A(epi.pop(0)[1]); slots -= 1
            assert not q, (kb, t)
        assert not cq and not scal and started == len(groups), (kb, cq, scal)

    B = Asm(); B.vm, B.lg = list(A.vm), list(A.lg)
    bodies = []
    for it in range(11):
        start = len(B.lines)
        block(B, 2*it); block(B, 2*it+1)
        bodies.append(B.lines[start:])
    assert all(b == bodies[0] for b in bodies), [i for i, b in enumerate(bodies) if b != bodies[0]]
    A.label("L_k3_loop")
    for l in bodies[0]:
        if OPT['drop3'] and re.match(OPT['drop3'], l): continue
        A(l)
    A("s_cbranch_scc1 L_k3_loop")
    A.vm, A.lg = list(B.vm), list(B.lg)
    stamp(A, 'k3loopend')
    block(A, 22); block(A, 23)
    epi.extend(epi_ops(11, BS))
    A("s_nop 7")
    for kind, l in epi: A(l)
    if OPT['stamps']:
        A("s_waitcnt vmcnt(0)")
        stamp(A, 'end')
        A(f"s_lshl_b32 {s(sT0)}, {s(sGW)}, 7")
        A(f"s_add_u32 {s(sT0)}, {s(sT0)}, {STAMP:#x}")
        A("s_waitcnt lgkmcnt(0)")
        A("s_mov_b64 exec, 1")
        A("v_mov_b32 v2, 0")
        for i in range(nstamp[0]):
            A(f"v_mov_b32 v4, {s(STB+4*i)}")
            A(f"v_mov_b32 v5, {s(STB+4*i+2)}")
            A(f"buffer_store_dwordx2 v[4:5], v2, {s(SW,4)}, {s(sT0)} offen offset:{8*i}")
    if OPT['leak']:
        A("s_waitcnt vmcnt(0)")
        stamp(A, 'end')
        A("s_memrealtime s[100:101]")
        A(f"s_cmp_lg_u32 {s(sGW)}, 0")
        A("s_cbranch_scc1 L_end")
        A("s_waitcnt lgkmcnt(0)")
        A("s_sub_u32 s94, s98, s96")
        A("s_mul_i32 s94, s94, 10")
        A("s_min_u32 s94, s94, 200000")
        A.label("L_leak")
        A("s_memrealtime s[92:93]")
        A("s_waitcnt lgkmcnt(0)")
        A("s_sub_u32 s92, s92, s100")
        A("s_cmp_lt_u32 s92, s94")
        A("s_cbranch_scc1 L_leak")
    A.label("L_end")
    A("s_endpgm")
    return A


def main():
    A = gen()
    body = A.text()
    body = body.replace(" s_cbranch_scc1 L_exit_early\n", " s_cbranch_scc0 L_go\n s_endpgm\n s_nop 0\nL_go:\n")
    head = open('standalone__modern_conv_block_slak__vision.s.ref').read().split('; Override launch')[0]
    out = head
    out += f"; @launch grid=(256,1,1) block=(256,1,1) lds={LDS_BYTES}\n"
    out += '.amdgcn_target "amdgcn-amd-amdhsa--gfx950"\n'
    out += kernel_text(NAME, body)
    out += '.section .rodata,"a"\n'
    out += descriptor(NAME, 512, 256)
    open(sys.argv[1], 'w').write(out)
    print(f"wrote {sys.argv[1]}: {len(out)} bytes, {out.count(chr(10))} lines, code ~{A.pc} B")

main()
```

```python
import sys, math, re
from asmlib import *

OPT = dict(xpol='nt', pf3=1, La=8, Lb=6, ta=6, tp=12, hold=1, sp=1, fakest=0, pf4=2, hpf=1, hpol='sc1', hlpol='', wpol='sc1', opol='sc1', stamps=0, R=2, skew=5, drop='', drop3='', sleep=1, leak='', stn='start,ln2,k1,k1end,sigB,go,k3,k3loopend,end', pf2=2)
for arg in sys.argv[2:]:
    k, val = arg.split('=')
    OPT[k] = type(OPT[k])(val.replace('+', ' '))
NREP = OPT['R']
NAME = 'standalone__modern_conv_block_slak__vision_kernel'

WS_BYTES = 0x10000000
X_BYTES = 65536 * 768
W_BYTES = 384 * 1536 * 2
HSTR = 0xC3000
W1P = 0xC400000
W2P = 0xC520000
W2S = W2P + W_BYTES
SUMS = 0xC780000
CNT_C = NREP*6144 + 2048
ZERO_BYTES = CNT_C + 4096
STAMP = 0xC800000
SPIN_MAX = 1 << 16

KG = 2.0 * math.sqrt(2.0 / math.pi) * math.log2(math.e)
A_SC = (KG * 0.044715) ** (1.0 / 3.0)
K_SC = KG / A_SC

SX, SW, ST, SH, SD, SP, SO, SDBG, SG, SBB = 4, 8, 12, 32, 36, 40, 44, 48, 52, 56
sWAVE, sWOFF, sGW, sCNT, sK, sA, sM0B = 16, 17, 18, 19, 20, 22, 24
sT0, sT1, sT2 = 25, 26, 27
sH4 = 28
sPC = 64
sXO = 60
KA = 64
STB = 66

LDS_SUM = 4 * 24576
LDS_XK = 112 * 1024
LDS_TAB = 3 * 49152
LDS_RED = LDS_TAB + 12288
LDS_SCR = LDS_RED + 256
LDS_BYTES = 160 * 1024

nstamp = [0]
LK = {}
def stamp(A, label):
    if OPT['leak']:
        if label in OPT['leak'].split(','):
            r = 96 + 2*OPT['leak'].split(',').index(label)
            A(f"s_memrealtime {s(r, 2)}")
        return
    if not OPT['stamps'] or label not in OPT['stn'].split(','): return
    i = nstamp[0]; nstamp[0] += 1
    A(f"s_memrealtime {s(STB + 4*i, 2)}")
    A(f"s_memtime {s(STB + 4*i + 2, 2)}")
    assert STB + 4*i + 3 <= 101


def srd(A, d, src, nbytes, add=None):
    if add is None:
        A(f"s_mov_b32 {s(d)}, {s(src)}")
        A(f"s_mov_b32 {s(d+1)}, {s(src+1)}")
    else:
        A(f"s_add_u32 {s(d)}, {s(src)}, {add}")
        A(f"s_addc_u32 {s(d+1)}, {s(src+1)}, 0")
    A(f"s_mov_b32 {s(d+2)}, {nbytes:#x}")
    A(f"s_mov_b32 {s(d+3)}, 0x20000")


def xlane_sum(A, regs, tmps):
    for op in ('v_permlane16_swap_b32', 'v_permlane32_swap_b32'):
        for r, t in zip(regs, tmps): A(f"v_mov_b32 {v(t)}, {v(r)}")
        A("s_nop 1")
        for r, t in zip(regs, tmps): A(f"{op} {v(r)}, {v(t)}")
        A("s_nop 1")
        for r, t in zip(regs, tmps): A(f"v_add_f32 {v(r)}, {v(r)}, {v(t)}")


def align8(A):
    if A.pc % 8: A("s_nop 0")


def poll_issue(A, name, vz, vdst, off):
    A(f"v_mov_b32 {v(vz)}, 0")
    A.vmem(f"buffer_load_dword {v(vdst)}, {v(vz)}, {s(SDBG,4)}, 0 offen offset:{128+off} sc1", name)


def poll(A, name, vz, vdst, off):
    A(f"s_mov_b32 {s(sT0)}, {SPIN_MAX}")
    A.wait_vm(lambda t: t == name)
    A(f"v_cmp_eq_u32 vcc, 0, {v(vdst)}")
    A("s_nop 4")
    A(f"s_cbranch_vccz L_{name}_ok")
    A.label(f"L_{name}_spin")
    if OPT['sleep']: A(f"s_sleep {OPT['sleep']}")
    A(f"buffer_load_dword {v(vdst)}, {v(vz)}, {s(SDBG,4)}, 0 offen offset:{128+off} sc1")
    A(f"s_sub_u32 {s(sT0)}, {s(sT0)}, 1")
    A("s_waitcnt vmcnt(0)")
    A(f"s_cbranch_scc1 L_{name}_ok")
    A(f"v_cmp_eq_u32 vcc, 0, {v(vdst)}")
    A("s_nop 4")
    A(f"s_cbranch_vccnz L_{name}_spin")
    A.label(f"L_{name}_ok")


def arrive_issue(A, name, vt, off, wave):
    A(f"s_cmp_eq_u32 {s(sWAVE)}, {wave}")
    A(f"s_cselect_b32 {s(sT0)}, 0, 0x1000")
    A(f"v_mov_b32 {v(vt)}, 1")
    A(f"v_mov_b32 {v(vt+1)}, {s(sT0)}")
    A("s_mov_b64 exec, 1")
    A.vmem(f"buffer_atomic_add {v(vt)}, {v(vt+1)}, {s(SDBG,4)}, 0 offen offset:{off} sc0 sc1", name)
    A("s_mov_b64 exec, -1")


def arrive_finish(A, name, vt, off, wave):
    keep = list(A.vm)
    A(f"s_cmp_lg_u32 {s(sWAVE)}, {wave}")
    A(f"s_cbranch_scc1 L_{name}_done")
    A.wait_vm(lambda t: t == name)
    A(f"v_readfirstlane_b32 {s(sT0)}, {v(vt)}")
    A("s_nop 3")
    A(f"s_cmp_lg_u32 {s(sT0)}, 255")
    A(f"s_cbranch_scc1 L_{name}_done")
    A("s_mov_b64 exec, 1")
    A(f"buffer_store_dword {v(vt)}, {v(vt+1)}, {s(SDBG,4)}, 0 offen offset:{128+off} sc1")
    A("s_mov_b64 exec, -1")
    A.label(f"L_{name}_done")
    A.vm = keep


def pollA(A, name, vaddr, vdst, sr=SDBG, cnt=64):
    A(f"s_mov_b32 {s(sT0)}, {SPIN_MAX}")
    A.wait_vm(lambda t: t == name)
    A(f"v_cmp_gt_u32 vcc, {cnt}, {v(vdst)}")
    A("s_nop 4")
    A(f"s_cbranch_vccz L_{name}_ok")
    A.label(f"L_{name}_spin")
    A("s_sleep 16")
    A(f"buffer_load_dword {v(vdst)}, {v(vaddr)}, {s(sr,4)}, 0 offen sc1")
    A(f"s_sub_u32 {s(sT0)}, {s(sT0)}, 1")
    A("s_waitcnt vmcnt(0)")
    A(f"s_cbranch_scc1 L_{name}_ok")
    A(f"v_cmp_gt_u32 vcc, {cnt}, {v(vdst)}")
    A("s_nop 4")
    A(f"s_cbranch_vccnz L_{name}_spin")
    A.label(f"L_{name}_ok")


def signalA(A, name, vt):
    A(f"s_cmp_lg_u32 {s(sWAVE)}, 0")
    A(f"s_cbranch_scc1 L_{name}_nosig")
    A(f"s_lshr_b32 {s(sT0)}, s2, 3")
    A(f"s_and_b32 {s(sT0)}, {s(sT0)}, 3")
    A(f"s_lshl_b32 {s(sT0)}, {s(sT0)}, 6")
    A(f"v_mov_b32 {v(vt)}, 1")
    A(f"v_mov_b32 {v(vt+1)}, {s(sT0)}")
    A("s_mov_b64 exec, 1")
    A(f"buffer_atomic_add {v(vt)}, {v(vt+1)}, {s(SDBG,4)}, 0 offen sc1")
    A("s_mov_b64 exec, -1")
    A.label(f"L_{name}_nosig")


npf = [0]
def code_pf(A, label, n, t, tid64, dst, sp=sPC):
    npf[0] += 1
    A(f"s_getpc_b64 {s(sp,2)}")
    A.label(f"L_pc{npf[0]}")
    A(f"s_add_u32 {s(sp)}, {s(sp)}, {label}-L_pc{npf[0]}"); A.pc += 4
    A(f"s_addc_u32 {s(sp+1)}, {s(sp+1)}, 0")
    for i in range(n):
        if i: A(f"v_add_u32 {v(t+2)}, {i*16384:#x}, {v(tid64)}")
        A(f"v_min_u32 {v(t+2)}, L_end-{label}, {v(t+2 if i else tid64)}"); A.pc += 4
        A(f"v_mov_b32 {v(t+1)}, s{sp+1}")
        A(f"v_add_co_u32 {v(t)}, vcc, s{sp}, {v(t+2)}")
        A("s_nop 1")
        A(f"v_addc_co_u32 {v(t+1)}, vcc, 0, {v(t+1)}, vcc")
        A.vmem(f"global_load_dword {v(dst)}, {v(t,2)}, off", 'pf')


def pollA_smem(A, r, vL16, vaddr, vdst):
    A("s_waitcnt lgkmcnt(0)"); A.lg = []
    A(f"s_min_u32 {s(r)}, {s(r)}, {s(r+1)}")
    A(f"s_min_u32 {s(r+2)}, {s(r+2)}, {s(r+3)}")
    A(f"s_min_u32 {s(r)}, {s(r)}, {s(r+2)}")
    A(f"s_cmp_ge_u32 {s(r)}, 64")
    A("s_cbranch_scc1 L_pollA_ok")
    A(f"s_mov_b32 {s(sT0)}, {SPIN_MAX}")
    A(f"v_and_b32 {v(vaddr)}, 48, {v(vL16)}")
    A(f"v_lshlrev_b32 {v(vaddr)}, 2, {v(vaddr)}")
    A.label("L_pollA_spin")
    A(f"buffer_load_dword {v(vdst)}, {v(vaddr)}, {s(SDBG,4)}, 0 offen sc1")
    A(f"s_sub_u32 {s(sT0)}, {s(sT0)}, 1")
    A("s_waitcnt vmcnt(0)")
    A("s_cbranch_scc1 L_pollA_ok")
    A(f"v_cmp_gt_u32 vcc, 64, {v(vdst)}")
    A("s_nop 4")
    A("s_cbranch_vccz L_pollA_ok")
    A("s_sleep 16")
    A("s_branch L_pollA_spin")
    A.label("L_pollA_ok")


def gen():
    A = Asm()
    A("s_cmp_ge_u32 s2, 256")
    A("s_cbranch_scc1 L_exit_early")
    stamp(A, 'entry')
    A(f"s_load_dwordx16 {s(KA,16)}, s[0:1], 0")
    A(f"s_load_dwordx2 {s(KA+16,2)}, s[0:1], 64")
    A("v_lshlrev_b32 v19, 6, v0")
    code_pf(A, 'L_head', 1, 16, 19, 20, sp=26)
    A.label("L_head")
    vL16, vXO = 0, 1
    A("v_lshrrev_b32 v2, 6, v0")
    A("v_and_b32 v3, 63, v0")
    A(f"v_readfirstlane_b32 {s(sWAVE)}, v2")
    A(f"v_lshlrev_b32 {v(vL16)}, 4, v3")
    A("v_lshrrev_b32 v4, 4, v3")
    A("v_and_b32 v5, 15, v3")
    A("v_lshlrev_b32 v6, 4, v4")
    A(f"s_lshl_b32 {s(sGW)}, s2, 2")
    A(f"s_add_u32 {s(sGW)}, {s(sGW)}, {s(sWAVE)}")
    A(f"s_mul_i32 {s(sXO)}, {s(sGW)}, {64*768}")
    for rt in range(1, 4): A(f"s_add_u32 {s(sXO+rt)}, {s(sXO)}, {rt*16*768}")
    sSEL, sTASK, sVAL, sSTR, sSRC, sDST, sD1, sD2 = 82, 83, 84, 85, 86, 87, 88, 89
    sBK, sBC = 92, 3
    A(f"s_mov_b32 {s(sTASK)}, s2")
    A(f"s_mov_b32 {s(sSEL)}, {s(sWAVE)}")
    A(f"s_mov_b32 {s(sVAL)}, {W_BYTES:#x}")
    A(f"s_cmp_lt_u32 {s(sWAVE)}, 2")
    A("s_cbranch_scc1 L_task_ok")
    A(f"s_lshr_b32 {s(sTASK)}, s2, 3")
    A(f"s_add_u32 {s(sTASK)}, {s(sTASK)}, 256")
    A(f"s_bfe_u32 {s(sSEL)}, s2, 0x10002")
    A(f"s_and_b32 {s(sT0)}, s2, 3")
    A(f"s_sub_u32 {s(sT1)}, {s(sWAVE)}, 2")
    A(f"s_or_b32 {s(sT0)}, {s(sT0)}, {s(sT1)}")
    A(f"s_cmp_eq_u32 {s(sT0)}, 0")
    A(f"s_cselect_b32 {s(sVAL)}, {s(sVAL)}, 0")
    A.label("L_task_ok")
    A(f"s_cmp_eq_u32 {s(sSEL)}, 0")
    A("s_cbranch_scc0 L_task_w2")
    A(f"s_mul_hi_u32 {s(sT0)}, {s(sTASK)}, 0x15555556")
    A(f"s_mul_i32 {s(sT1)}, {s(sT0)}, 12")
    A(f"s_sub_u32 {s(sT1)}, {s(sTASK)}, {s(sT1)}")
    A(f"s_mov_b32 {s(sSTR)}, 3072")
    A(f"s_mul_i32 {s(sDST)}, {s(sT0)}, {2*24576}")
    A(f"s_lshl_b32 {s(sT2)}, {s(sT1)}, 10")
    A(f"s_add_u32 {s(sDST)}, {s(sDST)}, {s(sT2)}")
    A(f"s_mov_b32 {s(sD1)}, 12288")
    A(f"s_mov_b32 {s(sD2)}, 24576")
    A("s_branch L_task_j")
    A.label("L_task_w2")
    A(f"s_mul_hi_u32 {s(sT1)}, {s(sTASK)}, 0x2AAAAAAB")
    A(f"s_mul_i32 {s(sT0)}, {s(sT1)}, 6")
    A(f"s_sub_u32 {s(sT0)}, {s(sTASK)}, {s(sT0)}")
    A(f"s_mov_b32 {s(sSTR)}, 768")
    A(f"s_lshr_b32 {s(sT2)}, {s(sT1)}, 1")
    A(f"s_mul_i32 {s(sDST)}, {s(sT2)}, 49152")
    A(f"s_and_b32 {s(sT2)}, {s(sT1)}, 1")
    A(f"s_lshl_b32 {s(sT2)}, {s(sT2)}, 10")
    A(f"s_add_u32 {s(sDST)}, {s(sDST)}, {s(sT2)}")
    A(f"s_lshl_b32 {s(sT2)}, {s(sT0)}, 13")
    A(f"s_add_u32 {s(sDST)}, {s(sDST)}, {s(sT2)}")
    A(f"s_mov_b32 {s(sD1)}, 2048")
    A(f"s_mov_b32 {s(sD2)}, 4096")
    A.label("L_task_j")
    A(f"s_lshl_b32 {s(sBK)}, {s(sT1)}, 6")
    A(f"s_lshl_b32 {s(sBC)}, {s(sT0)}, 8")
    A(f"s_add_u32 {s(sBC)}, {s(sBC)}, {NREP*6144}")
    A(f"s_mul_i32 {s(sT2)}, {s(sSEL)}, {s(sVAL)}")
    A(f"s_cmp_eq_u32 {s(sT2)}, 0")
    A(f"s_cselect_b32 {s(sBC)}, 0x100000, {s(sBC)}")
    A(f"s_mul_i32 {s(sSRC)}, {s(sT1)}, {s(sSTR)}")
    A(f"s_lshl_b32 {s(sSRC)}, {s(sSRC)}, 5")
    A(f"s_lshl_b32 {s(sT0)}, {s(sT0)}, 7")
    A(f"s_add_u32 {s(sSRC)}, {s(sSRC)}, {s(sT0)}")
    A(f"s_lshl_b32 {s(sT0)}, {s(sSTR)}, 3")
    A(f"v_mul_lo_u32 v7, v4, {s(sT0)}")
    A("v_lshl_add_u32 v7, v5, 3, v7")
    vXD, sXM = 11, 90
    A("v_lshrrev_b32 v8, 3, v3")
    A("v_and_b32 v9, 7, v3")
    A("v_xor_b32 v9, v8, v9")
    A(f"v_mul_u32_u24 {v(vXD)}, 768, v8")
    A(f"v_lshl_add_u32 {v(vXD)}, v9, 4, {v(vXD)}")
    A(f"s_lshl_b32 {s(sXM)}, {s(sWAVE)}, 11")
    A("s_waitcnt lgkmcnt(0)")
    A(f"s_cmp_eq_u32 {s(sSEL)}, 0")
    A(f"s_cselect_b32 {s(SP)}, {s(KA+4)}, {s(KA+6)}")
    A(f"s_cselect_b32 {s(SP+1)}, {s(KA+5)}, {s(KA+7)}")
    A(f"s_cselect_b32 {s(sT2)}, 0, {W2P-W1P:#x}")
    A(f"s_mov_b32 {s(SP+2)}, {s(sVAL)}")
    A(f"s_mov_b32 {s(SP+3)}, 0x20000")
    GA = 112
    for j in range(8):
        A.vmem(f"buffer_load_dwordx2 {v(GA+2*j,2)}, v7, {s(SP,4)}, {s(sSRC)} offen", 'ga')
        if j < 7: A(f"s_add_u32 {s(sSRC)}, {s(sSRC)}, {s(sSTR)}")
    srd(A, SBB, KA+10, 3072)
    A.vmem(f"buffer_load_dwordx4 v[160:163], v6, {s(SBB,4)}, {s(sBK)} offen", 'ga')
    srd(A, SX, KA+0, X_BYTES)
    XREG = (LDS_XK, 49152, 0, 49152)
    def xload(rt, j):
        kp, rh = divmod(j, 2)
        A(f"s_add_u32 m0, {s(sXM)}, {XREG[rt] + kp*8192 + rh*1024:#x}")
        A(f"s_add_u32 {s(sXM+1)}, {s(sXO+rt)}, {rh*8*768 + kp*128}")
        A.vmem(f"buffer_load_dwordx4 {v(vXD)}, {s(SX,4)}, {s(sXM+1)} offen {OPT['xpol']} lds", ('x', rt, kp))
    for j in range(12): xload(0, j)
    srd(A, ST, KA+2, 768)
    DWL, DWH, Y0 = 16, 64, 112
    for ks in range(12):
        A.vmem(f"buffer_load_dwordx4 {v(DWH+4*ks,4)}, v6, {s(ST,4)}, 0 offen offset:{ks*64}", 'dw')
    srd(A, SW, KA+16, WS_BYTES)
    A(f"s_mul_i32 {s(sT0)}, s2, {HSTR:#x}")
    srd(A, SH, KA+16, 0, add=s(sT0))
    srd(A, SD, KA+16, W_BYTES, add=f"{W1P:#x}")
    srd(A, SO, KA+12, X_BYTES)
    srd(A, SDBG, KA+14, 256)
    srd(A, SG, KA+8, 3072)
    A(f"s_add_u32 {s(SP)}, {s(SD)}, {s(sT2)}")
    A(f"s_addc_u32 {s(SP+1)}, {s(SD+1)}, 0")
    srd(A, ST, KA+16, ZERO_BYTES, add=f"{SUMS:#x}")
    stamp(A, 'start')
    A(f"s_lshl_b32 {s(sT0)}, {s(sWAVE)}, 10")
    for rt in range(4):
        A(f"s_sub_u32 {s(sH4+rt)}, {s(sT0)}, {(2 + rt//2)*16384 - (rt << 12):#x}")
    A(f"s_mul_i32 {s(sM0B)}, {s(sWAVE)}, 6144")
    A(f"s_mov_b32 {s(sWOFF)}, {s(sM0B)}")
    A(f"s_mov_b32 {s(sK)}, {f2u(K_SC):#x}")
    A(f"s_mov_b32 {s(sK+1)}, {f2u(K_SC):#x}")
    A(f"s_mov_b32 {s(sA)}, {f2u(A_SC):#x}")
    A(f"s_mov_b32 {s(sA+1)}, {f2u(A_SC):#x}")
    A("v_lshrrev_b32 v8, 3, v5")
    A("v_and_b32 v9, 1, v5")
    A("v_lshl_add_u32 v8, v8, 1, v9")
    A("v_lshlrev_b32 v8, 10, v8")
    A("v_lshl_add_u32 v8, v4, 8, v8")
    A("v_bfe_u32 v9, v5, 1, 2")
    A("v_lshl_add_u32 v8, v9, 6, v8")
    A(f"s_lshl_b32 {s(sT0)}, {s(sWAVE)}, 12")
    A(f"s_add_u32 {s(sT0)}, {s(sT0)}, {LDS_SUM:#x}")
    A(f"v_add_u32 v8, {s(sT0)}, v8")
    A(f"v_add_u32 v9, {s(sT0)}, {v(vL16)}")
    A(f"s_lshl_b32 {s(sT0)}, {s(sGW)}, 10")
    A(f"v_add_u32 v10, {s(sT0)}, {v(vL16)}")
    A(f"s_mov_b32 {s(sT0)}, 0x05040100")
    A(f"s_mov_b32 {s(sT1)}, 0x07060302")
    for i in range(4): A(f"v_mov_b32 {v(12+i)}, 0")
    A.wait_vm(lambda t: t == 'ga')
    PB_ = 128
    for i in range(4):
        for d in range(4):
            A(f"v_perm_b32 {v(PB_+4*i+d)}, {v(GA+2*(2*d+1)+(i>>1))}, {v(GA+2*(2*d)+(i>>1))}, {s(sT1 if i & 1 else sT0)}")
        A.lds(f"ds_write_b128 v8, {v(PB_+4*i,4)} offset:{16*i}", 'bw')
    A.wait_lg(lambda t: True)
    for f in range(4):
        A.lds(f"ds_read_b128 {v(144+4*f,4)}, v9 offset:{1024*f}", ('br', f))
    A.vmem(f"buffer_store_dwordx4 v[12:15], v10, {s(ST,4)}, 0 offen sc1", 'pub')
    A(f"s_add_u32 {s(sT0)}, {s(sDST)}, {s(sD1)}")
    A(f"s_add_u32 {s(sT1)}, {s(sDST)}, {s(sD2)}")
    A(f"s_add_u32 {s(sT2)}, {s(sT1)}, {s(sD1)}")
    for f, so in enumerate((sDST, sT0, sT1, sT2)):
        A.wait_lg(lambda t: t == ('br', f))
        A.vmem(f"buffer_store_dwordx4 {v(144+4*f,4)}, {v(vL16)}, {s(SP,4)}, {s(so)} offen sc1", 'pub')
    for j in range(12): xload(1, j)
    for d in range(4):
        for i in range(4):
            A(f"v_dot2_f32_bf16 {v(164+i)}, {v(PB_+4*i+d)}, {v(160+d)}, {v(164+i) if d else 0}")
    A("s_nop 3")
    A("v_permlane16_swap_b32 v164, v165")
    A("v_permlane16_swap_b32 v166, v167")
    A("s_nop 1")
    A("v_add_f32 v164, v164, v165")
    A("v_add_f32 v166, v166, v167")
    A("s_nop 1")
    A("v_permlane32_swap_b32 v164, v166")
    A("s_nop 1")
    A("v_add_f32 v164, v164, v166")
    A("v_accvgpr_write_b32 a192, v164")
    A.wait_vm(lambda t: t == 'dw')
    for i in range(48):
        A(f"v_and_b32 {v(DWL+i)}, 0xffff, {v(DWH+i)}")
        A(f"v_and_b32 {v(DWH+i)}, 0xffff0000, {v(DWH+i)}")

    sWM, sWEND, sRB, sPH = 40, 41, 42, 43
    def dma1(c, half):
        ld = [f"buffer_load_dwordx4 {v(vL16)}, {s(SD,4)}, {s(sWOFF)} offen offset:{i*1024} {OPT['wpol']} lds" for i in range(3)]
        m0 = [f"s_add_u32 m0, {s(sM0B)}, {c*24576 + half*3072:#x}" if c < 3 else f"s_add_u32 m0, {s(sWM)}, {half*3072}"]
        adv = [f"s_add_u32 {s(sWOFF)}, {s(sWOFF)}, {3072 if half == 0 else 24576-3072:#x}"]
        return m0, ld, adv
    def dma1_now(c, half):
        m0, ld, adv = dma1(c, half)
        A(m0[0]); A("s_nop 0")
        for l in ld: A.vmem(l, ('w', c))
        if (c, half) != (2, 1): A(adv[0])

    XL = 208
    vR0, vR1, vK0, vK1 = 12, 13, 14, 15
    A("v_and_b32 v8, 7, v5")
    A("v_xor_b32 v9, v8, v4")
    A("v_lshlrev_b32 v9, 4, v9")
    A("v_lshl_add_u32 v9, v5, 7, v9")
    A(f"v_add_u32 {v(vR0)}, {s(sXM)}, v9")
    A(f"v_xor_b32 {v(vR1)}, 64, {v(vR0)}")
    A(f"v_add_u32 {v(vK0)}, {LDS_XK:#x}, {v(vR0)}")
    A(f"v_add_u32 {v(vK1)}, {LDS_XK:#x}, {v(vR1)}")
    def xread(rt, ks, dst, tag):
        kp, par = divmod(ks, 2)
        if rt == 0: base, off = (vK0, vK1)[par], kp*8192
        elif rt == 2: base, off = (vR0, vR1)[par], kp*8192
        else: base, off = (vR0, vR1)[par], kp*8192
        A.lds(f"ds_read_b128 {dst}, {v(base)} offset:{off}", tag)
    T0, S0, S1, Q0, Q1 = 2, 2, 4, 6, 8
    vPA, vDUM = 10, 1
    def fetch(rt, kp):
        A.wait_vm(lambda t: t == ('x', rt, kp))
        for ks in (2*kp, 2*kp+1):
            if rt == 1: xread(rt, ks, a(208+4*ks, 4), 'keep')
            xread(rt, ks, v(XL+4*ks, 4), ('xl', rt, ks))
    for rt in range(4):
        XL = 208 if rt < 3 else 160
        extra = []
        if rt == 0: extra = [lambda j=j: xload(2, j) for j in range(12)]
        if rt in (1, 3):
            A(f"v_add_u32 {v(vR0)}, 49152, {v(vR0)}"); A(f"v_add_u32 {v(vR1)}, 49152, {v(vR1)}")
        if rt == 2:
            A(f"v_subrev_u32 {v(vR0)}, 49152, {v(vR0)}"); A(f"v_subrev_u32 {v(vR1)}, 49152, {v(vR1)}")
        fetch(rt, 0)
        for ks in range(12):
            if ks % 2 == 0 and ks < 10: fetch(rt, ks//2 + 1)
            A.wait_lg(lambda t: t == ('xl', rt, ks))
            for d in range(4):
                i = ks*4 + d
                A(f"v_dot2_f32_bf16 {v(Y0+2*i)}, {v(XL+i)}, {v(DWL+i)}, 0")
                A(f"v_dot2_f32_bf16 {v(Y0+2*i+1)}, {v(XL+i)}, {v(DWH+i)}, 0")
            if extra: extra.pop(0)()
            if rt == 1 and ks % 2 == 1:
                xload(3, ks-1); xload(3, ks)
            if ks == 0:
                A("s_nop 2")
                A(f"v_pk_add_f32 {v(S0,2)}, {v(Y0,2)}, {v(Y0+4,2)}")
                A(f"v_pk_mul_f32 {v(Q0,2)}, {v(Y0,2)}, {v(Y0,2)}")
                A(f"v_pk_add_f32 {v(S1,2)}, {v(Y0+2,2)}, {v(Y0+6,2)}")
                A(f"v_pk_mul_f32 {v(Q1,2)}, {v(Y0+2,2)}, {v(Y0+2,2)}")
                A(f"v_pk_fma_f32 {v(Q0,2)}, {v(Y0+4,2)}, {v(Y0+4,2)}, {v(Q0,2)}")
                A(f"v_pk_fma_f32 {v(Q1,2)}, {v(Y0+6,2)}, {v(Y0+6,2)}, {v(Q1,2)}")
            else:
                for d in range(4):
                    y = Y0 + 2*(ks*4+d)
                    S_, Q_ = (S0, Q0) if d % 2 == 0 else (S1, Q1)
                    A(f"v_pk_add_f32 {v(S_,2)}, {v(S_,2)}, {v(y,2)}")
                    A(f"v_pk_fma_f32 {v(Q_,2)}, {v(y,2)}, {v(y,2)}, {v(Q_,2)}")
        if rt == 0:
            A.wait_vm(lambda t: t == 'pub')
            A("s_barrier")
            signalA(A, 'sigA', XL)
        if rt == 2:
            for j in range(4): A(f"s_load_dword {s(82+j)}, {s(SDBG,2)}, {64*j}")
        A(f"v_pk_add_f32 {v(S0,2)}, {v(S0,2)}, {v(S1,2)}")
        A(f"v_pk_add_f32 {v(Q0,2)}, {v(Q0,2)}, {v(Q1,2)}")
        A(f"v_add_f32 {v(S0)}, {v(S0)}, {v(S0+1)}")
        A(f"v_add_f32 {v(Q0)}, {v(Q0)}, {v(Q0+1)}")
        xlane_sum(A, (S0, Q0), (S1, Q1))
        A(f"v_mul_f32 {v(S0)}, {f2u(1.0/384):#x}, {v(S0)}")
        A(f"v_mul_f32 {v(Q0)}, {f2u(1.0/384):#x}, {v(Q0)}")
        A(f"v_fma_f32 {v(Q0)}, -{v(S0)}, {v(S0)}, {v(Q0)}")
        A(f"v_max_f32 {v(Q0)}, 0, {v(Q0)}")
        A(f"v_cvt_pk_bf16_f32 {v(S1)}, {v(S0)}, {v(Q0)}")
        A(f"v_lshlrev_b32 {v(S0)}, 16, {v(S1)}")
        A(f"v_and_b32 {v(Q0)}, 0xffff0000, {v(S1)}")
        A(f"v_add_f32 {v(Q0)}, {f2u(1e-5):#x}, {v(Q0)}")
        A(f"v_cvt_pk_bf16_f32 {v(Q0)}, {v(Q0)}, {v(Q0)}")
        A(f"v_and_b32 {v(Q0)}, 0xffff0000, {v(Q0)}")
        A(f"v_sqrt_f32 {v(Q0)}, {v(Q0)}")
        A("s_nop 0")
        A(f"v_cvt_pk_bf16_f32 {v(Q0)}, {v(Q0)}, {v(Q0)}")
        A(f"v_and_b32 {v(Q0)}, 0xffff0000, {v(Q0)}")
        A(f"v_rcp_f32 {v(Q0)}, {v(Q0)}")
        A("s_nop 0")
        A(f"v_mul_f32 {v(Q1)}, {s(sA)}, {v(Q0)}")
        A(f"v_mul_f32_e64 {v(Q1+1)}, -{v(S0)}, {v(Q1)}")
        align8(A)
        for i0 in range(0, 48, 4):
            for i in range(i0, i0+4):
                A(f"v_pk_fma_f32 {v(Y0+2*i,2)}, {v(Y0+2*i,2)}, {v(Q1,2)}, {v(Q1,2)} op_sel:[0,0,1] op_sel_hi:[1,0,1]")
            for i in range(i0, i0+4):
                A(f"v_cvt_pk_bf16_f32 {v(T0+i%4)}, {v(Y0+2*i)}, {v(Y0+2*i+1)}")
            for i in range(i0, i0+4):
                A(f"v_accvgpr_write_b32 {a(rt*48+i)}, {v(T0+i%4)}")
        if rt == 2:
            stamp(A, 'ln2')
            pollA_smem(A, 82, vL16, 10, 11)
            A("s_barrier")
            for c in range(2):
                for h in range(2): dma1_now(c, h)
            if OPT['pf2']:
                A(f"s_lshl_b32 {s(sT0)}, {s(sWAVE)}, 12")
                A(f"v_lshl_add_u32 {v(vPA)}, {v(vL16)}, 2, {s(sT0)}")
                code_pf(A, 'L_k1_pre0', OPT['pf2'], T0, vPA, vDUM)
            A(f"v_and_b32 {v(T0)}, 0xf0, {v(vL16)}")
            A(f"v_lshrrev_b32 {v(T0+1)}, 8, {v(vL16)}")
            A(f"v_lshl_add_u32 {v(T0)}, {v(T0+1)}, 2, {v(T0)}")
            A(f"v_add_u32 {v(T0)}, {s(sBC)}, {v(T0)}")
            A.vmem(f"buffer_atomic_add_f32 a192, {v(T0)}, {s(ST,4)}, 0 offen sc1", 'bias')
    vRB, vSUMA = 2, 3
    for ks in range(12): xread(3, ks, v(160+4*ks, 4), 'keep')
    for ks in range(2): xread(0, ks, v(8+4*ks, 4), 'keep')
    A(f"v_mov_b32 {v(vRB)}, {v(vL16)}")
    A(f"v_lshrrev_b32 {v(vSUMA)}, 4, {v(vL16)}")
    A(f"v_and_b32 {v(vSUMA)}, 60, {v(vSUMA)}")
    A(f"s_add_u32 {s(sT0)}, {s(sM0B)}, {LDS_SUM - 64:#x}")
    A(f"v_add_u32 {v(vSUMA)}, {s(sT0)}, {v(vSUMA)}")
    A(f"s_add_u32 {s(sWM)}, {s(sM0B)}, {2*24576:#x}")
    A(f"s_add_u32 {s(sWEND)}, {s(sM0B)}, {4*24576:#x}")
    A(f"s_mov_b32 {s(sRB)}, 0")
    A(f"s_mov_b32 {s(sPH)}, 0")
    A(f"s_mov_b32 {s(sCNT)}, {15 if OPT['pf4'] else 16}")
    A.wait_vm(lambda t: t == ('w', 1))
    A.wait_lg(lambda t: True)
    A("s_barrier")
    stamp(A, 'k1')

    def AFr(gb, i): return a(192 + 4*i, 4) if gb % 2 == 0 else v(144 + 4*i, 4)
    Yr = lambda u: 16 + 16*((u+3) % 6)
    Tr = lambda u: 16 + 16*((u+1) % 6)
    Pq = lambda c, rt: (112 + 4*rt) if rt < 2 else (120 + 8*(c % 3) + 4*(rt-2))
    Sr = lambda u: 4
    NU = 96
    def dsread(gb, i):
        u, kb = divmod(gb, 3)
        return (f"ds_read_b128 {AFr(gb, i)}, {v(vRB)} offset:{((u % 2)*12 + kb*4 + i)*1024}", ('a', gb))
    def period(A, p, bargap):
        has_m = p < NU
        trans = []
        if p-1 < NU: trans += [f"v_exp_f32 {v(Tr(p-1)+i)}, {v(Tr(p-1)+i)}" for i in range(16)]
        if p-2 < NU: trans += [f"v_rcp_f32 {v(Tr(p-2)+i)}, {v(Tr(p-2)+i)}" for i in range(16)]
        u = p-3; c, ht = divmod(u, 2); T = Tr(u); S_ = Sr(u)
        cv = [f"v_cvt_pk_bf16_f32 {v(Pq(c, rt)+2*ht+d)}, {v(T+4*rt+2*d)}, {v(T+4*rt+2*d+1)}" for rt in range(4) for d in range(2)]
        dp = [f"v_add_f32_dpp {v(S_)}, {v(S_)}, {v(S_)} row_ror:8 row_mask:0xf bank_mask:0x3",
              f"v_add_f32_dpp {v(S_+1)}, {v(S_+1)}, {v(S_+1)} row_ror:8 row_mask:0xf bank_mask:0x3",
              f"v_add_f32_dpp {v(S_)}, {v(S_+2)}, {v(S_+2)} row_ror:8 row_mask:0xf bank_mask:0xc",
              f"v_add_f32_dpp {v(S_+1)}, {v(S_+3)}, {v(S_+3)} row_ror:8 row_mask:0xf bank_mask:0xc",
              f"v_add_f32_dpp {v(S_)}, {v(S_)}, {v(S_)} row_shl:4 row_mask:0xf bank_mask:0x5",
              f"v_add_f32_dpp {v(S_)}, {v(S_+1)}, {v(S_+1)} row_shr:4 row_mask:0xf bank_mask:0xa",
              f"v_add_f32_dpp {v(S_)}, {v(S_)}, {v(S_)} quad_perm:[2,3,0,1] row_mask:0xf bank_mask:0xf",
              f"v_add_f32_dpp {v(S_)}, {v(S_)}, {v(S_)} quad_perm:[1,0,3,2] row_mask:0xf bank_mask:0xf"]
        plain = dp + cv
        dsw = f"ds_write_b32 {v(vSUMA)}, {v(S_)} offset:{(p % 6)*64 - (384 if p % 6 == 5 else 0) + 64}"
        c2, hf = divmod(p-4, 2)
        rts = [2*hf, 2*hf+1] + ([2, 3] if p == NU+2 else [])
        stores = [f"buffer_store_dwordx4 {v(Pq(c2, rt),4)}, {v(vL16)}, {s(SH,4)}, {s(sH4+rt)} offen {OPT['hpol']}" for rt in rts]
        k = p // 2
        dm = dma1(k+3, p % 2) if has_m else None
        scal = []
        if p % 6 == 4: scal.append(f"s_mov_b32 {s(SH+2)}, {48*16384:#x}")
        for rt in (2*((p-5) % 2), 2*((p-5) % 2)+1): scal.append(f"s_add_u32 {s(sH4+rt)}, {s(sH4+rt)}, {16384:#x}")
        if p % 2 == 0:
            scal += [f"s_add_u32 {s(sWM)}, {s(sWM)}, 24576", f"s_cmp_eq_u32 {s(sWM)}, {s(sWEND)}", f"s_cselect_b32 {s(sWM)}, {s(sM0B)}, {s(sWM)}"]
        else:
            scal += [f"s_add_u32 {s(sRB)}, {s(sRB)}, 24576", f"s_cmp_eq_u32 {s(sRB)}, {4*24576}", f"s_cselect_b32 {s(sRB)}, 0, {s(sRB)}"]
        scal += dma1((p-1)//2+3, (p-1) % 2)[2] + dm[0]
        lastp = (p % 6 == 5)
        if lastp: scal += [f"s_sub_u32 {s(sCNT)}, {s(sCNT)}, 1", f"s_cmp_lg_u32 {s(sCNT)}, 0"]
        bar = has_m and p % 2 == 0
        if has_m:
            gap = 0
            for kb in range(3):
                gb = p*3 + kb
                seq = [(rt, ks if rt % 2 == 0 else 3-ks) for rt in range(4) for ks in range(4)]
                for n, (rt, kk) in enumerate(seq):
                    D = v(Yr(p)+4*rt, 4)
                    Cc = '0' if (kb == 0 and n % 4 == 0) else D
                    A(f"v_mfma_f32_16x16x32_bf16 {D}, {AFr(gb, kk)}, {a(rt*48+(kb*4+kk)*4,4)}, {Cc}")
                    w1 = A.wait_lg_str(lambda t: t == ('a', gb+1)) if (gap in (15, 31, 46)) else None
                    w2 = A.wait_vm_str(lambda t: t == ('w', k+1)) if (bar and gap == bargap-1) else None
                    if w1 and w2: A(w2 + ' ' + w1.split()[1])
                    elif w1 or w2: A(w1 or w2)
                    elif bar and gap == bargap: pass
                    elif scal and n % 2 == 0: A(scal.pop(0))
                    if bar and gap == bargap: A("s_barrier")
                    if gap == 47: break
                    if n in (1, 3, 5, 7):
                        A.lds(*dsread(gb+1, n//2))
                        A(plain.pop(0))
                    elif gap in (41, 43):
                        A(plain.pop(0)); A(plain.pop(0))
                    elif gap == 26:
                        assert not scal
                        A.lds(dsw, 's')
                        if p % 6 == 4: A(f"v_add_u32 {v(vSUMA)}, 384, {v(vSUMA)}")
                        if p % 2 == 1: A(f"v_add_u32 {v(vRB)}, {s(sRB)}, {v(vL16)}")
                    else:
                        l = trans.pop(0)
                        if gap == 46:
                            extra4 = 4 if (bar and bargap == 47) else 0
                            if (A.pc + 4 + extra4) % 8: l = l.replace('_f32', '_f32_e64')
                        A(l)
                    gap += 1
            assert not trans and not plain and not scal, (p, trans, plain, scal)
            assert A.pc % 8 == 0
        else:
            for l in scal + trans + plain: A(l)
            A.lds(dsw, 's')
            align8(A)
        dl = list(dm[1]) if dm else []
        st = list(stores)
        while st or dl:
            if st: A.vmem(st.pop(0), 'st')
            if dl: A.vmem(dl.pop(0), ('w', k+3))
        pb, pq = [], []
        if p-2 < NU:
            u = p-2; T = Tr(u); Y = Yr(u); S_ = Sr(u)
            for i in range(0, 16, 2): A(f"v_pk_mul_f32 {v(T+i,2)}, {v(T+i,2)}, {v(Y+i,2)}")
            for rt in range(4):
                for d in (0, 2):
                    if rt == 0: pq.append(f"v_pk_mul_f32 {v(S_+d,2)}, {v(T+d,2)}, {v(T+d,2)}")
                    else: pq.append(f"v_pk_fma_f32 {v(S_+d,2)}, {v(T+4*rt+d,2)}, {v(T+4*rt+d,2)}, {v(S_+d,2)}")
        if p-1 < NU:
            T = Tr(p-1)
            pb = [f"v_pk_fma_f32 {v(T+i,2)}, {v(T+i,2)}, {s(sA,2)}, {s(sA,2)}" for i in range(0, 16, 2)]
        while pb or pq:
            if pq: A(pq.pop(0))
            if pb: A(pb.pop(0))
        if has_m:
            T = Tr(p); Y = Yr(p)
            for i in range(0, 16, 2): A(f"v_pk_fma_f32 {v(T+i,2)}, {v(Y+i,2)}, {v(Y+i,2)}, {s(sK,2)}")
            for i in range(0, 16, 2): A(f"v_pk_mul_f32 {v(T+i,2)}, {v(T+i,2)}, {v(Y+i,2)} neg_lo:[1,0] neg_hi:[1,0]")

    for i in range(4): A.lds(*dsread(0, i))
    for h in range(2): dma1_now(2, h)
    ncopy = 4 if OPT['skew'] else 1
    for w in range(1, ncopy):
        A(f"s_cmp_eq_u32 {s(sWAVE)}, {w}")
        A(f"s_cbranch_scc1 L_k1_pre{w}")
    final_state = None
    for w in range(ncopy):
        A.label(f"L_k1_pre{w}")
        A("s_waitcnt lgkmcnt(0)")
        align8(A)
        bodies = []
        B = Asm()
        B.vm = [('w', 1)] + ['st']*4 + [('w', 2)]*6
        for it in range(16):
            start = len(B.lines)
            for p in range(it*6, it*6+6): period(B, p, 47 - OPT['skew']*w)
            bodies.append(B.lines[start:])
        assert all(b == bodies[0] for b in bodies)
        A.label(f"L_k1_loop{w}")
        for l in bodies[0]:
            if OPT['drop'] and re.match(OPT['drop'], l): continue
            A(l)
        A(f"s_cbranch_scc1 L_k1_loop{w}")
        if OPT['pf4']:
            A(f"s_cmp_lg_u32 {s(sPH)}, 0")
            A("s_cbranch_scc1 L_k1_tail")
            A(f"s_mov_b32 {s(sPH)}, 1")
            A(f"s_mov_b32 {s(sCNT)}, 1")
            A(f"s_lshl_b32 {s(sT0)}, {s(sWAVE)}, 12")
            A(f"v_lshl_add_u32 {v(Yr(0)+3)}, {v(vL16)}, 2, {s(sT0)}")
            code_pf(A, 'L_k1_tail', OPT['pf4'], Yr(0), Yr(0)+3, vDUM)
            A(f"s_branch L_k1_loop{w}")
        elif w < ncopy-1: A("s_branch L_k1_tail")
        final_state = (B.vm, B.lg)
    A.label("L_k1_tail")
    A.vm, A.lg = list(final_state[0]), list(final_state[1])
    def dpp_ops(S_):
        f = lambda d, x, ctl: f"v_add_f32_dpp {v(d)}, {v(x)}, {v(x)} {ctl}"
        return [f(S_, S_, "row_ror:8 row_mask:0xf bank_mask:0x3"), f(S_+1, S_+1, "row_ror:8 row_mask:0xf bank_mask:0x3"),
                f(S_, S_+2, "row_ror:8 row_mask:0xf bank_mask:0xc"), f(S_+1, S_+3, "row_ror:8 row_mask:0xf bank_mask:0xc"),
                f(S_, S_, "row_shl:4 row_mask:0xf bank_mask:0x5"), f(S_, S_+1, "row_shr:4 row_mask:0xf bank_mask:0xa"),
                f(S_, S_, "quad_perm:[2,3,0,1] row_mask:0xf bank_mask:0xf"), f(S_, S_, "quad_perm:[1,0,3,2] row_mask:0xf bank_mask:0xf")]
    def tr(op, u): return [f"{op} {v(Tr(u)+i)}, {v(Tr(u)+i)}" for i in range(16)]
    def pkC(u):
        T, Y, S_ = Tr(u), Yr(u), Sr(u)
        o = [f"v_pk_mul_f32 {v(T+i,2)}, {v(T+i,2)}, {v(Y+i,2)}" for i in range(0, 16, 2)]
        for rt in range(4):
            for d in (0, 2):
                if rt == 0: o.append(f"v_pk_mul_f32 {v(S_+d,2)}, {v(T+d,2)}, {v(T+d,2)}")
                else: o.append(f"v_pk_fma_f32 {v(S_+d,2)}, {v(T+4*rt+d,2)}, {v(T+4*rt+d,2)}, {v(S_+d,2)}")
        return o
    BS = 32
    def cvts(u):
        c, ht = divmod(u, 2); T = Tr(u)
        return [f"v_cvt_pk_bf16_f32 {v(BS+16*(c-46)+4*rt+2*ht+d)}, {v(T+4*rt+2*d)}, {v(T+4*rt+2*d+1)}" for rt in range(4) for d in range(2)]
    def weave(dpp, fill):
        fill = list(fill)
        for d in dpp:
            A(fill.pop(0)); A(fill.pop(0)); A(d)
        for l in fill: A(l)
    def sumw(u): A.lds(f"ds_write_b32 {v(vSUMA)}, {v(Sr(u))} offset:{(u-93)*64 + 64}", 's')
    A(f"v_subrev_u32 {v(vSUMA)}, 6144, {v(vSUMA)}")
    weave(dpp_ops(Sr(93)), tr('v_exp_f32', 95)); sumw(93)
    for l in tr('v_rcp_f32', 94): A(l)
    align8(A)
    for i in range(0, 16, 2): A(f"v_pk_fma_f32 {v(Tr(95)+i,2)}, {v(Tr(95)+i,2)}, {s(sA,2)}, {s(sA,2)}")
    for l in pkC(94): A(l)
    weave(dpp_ops(Sr(94)), tr('v_rcp_f32', 95)); sumw(94)
    align8(A)
    for l in pkC(95): A(l)
    weave(dpp_ops(Sr(95)), cvts(93) + cvts(94)); sumw(95)
    stamp(A, 'k1end')

    def acc(t, rt):
        r = {2: 0, 1: 96, 3: 192, 0: 288}[rt] + 4*t
        return a(r, 4) if r < 256 else v(r - 128, 4)
    def accname(t, rt, i):
        r = {2: 0, 1: 96, 3: 192, 0: 288}[rt] + 4*t + i
        return ('a', r) if r < 256 else ('v', r - 128)
    A("s_waitcnt lgkmcnt(0)"); A.lg = []
    A("s_barrier")
    vTID4 = 4
    A(f"v_lshrrev_b32 {v(vTID4)}, 2, {v(vL16)}")
    A(f"s_lshl_b32 {s(sT0)}, {s(sWAVE)}, 8")
    A(f"v_add_u32 {v(vTID4)}, {s(sT0)}, {v(vTID4)}")
    A(f"v_add_u32 v5, {LDS_SUM + 192:#x}, {v(vTID4)}")
    A(f"v_cmp_lt_u32 vcc, {208*4-1}, {v(vTID4)}")
    A(f"v_subrev_u32 v7, 6144, v5")
    RB = 64
    for q in range(6):
        if q == 5: A("v_cndmask_b32 v5, v5, v7, vcc")
        for w in range(4): A.lds(f"ds_read_b32 {v(RB+4*q+w)}, v5 offset:{w*6144 + q*1024}", ('r', q))
    A(f"v_and_b32 v6, {0xe3*4:#x}, {v(vTID4)}")
    A(f"v_bfe_u32 v7, {v(vTID4)}, 4, 2")
    A("v_lshl_add_u32 v6, v7, 5, v6")
    A(f"v_bfe_u32 v7, {v(vTID4)}, 6, 1")
    A("v_lshl_add_u32 v6, v7, 4, v6")
    A(f"s_lshr_b32 {s(sT0)}, s2, 3")
    A(f"s_and_b32 {s(sT0)}, {s(sT0)}, {NREP-1}")
    A(f"s_mul_i32 {s(sT0)}, {s(sT0)}, 6144")
    A(f"s_add_u32 {s(sT1)}, {s(sT0)}, 3072")
    for q in range(6):
        A.wait_lg(lambda t: t == ('r', q))
        r = RB+4*q
        A(f"v_add_f32 {v(r)}, {v(r)}, {v(r+1)}")
        A(f"v_add_f32 {v(r+2)}, {v(r+2)}, {v(r+3)}")
        A(f"v_add_f32 {v(r)}, {v(r)}, {v(r+2)}")
        A.vmem(f"buffer_atomic_add_f32 {v(r)}, v6, {s(ST,4)}, {s(sT0 if q < 3 else sT1)} offen offset:{(q%3)*1024} sc1", 'at')
    stamp(A, 'atom')
    for l in cvts(95): A(l)
    for rt in range(4):
        for d in range(2): A(f"v_mov_b32 {v(BS+4*rt+d)}, {v(Pq(46, rt)+d)}")
    vK0, vK1 = 2, 3
    A(f"v_lshrrev_b32 v5, 8, {v(vL16)}")
    A(f"v_bfe_u32 v7, {v(vL16)}, 4, 3")
    A("v_xor_b32 v7, v7, v5")
    A(f"v_and_b32 {v(vK0)}, 0xf0, {v(vL16)}")
    A(f"v_lshlrev_b32 {v(vK0)}, 3, {v(vK0)}")
    A(f"v_lshl_add_u32 {v(vK0)}, v7, 4, {v(vK0)}")
    A(f"s_lshl_b32 {s(sT0)}, {s(sWAVE)}, 11")
    A(f"s_add_u32 {s(sT0)}, {s(sT0)}, {LDS_XK:#x}")
    A(f"v_add_u32 {v(vK0)}, {s(sT0)}, {v(vK0)}")
    A(f"v_xor_b32 {v(vK1)}, 64, {v(vK0)}")
    XK = 56
    for u in range(2, 12):
        A.lds(f"ds_read_b128 {v(XK+4*u,4)}, {v((vK0, vK1)[u % 2])} offset:{(u//2)*8192}", ('xk', u))
    SEL = 24
    A(f"v_lshrrev_b32 v5, 8, {v(vL16)}")
    A(f"v_bfe_u32 v7, {v(vL16)}, 6, 2")
    A("v_cmp_eq_u32 vcc, v5, v7")
    A(f"v_and_b32 v5, 16, {v(vL16)}")
    A("v_mov_b32 v7, 0x3f80")
    A("v_lshlrev_b32 v7, v5, v7")
    A("v_cndmask_b32 v7, 0, v7, vcc")
    A(f"v_and_b32 v5, 32, {v(vL16)}")
    A("v_cmp_eq_u32 vcc, 0, v5")
    for i in (0, 1, 4, 5): A(f"v_mov_b32 {v(SEL+i)}, 0")
    A(f"v_cndmask_b32 {v(SEL+2)}, 0, v7, vcc")
    A(f"v_sub_u32 {v(SEL+3)}, v7, {v(SEL+2)}")
    A("s_nop 1")
    def xinit(rt, u, src):
        for e in range(2):
            A(f"v_mfma_f32_16x16x32_bf16 {acc(2*u+e, rt)}, {v(SEL+2-2*e,4)}, {src}, 0")
    for u in range(12): xinit(2, u, v(208+4*u, 4))
    for u in range(12): xinit(1, u, a(208+4*u, 4))
    A.wait_vm(lambda t: t == 'at')
    A("s_barrier")
    stamp(A, 'sigB')
    arrive_issue(A, 'arrB', 6, 4, 1)
    sHOFF, sINV, sSH = 28, 29, 30
    A(f"s_add_u32 {s(SD)}, {s(SD)}, {W2P-W1P:#x}")
    A(f"s_addc_u32 {s(SD+1)}, {s(SD+1)}, 0")
    A(f"s_mov_b32 {s(SD+2)}, {2*W_BYTES:#x}")
    A(f"s_mul_i32 {s(sM0B)}, {s(sWAVE)}, 12288")
    A(f"s_add_u32 {s(sWOFF)}, {s(sM0B)}, {23*49152:#x}")
    A(f"s_lshl_b32 {s(sHOFF)}, {s(sWAVE)}, 10")
    vPA, vPD = 8, 9
    A(f"v_and_b32 {v(vXO)}, 0xf0, {v(vL16)}")
    A(f"v_mul_u32_u24 {v(vXO)}, 48, {v(vXO)}")
    A(f"v_lshrrev_b32 v5, 8, {v(vL16)}")
    A(f"v_lshl_add_u32 {v(vXO)}, v5, 4, {v(vXO)}")
    for u in range(12): xinit(3, u, v(160+4*u, 4))
    A.wait_lg(lambda t: True)
    for u in range(12): xinit(0, u, v(8+4*u if u < 2 else XK+4*u, 4))
    arrive_finish(A, 'arrB', 6, 4, 1)
    stamp(A, 'arr')
    if OPT['hold']: A("s_barrier")
    GB, SHF = 10, 112
    for q in range(3):
        A.vmem(f"buffer_load_dword {v(GB+q)}, {v(vTID4)}, {s(SG,4)}, 0 offen offset:{q*1024}", 'gb')
    A(f"s_add_u32 {s(sT1)}, {s(sGW)}, 96")
    A(f"s_lshl_b32 {s(sSH)}, {s(sT1)}, 10")
    A.vmem(f"buffer_load_dwordx4 {v(SHF,4)}, {v(vL16)}, {s(SD,4)}, {s(sSH)} offen sc1", 'gb')
    A(f"s_add_u32 {s(sSH)}, {s(sSH)}, {W_BYTES:#x}")
    A(f"s_mul_hi_u32 {s(sT0)}, {s(sT1)}, 0x5555556")
    A(f"s_and_b32 {s(sT1)}, {s(sT1)}, 1")
    A(f"s_lshl_b32 {s(sT0)}, {s(sT0)}, 1")
    A(f"s_add_u32 {s(sT0)}, {s(sT0)}, {s(sT1)}")
    A(f"s_lshl_b32 s31, {s(sT0)}, 7")
    def dma2_line(i): return f"buffer_load_dwordx4 {v(vL16)}, {s(SD,4)}, {s(sWOFF)} offen offset:{(i%4)*1024} {OPT['wpol']} lds"
    def dma2_ops(pos):
        ops = []
        for i in range(12):
            pre = []
            if i % 4 == 0:
                if i: pre.append(f"s_add_u32 {s(sWOFF)}, {s(sWOFF)}, 4096")
                elif pos == 1: pre.append(f"s_mov_b32 {s(sWOFF)}, {s(sM0B)}")
                elif pos == 3: pre.append(f"s_add_u32 {s(sWOFF)}, {s(sWOFF)}, {49152-8192+W_BYTES:#x}")
                elif pos: pre.append(f"s_add_u32 {s(sWOFF)}, {s(sWOFF)}, {49152-8192}")
                pre.append(f"s_add_u32 m0, {s(sM0B)}, {(pos % 3)*49152 + i*1024:#x}")
            ops.append((pre, dma2_line(i), ('w2', pos), []))
        return ops
    for pre, l, tg, _ in dma2_ops(0):
        for x in pre: A(x)
        if pre: A("s_nop 0")
        A.vmem(l, tg)
    vB1, vB2, TMP, RAW, AR, BQ, vTAB, vSA, vSD, vPL = 2, 3, 4, 16, 96, 120, 124, 125, 126, 127
    SQ = (8, 12)
    SETC = [16, 20, 24, 28, 4, 8, 12, 120]
    def hreg(pos, f):
        if pos < 2: return BS + 32*pos + 4*f
        return (SETC[f], BS + 32 + 4*f, BS + 4*f)[pos % 3]
    def hline(dst): return f"buffer_load_dwordx4 {v(dst,4)}, {v(vL16)}, {s(SH,4)}, {s(sHOFF)} offen {OPT['hlpol']}"
    hadv = f"s_add_u32 {s(sHOFF)}, {s(sHOFF)}, 4096"
    def h_ops(pos, fs, raw=False):
        return [([], hline(RAW + 4*f if raw else hreg(pos, f)), ('h', pos, f//4), [hadv]) for f in fs]
    for _, l, tg, _ in h_ops(1, range(4), raw=True) + h_ops(1, range(4, 8)):
        A.vmem(l, tg); A(hadv)
    A(f"v_add_u32 {v(vB1)}, 0x10000, {v(vL16)}")
    A(f"v_add_u32 {v(vB2)}, 0x20000, {v(vL16)}")
    A(f"v_lshrrev_b32 {v(vTAB)}, 8, {v(vL16)}")
    A(f"v_lshlrev_b32 {v(vTAB)}, 5, {v(vTAB)}")
    A(f"v_add_u32 {v(vTAB)}, {LDS_TAB:#x}, {v(vTAB)}")
    A(f"v_add_u32 v13, s31, {v(vTAB)}")
    A(f"v_cmp_eq_u32 vcc, 256, {v(vTID4)}")
    A(f"s_lshr_b32 {s(sT0)}, s2, 3")
    A(f"s_and_b32 {s(sT0)}, {s(sT0)}, 15")
    A(f"s_lshl_b32 {s(sT0)}, {s(sT0)}, 8")
    A(f"s_add_u32 {s(sT0)}, {s(sT0)}, {CNT_C:#x}")
    A(f"v_mov_b32 {v(vSA)}, 0x100000")
    A(f"v_mov_b32 {v(vSD)}, {s(sT0)}")
    A(f"v_cndmask_b32 {v(vSA)}, {v(vSA)}, {v(vSD)}, vcc")
    A(f"v_mov_b32 {v(vSD)}, 1")
    A(f"v_lshlrev_b32 v5, 1, {v(vTID4)}")
    A(f"s_lshl_b32 {s(sT0)}, {s(sWAVE)}, 8")
    A(f"s_add_u32 m0, {s(sT0)}, {LDS_TAB + 6144:#x}")
    A(f"s_lshl_b32 {s(sT0)}, {s(sWAVE)}, 2")
    A(f"s_add_u32 {s(sT0)}, {s(sT0)}, {LDS_RED:#x}")
    A(f"v_mov_b32 v14, {s(sT0)}")
    A(f"v_mov_b32 v15, {LDS_RED:#x}")
    A.wait_vm(lambda t: t == 'gb')
    GF = 96
    for q in range(3):
        A(f"v_lshlrev_b32 {v(GF+2*q)}, 16, {v(GB+q)}")
        A(f"v_and_b32 {v(GF+2*q+1)}, 0xffff0000, {v(GB+q)}")
    SU = 104
    for d in range(4):
        A(f"v_lshlrev_b32 {v(SU+2*d)}, 16, {v(SHF+d)}")
        A(f"v_and_b32 {v(SU+2*d+1)}, 0xffff0000, {v(SHF+d)}")
    A(f"s_cmp_lg_u32 {s(sWAVE)}, 0")
    A("s_cbranch_scc1 L_pollB_ok")
    keep = list(A.vm)
    poll_issue(A, 'pollB', vPA, vPD, 4)
    poll(A, 'pollB', vPA, vPD, 4)
    A.vm = keep
    A("s_barrier")
    stamp(A, 'go')
    SR = 64
    assert NREP*6 <= 16
    for r in range(NREP):
        A(f"s_mov_b32 {s(sT0)}, {r*6144:#x}")
        A(f"s_mov_b32 {s(sT1)}, {r*6144 + 4096:#x}")
        for q in range(3):
            A.vmem(f"buffer_load_dwordx2 {v(SR+(r*3+q)*2,2)}, v5, {s(ST,4)}, {s(sT1 if q == 2 else sT0)} offen offset:{(q%2)*2048} sc1", 'sum')
    A(f"s_mov_b32 {s(sT0)}, {NREP*6144:#x}")
    for j in range(2):
        A.vmem(f"buffer_load_dword {v(vTID4)}, {s(ST,4)}, {s(sT0)} offen offset:{j*1024} sc1 lds", 'biasld')
    A(f"v_add_u32 v5, {LDS_TAB:#x}, v5")
    A.wait_vm(lambda t: t == 'sum')
    for r in range(1, NREP):
        for i in range(6): A(f"v_add_f32 {v(SR+i)}, {v(SR+i)}, {v(SR+r*6+i)}")
    for i in range(6): A(f"v_add_f32 {v(SR+i)}, {f2u(1e-6):#x}, {v(SR+i)}")
    for i in range(6): A(f"v_sqrt_f32 {v(SR+i)}, {v(SR+i)}")
    A("s_nop 0")
    A(f"v_add_f32 v6, {v(SR)}, {v(SR+1)}")
    for i in range(2, 6): A(f"v_add_f32 v6, v6, {v(SR+i)}")
    for j, n in enumerate((8, 4, 2, 1)):
        if j < 3:
            for i in (2*j, 2*j+1): A(f"v_mul_f32 {v(SR+i)}, {v(SR+i)}, {v(GF+i)}")
        else: A("s_nop 1")
        A(f"v_add_f32_dpp v6, v6, v6 row_ror:{n} row_mask:0xf bank_mask:0xf")
    for q in range(3): A.lds(f"ds_write_b64 v5, {v(SR+2*q,2)} offset:{q*2048}", 'tb')
    xlane_sum(A, (6,), (7,))
    A.lds("ds_write_b32 v14, v6", 'tb')
    A(f"v_mov_b32 v6, {f2u(1e-6):#x}")
    A.wait_vm(lambda t: t == 'biasld')
    A.wait_lg(lambda t: True)
    A("s_barrier")
    S8, SS = 64, 112
    A.lds("ds_read_b128 v[8:11], v15", 'red')
    for hh in range(2): A.lds(f"ds_read_b128 {v(SS+4*hh,4)}, v13 offset:{hh*16}", 'ss')
    for k2 in range(2):
        for hh in range(2):
            A.lds(f"ds_read_b128 {v(S8+8*k2+4*hh,4)}, {v(vTAB)} offset:{23*256 + k2*128 + hh*16}", 't0')
    A.wait_lg(lambda t: t == 'red')
    A("v_add_f32 v8, v8, v9")
    A("v_add_f32 v10, v10, v11")
    A("v_add_f32 v8, v8, v10")
    A(f"v_fmac_f32 v6, {f2u(1.0/1536):#x}, v8")
    A("v_rcp_f32 v6, v6")
    A.wait_lg(lambda t: t == 'ss')
    for i in range(8): A(f"v_fma_f32 {v(SS+i)}, {v(SS+i)}, v6, 1.0")
    A(f"v_readfirstlane_b32 {s(sINV)}, v6")
    for d in range(4): A(f"v_pk_mul_f32 {v(SU+2*d,2)}, {v(SU+2*d,2)}, {v(SS+2*d,2)}")
    for d in range(4): A(f"v_cvt_pk_bf16_f32 {v(BQ+d)}, {v(SU+2*d)}, {v(SU+2*d+1)}")
    A.vmem(f"buffer_store_dwordx4 {v(BQ,4)}, {v(vL16)}, {s(SD,4)}, {s(sSH)} offen sc1", 'share')
    def dsA(idx, step, k2):
        pos, t = step
        ad = (pos % 3)*49152 + (t*2+k2)*1024
        return (f"ds_read_b128 {v(AR + 8*(idx % 3) + 4*k2, 4)}, {v((vL16, vB1, vB2)[ad >> 16])} offset:{ad & 0xffff}", ('a2', idx))
    for i in range(2):
        for k2 in range(2): A.lds(*dsA(i, (0, i), k2))
    A.wait_lg(lambda t: t == 't0')
    for i in range(16): A(f"v_fma_f32 {v(S8+i)}, {v(S8+i)}, v6, 1.0")
    A(f"s_mov_b32 {s(sT2)}, 0xffff0000")
    align8(A)
    for k2 in range(2):
        for rt in range(4):
            F = BS + (k2*4+rt)*4
            T8 = 8
            for d in range(4):
                A(f"v_lshlrev_b32 {v(T8+2*d)}, 16, {v(F+d)}")
                A(f"v_and_b32 {v(T8+2*d+1)}, {s(sT2)}, {v(F+d)}")
            for d in range(4):
                A(f"v_pk_mul_f32 {v(T8+2*d,2)}, {v(T8+2*d,2)}, {v(S8+8*k2+2*d,2)}")
            for d in range(4):
                A(f"v_cvt_pk_bf16_f32 {v(F+d)}, {v(T8+2*d)}, {v(T8+2*d+1)}")
    sPF = 20
    A(f"s_getpc_b64 {s(sPF,2)}")
    A.label("L_pcl")
    A(f"s_add_u32 {s(sPF)}, {s(sPF)}, L_k3_last-L_pcl"); A.pc += 4
    A(f"s_addc_u32 {s(sPF+1)}, {s(sPF+1)}, 0")
    A(f"s_lshl_b32 {s(sPF+2)}, {s(sWAVE)}, 12")
    A(f"s_mov_b32 {s(sCNT)}, 6")
    A(f"s_mov_b32 {s(sPF+3)}, {0xf0 if OPT['hpf'] == 3 else 0x70}")
    srd(A, SP, SH, 0)
    A(f"s_lshl_b32 {s(sT1)}, {s(sWAVE)}, 10")
    A(f"s_add_u32 {s(sT1)}, {s(sT1)}, {44*16384:#x}")
    if OPT['fakest']:
        for rt in range(4):
            for j in range(3): A(f"s_add_u32 {s(82+rt*3+j)}, {s(sXO+rt)}, {j*4096}")
    A.wait_lg(lambda t: t == ('a2', 0))
    stamp(A, 'k3')

    def run(A, idx0, steps, after, vm, at, prog):
        allsteps = steps + after
        scal = []
        for i, (pos, t) in enumerate(steps):
            idx = idx0 + i
            q = list(vm.get(i, []))
            vgaps = {0: (), 1: (4,), 2: (4, 6), 3: (2, 4, 6)}[len(q)]
            if q: scal = list(q[0][0]) + scal
            stamp(A, f"s{idx}")
            for n in range(8):
                rt, k2 = n//2, n % 2
                kk = k2 if rt % 2 == 0 else 1-k2
                D = acc(t, rt)
                A(f"v_mfma_f32_16x16x32_bf16 {D}, {v(AR+8*(idx%3)+4*kk,4)}, {v(hreg(pos, kk*4+rt),4)}, {D}")
                slots = 2
                wl, wv, bar, raw = [], [], False, []
                if n == 7: wl.append(('a2', idx+1))
                for act in at.get((i, n), []):
                    if act[0] == 'wv': wv.append(act[1])
                    elif act[0] == 'bar': bar = True
                    elif act[0] == 'scal': scal = scal + act[1]
                    elif act[0] == 'raw': raw.append(act[1])
                if not bar and (wl or wv or not scal):
                    while prog and prog[0][0] in ('wl', 'wv') and prog[0][2] <= i:
                        k_, tg, _ = prog.pop(0)
                        (wl if k_ == 'wl' else wv).append(tg)
                for tg in wv:
                    assert not any(o[2] == tg for j in range(i+1, len(steps)) for o in vm.get(j, [])) and not any(o[2] == tg for o in q), (tg, i, n)
                w1 = A.wait_lg_str(lambda tg: tg in wl)
                w2 = A.wait_vm_str(lambda tg: tg in wv)
                if w1 and w2: A(w2 + ' ' + w1.split()[1])
                elif w1 or w2: A(w1 or w2)
                elif bar: pass
                elif scal: A(scal.pop(0))
                if bar: A("s_barrier"); slots = 0
                for f in raw: f(A); slots = 0
                valu = False
                if n in (0, 1) and i+2 < len(allsteps):
                    A.lds(*dsA(idx+2, allsteps[i+2], n)); slots -= 1
                elif n in vgaps:
                    assert slots == 2, (i, n)
                    o = q.pop(0)
                    while any(x in scal for x in o[0]) or hadv in scal:
                        A(scal.pop(0))
                        if not (any(x in scal for x in o[0]) or hadv in scal): A("s_nop 0")
                    if A.lines[-1].startswith(('s_add_u32 m0', 's_mov_b32 m0')): A("s_nop 0")
                    if len(o) > 4: o[4]()
                    A.vmem(o[1], o[2]); slots = 0
                    scal = list(o[3]) + (list(q[0][0]) if q else []) + scal
                while slots > 0 and prog and prog[0][2] <= i:
                    kind, pay, _ = prog[0]
                    if kind == 'v':
                        if isinstance(pay, tuple):
                            assert abs(pay[1] - t) >= 2, (pay, t)
                            pay = pay[0]
                        A(pay); slots -= 1; valu = True
                    elif kind == 'lds':
                        if valu: break
                        A.lds(*pay); slots -= 1
                    elif kind == 'st':
                        if slots < 2: break
                        A.vmem(pay, 'o'); slots = 0
                    elif kind == 'mark':
                        pay()
                    else: break
                    prog.pop(0)
            assert not q
        assert not scal, scal
        return prog

    def spread(ops, first, per):
        d = {}
        for j, o in enumerate(ops): d.setdefault(first + j//per, []).append(o)
        return d
    def merge(*ds):
        r = {}
        for d in ds:
            for k_, l in d.items(): r.setdefault(k_, []).extend(l)
        return r
    def biasrd(q, t): return (f"ds_read_b128 {v(q,4)}, {v(vTAB)} offset:{6144 + (t>>1)*128 + (t&1)*16}", ('bq', t))
    def bias_prog(tiles):
        qs = (BQ, TMP)
        pr = [('lds', biasrd(qs[0], tiles[0][0]), 0)]
        for j, (t, ms) in enumerate(tiles):
            if j+1 < len(tiles): pr.append(('lds', biasrd(qs[(j+1) % 2], tiles[j+1][0]), 0))
            pr.append(('wl', ('bq', t), ms))
            for rt in range(4):
                f, r0 = accname(t, rt, 0)
                if f == 'v':
                    for r in range(4): pr.append(('v', (f"v_add_f32 {v(r0+r)}, {v(r0+r)}, {v(qs[j % 2]+r)}", t), ms))
        return pr
    done = {}
    def conv_prog(pos, starts):
        rd = lambda g4: ('lds', (f"ds_read_b128 {v(SQ[g4 % 2],4)}, {v(vTAB)} offset:{(pos-1)*256 + (g4//2)*128 + (g4%2)*16}", ('tab', g4)), 0)
        pr = [rd(0), rd(1)]
        head = list(pr); pr = []
        for g4 in range(4):
            k2, hh = divmod(g4, 2)
            Q = SQ[g4 % 2]; ms = starts[k2]
            pr += [('wl', ('tab', g4), ms), ('wv', ('h', pos, k2), ms)]
            for j in range(4): pr.append(('v', f"v_fma_f32 {v(Q+j)}, {v(Q+j)}, {s(sINV)}, 1.0", ms))
            for rt in range(4):
                dst = hreg(pos, k2*4+rt) + 2*hh
                src = (RAW + 4*rt + 2*hh) if k2 == 0 else dst
                for d in range(2):
                    pr.append(('v', f"v_lshlrev_b32 {v(TMP+2*d)}, 16, {v(src+d)}", ms))
                    pr.append(('v', f"v_and_b32 {v(TMP+2*d+1)}, {s(sT2)}, {v(src+d)}", ms))
                for j in range(4): pr.append(('v', f"v_mul_f32 {v(TMP+j)}, {v(TMP+j)}, {v(Q+j)}", ms))
                for d in range(2): pr.append(('v', f"v_cvt_pk_bf16_f32 {v(dst+d)}, {v(TMP+2*d)}, {v(TMP+2*d+1)}", ms))
            if g4+2 < 4: pr.append(rd(g4+2))
            if g4 == 1: pr.append(('mark', lambda: done.__setitem__(pos, True), 0))
        return head, pr
    def need(pos):
        def f(): assert done.get(pos), pos
        return f
    blk = lambda pos: [(pos, t) for t in range(24)]

    head, cv = conv_prog(1, (0, 0))
    vm = merge(spread(dma2_ops(1), 0, 2),
               {OPT['ta']+1: [([], f"buffer_atomic_add {v(vSD)}, {v(vSA)}, {s(ST,4)}, 0 offen sc1", 'arrC', [])]},
               spread([o + (need(1),) for o in h_ops(2, range(4), raw=True)], 17, 2))
    at = {(OPT['ta'], 5): [('wv', 'share')], (OPT['ta'], 6): [('bar',)],
          (21, 5): [('wv', ('w2', 1))], (21, 6): [('bar',)]}
    left = run(A, 0, blk(0), blk(1)[:2], vm, at, head + bias_prog([(t, 1) for t in range(12, 24)]) + cv)
    assert not left, len(left)
    stamp(A, 'b1')
    def pollC(A):
        pollA(A, 'pollC', vSA, vPL, ST, 16)
    head, cv = conv_prog(2, (7, 14))
    d3 = dma2_ops(3)
    vm = merge(spread(h_ops(2, range(4, 8)), 0, 2), spread(dma2_ops(2), 2, 2),
               {OPT['tp']: [([], f"buffer_load_dword {v(vPL)}, {v(vSA)}, {s(ST,4)}, 0 offen sc1", 'pollC', [])]},
               spread([o + (need(2),) for o in h_ops(3, range(4))], 16, 2), spread(d3[:4], 22, 2))
    at = {(21, 3): [('raw', pollC)], (21, 5): [('wv', ('w2', 2))], (21, 6): [('bar',)]}
    bp = [('v', f"v_and_b32 {v(vSA)}, 0xf0, {v(vL16)}", 0), ('v', f"v_lshlrev_b32 {v(vSA)}, 4, {v(vSA)}", 0), ('v', f"v_add_u32 {v(vSA)}, {CNT_C:#x}, {v(vSA)}", 0)] + bias_prog([(t, 1) for t in (6, 7, 8, 9, 10, 11)] + [(t, t+2) for t in range(6)])
    left = run(A, 24, blk(1), blk(2)[:2], vm, at, head + bp + cv)
    assert not left, len(left)
    stamp(A, 'b2')
    vm = merge(spread(h_ops(3, range(4, 8)), 0, 2), spread(d3[4:], 2, 2), spread(dma2_ops(4), 6, 2), spread(h_ops(4, range(8)), 12, 1))
    at = {(5, 2): [('bar',)], (21, 5): [('wv', ('w2', 3))], (21, 6): [('bar',)], (23, 7): [('wv', ('h', 3, 1))]}
    run(A, 48, blk(2), blk(3)[:2], vm, at, [])
    align8(A)
    stamp(A, 'k3l')
    def steady(A, pos):
        if OPT['sp'] == 0: vm = merge(spread(dma2_ops(pos+2), 2, 2), spread(h_ops(pos+2, range(8)), 8, 1))
        elif OPT['sp'] == 1: vm = merge(spread(dma2_ops(pos+2), 2, 1), spread(h_ops(pos+2, range(8)), 14, 1))
        elif OPT['sp'] == 2: vm = merge(spread(dma2_ops(pos+2), 2, 2), {8+2*j: [o] for j, o in enumerate(h_ops(pos+2, range(8)))})
        at = {(1, 2): [('wv', ('w2', pos+1))], (1, 3): [('bar',)], (23, 7): [('wv', ('h', pos+1, 1))]}
        pr = []
        if pos % 3 == 2:
            at[(22, 0)] = [('scal', [f"s_sub_u32 {s(sCNT)}, {s(sCNT)}, 1", f"s_cmp_lg_u32 {s(sCNT)}, 0"])]
            if OPT['pf3']:
                pr = [('v', f"v_lshl_add_u32 {v(vSD)}, {v(vL16)}, 2, {s(sPF+2)}", 0),
                      ('v', f"v_min_u32 {v(vSD)}, L_end-L_k3_last, {v(vSD)}", 0),
                      ('v', f"v_add_co_u32 {v(vSD)}, vcc, {s(sPF)}, {v(vSD)}", 0),
                      ('v', f"v_mov_b32 {v(vSD+1)}, {s(sPF+1)}", 0),
                      ('v', f"v_addc_co_u32 {v(vSD+1)}, vcc, 0, {v(vSD+1)}, vcc", 0)]
                vm[1] = [([f"s_mov_b32 m0, {LDS_SCR:#x}"], f"global_load_lds_dword {v(vSD,2)}, off", 'pf', [])]
        hp = OPT['hpf']
        if (hp == 1 and pos % 3 == 2) or (hp == 2 and pos % 3 == 1):
            pr += [('v', f"v_lshrrev_b32 {v(vSA)}, 7, {v(vL16)}", 0), ('v', f"v_lshlrev_b32 {v(vSA)}, 9, {v(vSA)}", 0),
                   ('v', f"v_and_or_b32 {v(vSA)}, {v(vL16)}, {s(sPF+3)}, {v(vSA)}", 0), ('v', f"v_lshlrev_b32 {v(vSA)}, 3, {v(vSA)}", 0)]
            vm.setdefault(1, []).append(([f"s_mov_b32 m0, {LDS_SCR:#x}", f"s_cmp_eq_u32 {s(sCNT)}, 1", f"s_cselect_b32 {s(SP+2)}, {s(SH+2)}, 0"][(1 if vm.get(1) else 0):], f"buffer_load_dword {v(vSA)}, {s(SP,4)}, {s(sT1)} offen lds", 'pf', []))
        if hp == 3 and pos % 3 >= 1:
            pr += [('v', f"v_lshrrev_b32 {v(vSA)}, 8, {v(vL16)}", 0), ('v', f"v_lshlrev_b32 {v(vSA)}, 10, {v(vSA)}", 0),
                   ('v', f"v_and_or_b32 {v(vSA)}, {v(vL16)}, {s(sPF+3)}, {v(vSA)}", 0), ('v', f"v_lshlrev_b32 {v(vSA)}, 2, {v(vSA)}", 0)]
            if pos % 3 == 2: pr.append(('v', f"v_add_u32 {v(vSA)}, 16384, {v(vSA)}", 0))
            vm.setdefault(1, []).append(([f"s_mov_b32 m0, {LDS_SCR:#x}", f"s_cmp_eq_u32 {s(sCNT)}, 1", f"s_cselect_b32 {s(SP+2)}, {s(SH+2)}, 0"][(1 if vm.get(1) else 0):], f"buffer_load_dword {v(vSA)}, {s(SP,4)}, {s(sT1)} offen lds", 'pf', []))
        left = run(A, 24*pos, blk(pos), blk(pos+1)[:2], vm, at, pr)
        assert not left
    B = Asm(); B.vm, B.lg = list(A.vm), list(A.lg)
    bodies = []
    for it in range(6):
        start = len(B.lines)
        for pos in range(3+3*it, 6+3*it): steady(B, pos)
        bodies.append(B.lines[start:])
    assert all(b == bodies[0] for b in bodies), [i for i, b in enumerate(bodies) if b != bodies[0]]
    A.label("L_k3_loop")
    for l in bodies[0]:
        if OPT['drop3'] and re.match(OPT['drop3'], l): continue
        A(l)
    A("s_cbranch_scc1 L_k3_loop")
    A.label("L_k3_last")
    A.vm, A.lg = list(B.vm), list(B.lg)
    stamp(A, 'k3loopend')
    La, Lb = OPT['La'], OPT['Lb']
    steps = [(21, t) for t in range(La)] + [(22, t) for t in range(Lb)] + [(23, t) for t in range(Lb)]
    for t in range(Lb, 24):
        if t >= La: steps.append((21, t))
        steps += [(22, t), (23, t)]
    assert len(steps) == 72
    fin = {u: steps.index((23, 2*u+1)) + 2 for u in range(12)}
    pool, pr = [], []
    def ostore(P, u, rt):
        if OPT['fakest']: return f"buffer_store_dwordx4 {v(P,4)}, {v(vL16)}, {s(SO,4)}, {s(40+u//4+3*(rt%1))} offen offset:{(u%4)*1024} {OPT['opol']}".replace(f", {s(40+u//4)} ", f", {s(82+rt*3+u//4)} ")
        return f"buffer_store_dwordx4 {v(P,4)}, {v(vXO)}, {s(SO,4)}, {s(sXO+rt)} offen offset:{u*64} {OPT['opol']}"
    def pack(a0_, b0_, u, rt, ms):
        pr.append(('v', f"v_cvt_pk_bf16_f32 {v(a0_)}, {v(a0_)}, {v(a0_+1)}", ms))
        pr.append(('v', f"v_cvt_pk_bf16_f32 {v(a0_+1)}, {v(a0_+2)}, {v(a0_+3)}", ms))
        pr.append(('v', f"v_cvt_pk_bf16_f32 {v(a0_+2)}, {v(b0_)}, {v(b0_+1)}", ms))
        pr.append(('v', f"v_cvt_pk_bf16_f32 {v(a0_+3)}, {v(b0_+2)}, {v(b0_+3)}", ms))
        pr.append(('st', ostore(a0_, u, rt), ms))
        pool.append(b0_); pool.append(a0_)
    def vunits(u):
        for rt in (0, 3):
            f, r0 = accname(2*u, rt, 0)
            if f == 'v': pack(r0, r0+4, u, rt, fin[u])
    bq = {}
    def bias_fetch(u):
        bq[u] = (pool.pop(0), pool.pop(0))
        for e in range(2): pr.append(('lds', biasrd(bq[u][e], 2*u+e), 0))
    def aunits(u):
        first = True
        for rt in (1, 2, 3):
            f, r0 = accname(2*u, rt, 0)
            if f != 'a': continue
            assert len(pool) >= 3
            T = (pool.pop(0), pool.pop(0))
            for e in range(2):
                for r in range(4): pr.append(('v', f"v_accvgpr_read_b32 {v(T[e]+r)}, {a(r0+4*e+r)}", fin[u]))
            if first: pr.append(('wl', ('bq', 2*u+1), 0)); first = False
            for e in range(2):
                for r in range(4): pr.append(('v', f"v_add_f32 {v(T[e]+r)}, {v(T[e]+r)}, {v(bq[u][e]+r)}", fin[u]))
            pack(T[0], T[1], u, rt, fin[u])
        pool.extend(bq[u])
    vunits(0); vunits(1); bias_fetch(0); vunits(2)
    for u in range(12):
        if u >= 3: vunits(u)
        if u >= 3 and u+1 < 12: bias_fetch(u+1)
        aunits(u)
        if u < 3: bias_fetch(u+1)
    ops23 = h_ops(23, range(8)); d23 = dma2_ops(23)
    vm = merge({0: ops23[0:3], 1: ops23[3:5]}, {2: ops23[5:8]}, spread(d23, 3, 3))
    at = {(1, 2): [('wv', ('w2', 22))], (1, 3): [('bar',)], (La-1, 7): [('wv', ('h', 22, 1))],
          (La+Lb-3, 5): [('wv', ('w2', 23))], (La+Lb-3, 6): [('bar',)]}
    at.setdefault((La+Lb+2, 3), []).append(('raw', lambda A: stamp(A, 't1')))
    at.setdefault((44, 3), []).append(('raw', lambda A: stamp(A, 't2')))
    left = run(A, 24*21, steps, [], vm, at, pr)
    stamp(A, 't3')
    A("s_nop 7")
    for kind, pay, _ in left:
        if kind == 'v': A(pay)
        elif kind == 'lds': A.lds(*pay)
        elif kind == 'st': A.vmem(pay, 'o')
        elif kind == 'wl': A.wait_lg(lambda tg: tg == pay)
        else: assert False
    print("epilogue items left after the last MFMA:", len(left), "stores:", sum(1 for x in left if x[0] == 'st'))
    if OPT['stamps']:
        A("s_waitcnt vmcnt(0)")
        stamp(A, 'end')
        A(f"s_lshl_b32 {s(sT0)}, {s(sGW)}, 7")
        A(f"s_add_u32 {s(sT0)}, {s(sT0)}, {STAMP:#x}")
        A("s_waitcnt lgkmcnt(0)")
        A("s_mov_b64 exec, 1")
        A("v_mov_b32 v2, 0")
        for i in range(nstamp[0]):
            A(f"v_mov_b32 v4, {s(STB+4*i)}")
            A(f"v_mov_b32 v5, {s(STB+4*i+2)}")
            A(f"buffer_store_dwordx2 v[4:5], v2, {s(SW,4)}, {s(sT0)} offen offset:{8*i}")
    if OPT['leak']:
        A("s_waitcnt vmcnt(0)")
        stamp(A, 'end')
        A("s_memrealtime s[100:101]")
        A(f"s_cmp_lg_u32 {s(sGW)}, 0")
        A("s_cbranch_scc1 L_end")
        A("s_waitcnt lgkmcnt(0)")
        A("s_sub_u32 s94, s98, s96")
        A("s_mul_i32 s94, s94, 10")
        A("s_min_u32 s94, s94, 200000")
        A.label("L_leak")
        A("s_memrealtime s[92:93]")
        A("s_waitcnt lgkmcnt(0)")
        A("s_sub_u32 s92, s92, s100")
        A("s_cmp_lt_u32 s92, s94")
        A("s_cbranch_scc1 L_leak")
    A.label("L_end")
    A("s_endpgm")
    return A


def main():
    A = gen()
    body = A.text()
    body = body.replace(" s_cbranch_scc1 L_exit_early\n", " s_cbranch_scc0 L_go\n s_endpgm\n s_nop 0\nL_go:\n")
    head = open('standalone__modern_conv_block_slak__vision.s.ref').read().split('; Override launch')[0]
    out = head
    out += f"; @launch grid=(256,1,1) block=(256,1,1) lds={LDS_BYTES}\n"
    out += '.amdgcn_target "amdgcn-amd-amdhsa--gfx950"\n'
    out += kernel_text(NAME, body)
    out += '.section .rodata,"a"\n'
    out += descriptor(NAME, 512, 256)
    open(sys.argv[1], 'w').write(out)
    print(f"wrote {sys.argv[1]}: {len(out)} bytes, {out.count(chr(10))} lines, code ~{A.pc} B")

main()
```

```python
import sys, math, re
from asmlib import *

OPT = dict(xpol='nt', pf3=1, L=8, r3=1, pfl=1, pf5=1, sch=1, ta=6, tp=12, hold=1, sp=1, fakest=0, pf4=2, hpf=0, late=0, apol='sc1', cws=0, rtonly=0, D=12, n0=6, hpol='sc1', hlpol='', wpol='sc1', opol='sc1', stamps=0, R=4, skew=5, drop='', drop3='', sleep=1, leak='', stn='start,ln2,k1,k1end,sigB,go,k3,k3loopend,end', pf2=2)
for arg in sys.argv[2:]:
    k, val = arg.split('=')
    OPT[k] = type(OPT[k])(val.replace('+', ' '))
NREP = OPT['R']
NAME = 'standalone__modern_conv_block_slak__vision_kernel'

WS_BYTES = 0x10000000
X_BYTES = 65536 * 768
W_BYTES = 384 * 1536 * 2
HSTR = 0xC3000
W1P = 0xC400000
W2P = 0xC520000
W2S = W2P + W_BYTES
SUMS = 0xC780000
CNT_C = NREP*6144 + 2048
ZERO_BYTES = CNT_C + 4096
STAMP = 0xC800000
SPIN_MAX = 1 << 16

KG = 2.0 * math.sqrt(2.0 / math.pi) * math.log2(math.e)
A_SC = (KG * 0.044715) ** (1.0 / 3.0)
K_SC = KG / A_SC

SX, SW, ST, SH, SD, SP, SO, SDBG, SG, SBB = 4, 8, 12, 32, 36, 40, 44, 48, 52, 56
sWAVE, sWOFF, sGW, sCNT, sK, sA, sM0B = 16, 17, 18, 19, 20, 22, 24
sT0, sT1, sT2 = 25, 26, 27
sH4 = 28
sPC = 64
sXO = 60
KA = 64
STB = 66

LDS_SUM = 4 * 24576
LDS_XK = 112 * 1024
LDS_TAB = 3 * 49152
LDS_RED = LDS_TAB + 12288
LDS_SCR = LDS_RED + 256
LDS_BYTES = 160 * 1024

nstamp = [0]
def streg(i):
    if OPT['rtonly']: return (100, 98, 96, 94, 66, 68, 70, 72, 74, 76, 78, 80)[i]
    assert STB + 4*i + 3 <= 101
    return STB + 4*i
LK = {}
def stamp(A, label):
    if OPT['leak']:
        if label in OPT['leak'].split(','):
            r = 96 + 2*OPT['leak'].split(',').index(label)
            A(f"s_memrealtime {s(r, 2)}")
        return
    if not OPT['stamps'] or label not in OPT['stn'].split(','): return
    i = nstamp[0]; nstamp[0] += 1
    A(f"s_memrealtime {s(streg(i), 2)}")
    if not OPT['rtonly']: A(f"s_memtime {s(streg(i) + 2, 2)}")


def srd(A, d, src, nbytes, add=None):
    if add is None:
        A(f"s_mov_b32 {s(d)}, {s(src)}")
        A(f"s_mov_b32 {s(d+1)}, {s(src+1)}")
    else:
        A(f"s_add_u32 {s(d)}, {s(src)}, {add}")
        A(f"s_addc_u32 {s(d+1)}, {s(src+1)}, 0")
    A(f"s_mov_b32 {s(d+2)}, {nbytes:#x}")
    A(f"s_mov_b32 {s(d+3)}, 0x20000")


def xlane_sum(A, regs, tmps):
    for op in ('v_permlane16_swap_b32', 'v_permlane32_swap_b32'):
        for r, t in zip(regs, tmps): A(f"v_mov_b32 {v(t)}, {v(r)}")
        A("s_nop 1")
        for r, t in zip(regs, tmps): A(f"{op} {v(r)}, {v(t)}")
        A("s_nop 1")
        for r, t in zip(regs, tmps): A(f"v_add_f32 {v(r)}, {v(r)}, {v(t)}")


def align8(A):
    if A.pc % 8: A("s_nop 0")


def poll_issue(A, name, vz, vdst, off):
    A(f"v_mov_b32 {v(vz)}, 0")
    A.vmem(f"buffer_load_dword {v(vdst)}, {v(vz)}, {s(SDBG,4)}, 0 offen offset:{128+off} sc1", name)


def poll(A, name, vz, vdst, off):
    A(f"s_mov_b32 {s(sT0)}, {SPIN_MAX}")
    A.wait_vm(lambda t: t == name)
    A(f"v_cmp_eq_u32 vcc, 0, {v(vdst)}")
    A("s_nop 4")
    A(f"s_cbranch_vccz L_{name}_ok")
    A.label(f"L_{name}_spin")
    if OPT['sleep']: A(f"s_sleep {OPT['sleep']}")
    A(f"buffer_load_dword {v(vdst)}, {v(vz)}, {s(SDBG,4)}, 0 offen offset:{128+off} sc1")
    A(f"s_sub_u32 {s(sT0)}, {s(sT0)}, 1")
    A("s_waitcnt vmcnt(0)")
    A(f"s_cbranch_scc1 L_{name}_ok")
    A(f"v_cmp_eq_u32 vcc, 0, {v(vdst)}")
    A("s_nop 4")
    A(f"s_cbranch_vccnz L_{name}_spin")
    A.label(f"L_{name}_ok")


def arrive_issue(A, name, vt, off, wave):
    A(f"s_cmp_eq_u32 {s(sWAVE)}, {wave}")
    A(f"s_cselect_b32 {s(sT0)}, 0, 0x100000")
    A(f"s_mov_b32 {s(sT1)}, {CNT_C + 128:#x}")
    A(f"v_mov_b32 {v(vt)}, 1")
    A(f"v_mov_b32 {v(vt+1)}, {s(sT0)}")
    A("s_mov_b64 exec, 1")
    A.vmem(f"buffer_atomic_add {v(vt)}, {v(vt+1)}, {s(ST,4) if OPT['cws'] else s(SDBG,4)}, {s(sT1) if OPT['cws'] else 0} offen offset:{off} sc0 {OPT['apol']}", name)
    A("s_mov_b64 exec, -1")


def arrive_finish(A, name, vt, off, wave):
    keep = list(A.vm)
    A(f"s_cmp_lg_u32 {s(sWAVE)}, {wave}")
    A(f"s_cbranch_scc1 L_{name}_done")
    A.wait_vm(lambda t: t == name)
    A(f"v_readfirstlane_b32 {s(sT0)}, {v(vt)}")
    A("s_nop 3")
    A(f"s_cmp_lg_u32 {s(sT0)}, 255")
    A(f"s_cbranch_scc1 L_{name}_done")
    A("s_mov_b64 exec, 1")
    A(f"buffer_store_dword {v(vt)}, {v(vt+1)}, {s(SDBG,4)}, 0 offen offset:{128+off} sc1")
    A("s_mov_b64 exec, -1")
    A.label(f"L_{name}_done")
    A.vm = keep


def pollA(A, name, vaddr, vdst, sr=SDBG, cnt=64):
    A(f"s_mov_b32 {s(sT0)}, {SPIN_MAX}")
    A.wait_vm(lambda t: t == name)
    A(f"v_cmp_gt_u32 vcc, {cnt}, {v(vdst)}")
    A("s_nop 4")
    A(f"s_cbranch_vccz L_{name}_ok")
    A.label(f"L_{name}_spin")
    A("s_sleep 16")
    A(f"buffer_load_dword {v(vdst)}, {v(vaddr)}, {s(sr,4)}, 0 offen sc1")
    A(f"s_sub_u32 {s(sT0)}, {s(sT0)}, 1")
    A("s_waitcnt vmcnt(0)")
    A(f"s_cbranch_scc1 L_{name}_ok")
    A(f"v_cmp_gt_u32 vcc, {cnt}, {v(vdst)}")
    A("s_nop 4")
    A(f"s_cbranch_vccnz L_{name}_spin")
    A.label(f"L_{name}_ok")


def signalA(A, name, vt):
    A(f"s_cmp_lg_u32 {s(sWAVE)}, 0")
    A(f"s_cbranch_scc1 L_{name}_nosig")
    A(f"s_lshr_b32 {s(sT0)}, s2, 3")
    A(f"s_and_b32 {s(sT0)}, {s(sT0)}, 3")
    A(f"s_lshl_b32 {s(sT0)}, {s(sT0)}, 6")
    A(f"v_mov_b32 {v(vt)}, 1")
    A(f"v_mov_b32 {v(vt+1)}, {s(sT0)}")
    A("s_mov_b64 exec, 1")
    A(f"buffer_atomic_add {v(vt)}, {v(vt+1)}, {s(SDBG,4)}, 0 offen {OPT['apol']}")
    A("s_mov_b64 exec, -1")
    A.label(f"L_{name}_nosig")


npf = [0]
def code_pf(A, label, n, t, tid64, dst, sp=sPC):
    npf[0] += 1
    A(f"s_getpc_b64 {s(sp,2)}")
    A.label(f"L_pc{npf[0]}")
    A(f"s_add_u32 {s(sp)}, {s(sp)}, {label}-L_pc{npf[0]}"); A.pc += 4
    A(f"s_addc_u32 {s(sp+1)}, {s(sp+1)}, 0")
    for i in range(n):
        if i: A(f"v_add_u32 {v(t+2)}, {i*16384:#x}, {v(tid64)}")
        A(f"v_min_u32 {v(t+2)}, L_end-{label}, {v(t+2 if i else tid64)}"); A.pc += 4
        A(f"v_mov_b32 {v(t+1)}, s{sp+1}")
        A(f"v_add_co_u32 {v(t)}, vcc, s{sp}, {v(t+2)}")
        A("s_nop 1")
        A(f"v_addc_co_u32 {v(t+1)}, vcc, 0, {v(t+1)}, vcc")
        A.vmem(f"global_load_dword {v(dst)}, {v(t,2)}, off", 'pf')


def pollA_smem(A, r, vL16, vaddr, vdst):
    A("s_waitcnt lgkmcnt(0)"); A.lg = []
    A(f"s_min_u32 {s(r)}, {s(r)}, {s(r+1)}")
    A(f"s_min_u32 {s(r+2)}, {s(r+2)}, {s(r+3)}")
    A(f"s_min_u32 {s(r)}, {s(r)}, {s(r+2)}")
    A(f"s_cmp_ge_u32 {s(r)}, 64")
    A("s_cbranch_scc1 L_pollA_ok")
    A(f"s_mov_b32 {s(sT0)}, {SPIN_MAX}")
    A(f"v_and_b32 {v(vaddr)}, 48, {v(vL16)}")
    A(f"v_lshlrev_b32 {v(vaddr)}, 2, {v(vaddr)}")
    A.label("L_pollA_spin")
    A(f"buffer_load_dword {v(vdst)}, {v(vaddr)}, {s(SDBG,4)}, 0 offen sc1")
    A(f"s_sub_u32 {s(sT0)}, {s(sT0)}, 1")
    A("s_waitcnt vmcnt(0)")
    A("s_cbranch_scc1 L_pollA_ok")
    A(f"v_cmp_gt_u32 vcc, 64, {v(vdst)}")
    A("s_nop 4")
    A("s_cbranch_vccz L_pollA_ok")
    A("s_sleep 16")
    A("s_branch L_pollA_spin")
    A.label("L_pollA_ok")


def gen():
    A = Asm()
    A("s_cmp_ge_u32 s2, 256")
    A("s_cbranch_scc1 L_exit_early")
    stamp(A, 'entry')
    A(f"s_load_dwordx16 {s(KA,16)}, s[0:1], 0")
    A(f"s_load_dwordx2 {s(KA+16,2)}, s[0:1], 64")
    A("v_lshlrev_b32 v19, 6, v0")
    code_pf(A, 'L_head', 1, 16, 19, 20, sp=26)
    A.label("L_head")
    vL16, vXO = 0, 1
    A("v_lshrrev_b32 v2, 6, v0")
    A("v_and_b32 v3, 63, v0")
    A(f"v_readfirstlane_b32 {s(sWAVE)}, v2")
    A(f"v_lshlrev_b32 {v(vL16)}, 4, v3")
    A("v_lshrrev_b32 v4, 4, v3")
    A("v_and_b32 v5, 15, v3")
    A("v_lshlrev_b32 v6, 4, v4")
    A(f"s_lshl_b32 {s(sGW)}, s2, 2")
    A(f"s_add_u32 {s(sGW)}, {s(sGW)}, {s(sWAVE)}")
    A(f"s_mul_i32 {s(sXO)}, {s(sGW)}, {64*768}")
    for rt in range(1, 4): A(f"s_add_u32 {s(sXO+rt)}, {s(sXO)}, {rt*16*768}")
    sSEL, sTASK, sVAL, sSTR, sSRC, sDST, sD1, sD2 = 82, 83, 84, 85, 86, 87, 88, 89
    sBK, sBC = 92, 3
    A(f"s_mov_b32 {s(sTASK)}, s2")
    A(f"s_mov_b32 {s(sSEL)}, {s(sWAVE)}")
    A(f"s_mov_b32 {s(sVAL)}, {W_BYTES:#x}")
    A(f"s_cmp_lt_u32 {s(sWAVE)}, 2")
    A("s_cbranch_scc1 L_task_ok")
    A(f"s_lshr_b32 {s(sTASK)}, s2, 3")
    A(f"s_add_u32 {s(sTASK)}, {s(sTASK)}, 256")
    A(f"s_bfe_u32 {s(sSEL)}, s2, 0x10002")
    A(f"s_and_b32 {s(sT0)}, s2, 3")
    A(f"s_sub_u32 {s(sT1)}, {s(sWAVE)}, 2")
    A(f"s_or_b32 {s(sT0)}, {s(sT0)}, {s(sT1)}")
    A(f"s_cmp_eq_u32 {s(sT0)}, 0")
    A(f"s_cselect_b32 {s(sVAL)}, {s(sVAL)}, 0")
    A.label("L_task_ok")
    A(f"s_cmp_eq_u32 {s(sSEL)}, 0")
    A("s_cbranch_scc0 L_task_w2")
    A(f"s_mul_hi_u32 {s(sT0)}, {s(sTASK)}, 0x15555556")
    A(f"s_mul_i32 {s(sT1)}, {s(sT0)}, 12")
    A(f"s_sub_u32 {s(sT1)}, {s(sTASK)}, {s(sT1)}")
    A(f"s_mov_b32 {s(sSTR)}, 3072")
    A(f"s_mul_i32 {s(sDST)}, {s(sT0)}, {2*24576}")
    A(f"s_lshl_b32 {s(sT2)}, {s(sT1)}, 10")
    A(f"s_add_u32 {s(sDST)}, {s(sDST)}, {s(sT2)}")
    A(f"s_mov_b32 {s(sD1)}, 12288")
    A(f"s_mov_b32 {s(sD2)}, 24576")
    A("s_branch L_task_j")
    A.label("L_task_w2")
    A(f"s_mul_hi_u32 {s(sT1)}, {s(sTASK)}, 0x2AAAAAAB")
    A(f"s_mul_i32 {s(sT0)}, {s(sT1)}, 6")
    A(f"s_sub_u32 {s(sT0)}, {s(sTASK)}, {s(sT0)}")
    A(f"s_mov_b32 {s(sSTR)}, 768")
    A(f"s_lshr_b32 {s(sT2)}, {s(sT1)}, 1")
    A(f"s_add_u32 {s(sT2)}, {s(sT2)}, 1")
    A(f"s_cmp_eq_u32 {s(sT2)}, 24")
    A(f"s_cselect_b32 {s(sT2)}, 0, {s(sT2)}")
    A(f"s_mul_i32 {s(sDST)}, {s(sT2)}, 49152")
    A(f"s_and_b32 {s(sT2)}, {s(sT1)}, 1")
    A(f"s_lshl_b32 {s(sT2)}, {s(sT2)}, 10")
    A(f"s_add_u32 {s(sDST)}, {s(sDST)}, {s(sT2)}")
    A(f"s_lshl_b32 {s(sT2)}, {s(sT0)}, 13")
    A(f"s_add_u32 {s(sDST)}, {s(sDST)}, {s(sT2)}")
    A(f"s_mov_b32 {s(sD1)}, 2048")
    A(f"s_mov_b32 {s(sD2)}, 4096")
    A.label("L_task_j")
    A(f"s_lshl_b32 {s(sBK)}, {s(sT1)}, 6")
    A(f"s_lshl_b32 {s(sBC)}, {s(sT0)}, 8")
    A(f"s_add_u32 {s(sBC)}, {s(sBC)}, {NREP*6144}")
    A(f"s_mul_i32 {s(sT2)}, {s(sSEL)}, {s(sVAL)}")
    A(f"s_cmp_eq_u32 {s(sT2)}, 0")
    A(f"s_cselect_b32 {s(sBC)}, 0x100000, {s(sBC)}")
    A(f"s_mul_i32 {s(sSRC)}, {s(sT1)}, {s(sSTR)}")
    A(f"s_lshl_b32 {s(sSRC)}, {s(sSRC)}, 5")
    A(f"s_lshl_b32 {s(sT0)}, {s(sT0)}, 7")
    A(f"s_add_u32 {s(sSRC)}, {s(sSRC)}, {s(sT0)}")
    A(f"s_lshl_b32 {s(sT0)}, {s(sSTR)}, 3")
    A(f"v_mul_lo_u32 v7, v4, {s(sT0)}")
    A("v_lshl_add_u32 v7, v5, 3, v7")
    vXD, sXM = 11, 90
    A("v_lshrrev_b32 v8, 3, v3")
    A("v_and_b32 v9, 7, v3")
    A("v_xor_b32 v9, v8, v9")
    A(f"v_mul_u32_u24 {v(vXD)}, 768, v8")
    A(f"v_lshl_add_u32 {v(vXD)}, v9, 4, {v(vXD)}")
    A(f"s_lshl_b32 {s(sXM)}, {s(sWAVE)}, 11")
    A("s_waitcnt lgkmcnt(0)")
    stamp(A, 'ka')
    A(f"s_cmp_eq_u32 {s(sSEL)}, 0")
    A(f"s_cselect_b32 {s(SP)}, {s(KA+4)}, {s(KA+6)}")
    A(f"s_cselect_b32 {s(SP+1)}, {s(KA+5)}, {s(KA+7)}")
    A(f"s_cselect_b32 {s(sT2)}, 0, {W2P-W1P:#x}")
    A(f"s_mov_b32 {s(SP+2)}, {s(sVAL)}")
    A(f"s_mov_b32 {s(SP+3)}, 0x20000")
    GA = 112
    for j in range(8):
        A.vmem(f"buffer_load_dwordx2 {v(GA+2*j,2)}, v7, {s(SP,4)}, {s(sSRC)} offen", 'ga')
        if j < 7: A(f"s_add_u32 {s(sSRC)}, {s(sSRC)}, {s(sSTR)}")
    srd(A, SBB, KA+10, 3072)
    A.vmem(f"buffer_load_dwordx4 v[160:163], v6, {s(SBB,4)}, {s(sBK)} offen", 'ga')
    srd(A, SX, KA+0, X_BYTES)
    XREG = (LDS_XK, 49152, 0, 49152)
    def xload(rt, j):
        kp, rh = divmod(j, 2)
        A(f"s_add_u32 m0, {s(sXM)}, {XREG[rt] + kp*8192 + rh*1024:#x}")
        A(f"s_add_u32 {s(sXM+1)}, {s(sXO+rt)}, {rh*8*768 + kp*128}")
        A.vmem(f"buffer_load_dwordx4 {v(vXD)}, {s(SX,4)}, {s(sXM+1)} offen {OPT['xpol']} lds", ('x', rt, kp))
    nissued = [0]
    def issue_upto(n):
        while nissued[0] < min(n, 60):
            i = nissued[0]; nissued[0] += 1
            if i < 48: xload(i // 12, i % 12)
            else: wpiece(i - 48)
    sLATE = 93
    nb = [0]
    def cond(f, late):
        if not OPT['late']:
            if not late: f()
            return
        nb[0] += 1
        A(f"s_cmp_eq_u32 {s(sLATE)}, {0 if late else 1}")
        A(f"s_cbranch_scc1 L_grp{nb[0]}")
        f()
        A.label(f"L_grp{nb[0]}")
    only_late = lambda f: cond(f, True)
    only_early = lambda f: cond(f, False)
    if OPT['late']:
        A(f"s_bfe_u32 {s(sLATE)}, s2, 0x20003")
        A(f"s_cmp_lt_u32 {s(sLATE)}, {OPT['late']}")
        A(f"s_cselect_b32 {s(sLATE)}, 1, 0")
    only_early(lambda: issue_upto(OPT['n0']))
    srd(A, ST, KA+2, 768)
    DWL, DWH, Y0 = 16, 64, 112
    for ks in range(12):
        A.vmem(f"buffer_load_dwordx4 {v(DWH+4*ks,4)}, v6, {s(ST,4)}, 0 offen offset:{ks*64}", 'dw')
    srd(A, SW, KA+16, WS_BYTES)
    A(f"s_mul_i32 {s(sT0)}, s2, {HSTR:#x}")
    srd(A, SH, KA+16, 0, add=s(sT0))
    srd(A, SD, KA+16, 3*W_BYTES, add=f"{W1P:#x}")
    srd(A, SO, KA+12, X_BYTES)
    srd(A, SDBG, KA+14, 256)
    srd(A, SG, KA+8, 3072)
    A(f"s_add_u32 {s(SP)}, {s(SD)}, {s(sT2)}")
    A(f"s_addc_u32 {s(SP+1)}, {s(SD+1)}, 0")
    srd(A, ST, KA+16, ZERO_BYTES, add=f"{SUMS:#x}")
    stamp(A, 'start')
    A(f"s_lshl_b32 {s(sT0)}, {s(sWAVE)}, 10")
    for rt in range(4):
        A(f"s_sub_u32 {s(sH4+rt)}, {s(sT0)}, {(2 + rt//2)*16384 - (rt << 12):#x}")
    A(f"s_mul_i32 {s(sM0B)}, {s(sWAVE)}, 6144")
    A(f"s_mov_b32 {s(sWOFF)}, {s(sM0B)}")
    A(f"s_mov_b32 {s(sK)}, {f2u(K_SC):#x}")
    A(f"s_mov_b32 {s(sK+1)}, {f2u(K_SC):#x}")
    A(f"s_mov_b32 {s(sA)}, {f2u(A_SC):#x}")
    A(f"s_mov_b32 {s(sA+1)}, {f2u(A_SC):#x}")
    A("v_lshrrev_b32 v8, 3, v5")
    A("v_and_b32 v9, 1, v5")
    A("v_lshl_add_u32 v8, v8, 1, v9")
    A("v_lshlrev_b32 v8, 10, v8")
    A("v_lshl_add_u32 v8, v4, 8, v8")
    A("v_bfe_u32 v9, v5, 1, 2")
    A("v_lshl_add_u32 v8, v9, 6, v8")
    A(f"s_lshl_b32 {s(sT0)}, {s(sWAVE)}, 12")
    A(f"s_add_u32 {s(sT0)}, {s(sT0)}, {LDS_SUM:#x}")
    A(f"v_add_u32 v8, {s(sT0)}, v8")
    A(f"v_add_u32 v9, {s(sT0)}, {v(vL16)}")
    A(f"s_lshl_b32 {s(sT0)}, {s(sGW)}, 10")
    A(f"v_add_u32 v10, {s(sT0)}, {v(vL16)}")
    A(f"s_mov_b32 {s(sT0)}, 0x05040100")
    A(f"s_mov_b32 {s(sT1)}, 0x07060302")
    for i in range(4): A(f"v_mov_b32 {v(12+i)}, 0")
    A.wait_vm(lambda t: t == 'ga')
    only_late(lambda: A("s_waitcnt vmcnt(12)"))
    stamp(A, 'ga')
    PB_ = 128
    for i in range(4):
        for d in range(4):
            A(f"v_perm_b32 {v(PB_+4*i+d)}, {v(GA+2*(2*d+1)+(i>>1))}, {v(GA+2*(2*d)+(i>>1))}, {s(sT1 if i & 1 else sT0)}")
        A.lds(f"ds_write_b128 v8, {v(PB_+4*i,4)} offset:{16*i}", 'bw')
    A.wait_lg(lambda t: True)
    for f in range(4):
        A.lds(f"ds_read_b128 {v(144+4*f,4)}, v9 offset:{1024*f}", ('br', f))
    A.vmem(f"buffer_store_dwordx4 v[12:15], v10, {s(ST,4)}, 0 offen sc1", 'pub')
    A(f"s_add_u32 {s(sT0)}, {s(sDST)}, {s(sD1)}")
    A(f"s_add_u32 {s(sT1)}, {s(sDST)}, {s(sD2)}")
    A(f"s_add_u32 {s(sT2)}, {s(sT1)}, {s(sD1)}")
    for f, so in enumerate((sDST, sT0, sT1, sT2)):
        A.wait_lg(lambda t: t == ('br', f))
        A.vmem(f"buffer_store_dwordx4 {v(144+4*f,4)}, {v(vL16)}, {s(SP,4)}, {s(so)} offen sc1", 'pub')
    only_early(lambda: issue_upto(OPT['D']))
    for d in range(4):
        for i in range(4):
            A(f"v_dot2_f32_bf16 {v(164+i)}, {v(PB_+4*i+d)}, {v(160+d)}, {v(164+i) if d else 0}")
    A("s_nop 3")
    A("v_permlane16_swap_b32 v164, v165")
    A("v_permlane16_swap_b32 v166, v167")
    A("s_nop 1")
    A("v_add_f32 v164, v164, v165")
    A("v_add_f32 v166, v166, v167")
    A("s_nop 1")
    A("v_permlane32_swap_b32 v164, v166")
    A("s_nop 1")
    A("v_add_f32 v164, v164, v166")
    A("v_accvgpr_write_b32 a192, v164")
    A.wait_vm(lambda t: t == 'dw')
    only_late(lambda: A("s_waitcnt vmcnt(5)"))
    stamp(A, 'dw')
    for i in range(48):
        A(f"v_and_b32 {v(DWL+i)}, 0xffff, {v(DWH+i)}")
        A(f"v_and_b32 {v(DWH+i)}, 0xffff0000, {v(DWH+i)}")

    sWM, sWEND, sRB, sPH = 40, 41, 42, 43
    def dma1(c, half):
        ld = [f"buffer_load_dwordx4 {v(vL16)}, {s(SD,4)}, {s(sWOFF)} offen offset:{i*1024} {OPT['wpol']} lds" for i in range(3)]
        m0 = [f"s_add_u32 m0, {s(sM0B)}, {c*24576 + half*3072:#x}" if c < 3 else f"s_add_u32 m0, {s(sWM)}, {half*3072}"]
        adv = [f"s_add_u32 {s(sWOFF)}, {s(sWOFF)}, {3072 if half == 0 else 24576-3072:#x}"]
        return m0, ld, adv
    def dma1_now(c, half):
        m0, ld, adv = dma1(c, half)
        A(m0[0]); A("s_nop 0")
        for l in ld: A.vmem(l, ('w', c))
        if (c, half) != (2, 1): A(adv[0])

    wopen = [False]
    def wpiece(i):
        assert wopen[0]
        c, r = divmod(i, 6); half, j = divmod(r, 3)
        m0, ld, adv = dma1(c, half)
        if j == 0: A(m0[0]); A("s_nop 0")
        A.vmem(ld[j], ('w', c))
        if j == 2: A(adv[0])
    A.wait_vm(lambda t: t == 'pub')
    only_late(lambda: A("s_waitcnt vmcnt(0)"))
    A("s_barrier")
    signalA(A, 'sigA', 208)
    stamp(A, 'sigA')
    if OPT['late']:
        def reissue():
            A.vm = []; nissued[0] = 0
            issue_upto(OPT['D'])
        only_late(reissue)
    issue_upto(OPT['n0'] + OPT['D'])
    XL = 208
    vR0, vR1, vK0, vK1 = 12, 13, 14, 15
    A("v_and_b32 v8, 7, v5")
    A("v_xor_b32 v9, v8, v4")
    A("v_lshlrev_b32 v9, 4, v9")
    A("v_lshl_add_u32 v9, v5, 7, v9")
    A(f"v_add_u32 {v(vR0)}, {s(sXM)}, v9")
    A(f"v_xor_b32 {v(vR1)}, 64, {v(vR0)}")
    A(f"v_add_u32 {v(vK0)}, {LDS_XK:#x}, {v(vR0)}")
    A(f"v_add_u32 {v(vK1)}, {LDS_XK:#x}, {v(vR1)}")
    def xread(rt, ks, dst, tag):
        kp, par = divmod(ks, 2)
        if rt == 0: base, off = (vK0, vK1)[par], kp*8192
        elif rt == 2: base, off = (vR0, vR1)[par], kp*8192
        else: base, off = (vR0, vR1)[par], kp*8192
        A.lds(f"ds_read_b128 {dst}, {v(base)} offset:{off}", tag)
    T0, S0, S1, Q0, Q1 = 2, 2, 4, 6, 8
    vPA, vDUM = 10, 1
    def fetch(rt, kp):
        A.wait_vm(lambda t: t == ('x', rt, kp))
        for ks in (2*kp, 2*kp+1):
            if rt == 1: xread(rt, ks, a(208+4*ks, 4), 'keep')
            xread(rt, ks, v(XL+4*ks, 4), ('xl', rt, ks))
        issue_upto(min(rt*12 + 2*kp + 2 + OPT['D'], 60 if wopen[0] else 48))
    for rt in range(4):
        XL = 208 if rt < 3 else 160
        if rt in (1, 3):
            A(f"v_add_u32 {v(vR0)}, 49152, {v(vR0)}"); A(f"v_add_u32 {v(vR1)}, 49152, {v(vR1)}")
        if rt == 2:
            A(f"v_subrev_u32 {v(vR0)}, 49152, {v(vR0)}"); A(f"v_subrev_u32 {v(vR1)}, 49152, {v(vR1)}")
        fetch(rt, 0)
        for ks in range(12):
            if ks % 2 == 0 and ks < 10: fetch(rt, ks//2 + 1)
            A.wait_lg(lambda t: t == ('xl', rt, ks))
            for d in range(4):
                i = ks*4 + d
                A(f"v_dot2_f32_bf16 {v(Y0+2*i)}, {v(XL+i)}, {v(DWL+i)}, 0")
                A(f"v_dot2_f32_bf16 {v(Y0+2*i+1)}, {v(XL+i)}, {v(DWH+i)}, 0")
            if ks == 0:
                A("s_nop 2")
                A(f"v_pk_add_f32 {v(S0,2)}, {v(Y0,2)}, {v(Y0+4,2)}")
                A(f"v_pk_mul_f32 {v(Q0,2)}, {v(Y0,2)}, {v(Y0,2)}")
                A(f"v_pk_add_f32 {v(S1,2)}, {v(Y0+2,2)}, {v(Y0+6,2)}")
                A(f"v_pk_mul_f32 {v(Q1,2)}, {v(Y0+2,2)}, {v(Y0+2,2)}")
                A(f"v_pk_fma_f32 {v(Q0,2)}, {v(Y0+4,2)}, {v(Y0+4,2)}, {v(Q0,2)}")
                A(f"v_pk_fma_f32 {v(Q1,2)}, {v(Y0+6,2)}, {v(Y0+6,2)}, {v(Q1,2)}")
            else:
                for d in range(4):
                    y = Y0 + 2*(ks*4+d)
                    S_, Q_ = (S0, Q0) if d % 2 == 0 else (S1, Q1)
                    A(f"v_pk_add_f32 {v(S_,2)}, {v(S_,2)}, {v(y,2)}")
                    A(f"v_pk_fma_f32 {v(Q_,2)}, {v(y,2)}, {v(y,2)}, {v(Q_,2)}")
        stamp(A, f'p1_{rt}')
        if rt == 1:
            for j in range(4): A(f"s_load_dword {s(82+j)}, {s(SDBG,2)}, {64*j}")
        if rt == 2:
            assert nissued[0] == 48
            pollA_smem(A, 82, vL16, 10, 11)
            stamp(A, 'pollA')
            A("s_barrier")
            wopen[0] = True
            A(f"v_and_b32 v10, 0xf0, {v(vL16)}")
            A(f"v_lshrrev_b32 v11, 8, {v(vL16)}")
            A("v_lshl_add_u32 v10, v11, 2, v10")
            A(f"v_add_u32 v10, {s(sBC)}, v10")
            A.vmem(f"buffer_atomic_add_f32 a192, v10, {s(ST,4)}, 0 offen {OPT['apol']}", 'bias')
        A(f"v_pk_add_f32 {v(S0,2)}, {v(S0,2)}, {v(S1,2)}")
        A(f"v_pk_add_f32 {v(Q0,2)}, {v(Q0,2)}, {v(Q1,2)}")
        A(f"v_add_f32 {v(S0)}, {v(S0)}, {v(S0+1)}")
        A(f"v_add_f32 {v(Q0)}, {v(Q0)}, {v(Q0+1)}")
        xlane_sum(A, (S0, Q0), (S1, Q1))
        A(f"v_mul_f32 {v(S0)}, {f2u(1.0/384):#x}, {v(S0)}")
        A(f"v_mul_f32 {v(Q0)}, {f2u(1.0/384):#x}, {v(Q0)}")
        A(f"v_fma_f32 {v(Q0)}, -{v(S0)}, {v(S0)}, {v(Q0)}")
        A(f"v_max_f32 {v(Q0)}, 0, {v(Q0)}")
        A(f"v_cvt_pk_bf16_f32 {v(S1)}, {v(S0)}, {v(Q0)}")
        A(f"v_lshlrev_b32 {v(S0)}, 16, {v(S1)}")
        A(f"v_and_b32 {v(Q0)}, 0xffff0000, {v(S1)}")
        A(f"v_add_f32 {v(Q0)}, {f2u(1e-5):#x}, {v(Q0)}")
        A(f"v_cvt_pk_bf16_f32 {v(Q0)}, {v(Q0)}, {v(Q0)}")
        A(f"v_and_b32 {v(Q0)}, 0xffff0000, {v(Q0)}")
        A(f"v_sqrt_f32 {v(Q0)}, {v(Q0)}")
        A("s_nop 0")
        A(f"v_cvt_pk_bf16_f32 {v(Q0)}, {v(Q0)}, {v(Q0)}")
        A(f"v_and_b32 {v(Q0)}, 0xffff0000, {v(Q0)}")
        A(f"v_rcp_f32 {v(Q0)}, {v(Q0)}")
        A("s_nop 0")
        A(f"v_mul_f32 {v(Q1)}, {s(sA)}, {v(Q0)}")
        A(f"v_mul_f32_e64 {v(Q1+1)}, -{v(S0)}, {v(Q1)}")
        align8(A)
        for i0 in range(0, 48, 4):
            for i in range(i0, i0+4):
                A(f"v_pk_fma_f32 {v(Y0+2*i,2)}, {v(Y0+2*i,2)}, {v(Q1,2)}, {v(Q1,2)} op_sel:[0,0,1] op_sel_hi:[1,0,1]")
            for i in range(i0, i0+4):
                A(f"v_cvt_pk_bf16_f32 {v(T0+i%4)}, {v(Y0+2*i)}, {v(Y0+2*i+1)}")
            for i in range(i0, i0+4):
                A(f"v_accvgpr_write_b32 {a(rt*48+i)}, {v(T0+i%4)}")
        if rt == 1 and OPT['pf2']:
            A(f"s_lshl_b32 {s(sT0)}, {s(sWAVE)}, 12")
            A(f"v_lshl_add_u32 {v(vPA)}, {v(vL16)}, 2, {s(sT0)}")
            code_pf(A, 'L_k1_pre0', OPT['pf2'], T0, vPA, vDUM)
    assert nissued[0] == 60
    stamp(A, 'ln3')
    vRB, vSUMA = 2, 3
    for ks in range(12): xread(3, ks, v(160+4*ks, 4), 'keep')
    for ks in range(2): xread(0, ks, v(8+4*ks, 4), 'keep')
    A(f"v_mov_b32 {v(vRB)}, {v(vL16)}")
    A(f"v_lshrrev_b32 {v(vSUMA)}, 4, {v(vL16)}")
    A(f"v_and_b32 {v(vSUMA)}, 60, {v(vSUMA)}")
    A(f"s_add_u32 {s(sT0)}, {s(sM0B)}, {LDS_SUM - 64:#x}")
    A(f"v_add_u32 {v(vSUMA)}, {s(sT0)}, {v(vSUMA)}")
    A(f"s_add_u32 {s(sWM)}, {s(sM0B)}, {2*24576:#x}")
    A(f"s_add_u32 {s(sWEND)}, {s(sM0B)}, {4*24576:#x}")
    A(f"s_mov_b32 {s(sRB)}, 0")
    A(f"s_mov_b32 {s(sPH)}, 0")
    A(f"s_mov_b32 {s(sCNT)}, {15 if OPT['pf4'] else 16}")
    A.wait_vm(lambda t: t == ('w', 1))
    A.wait_lg(lambda t: True)
    A("s_barrier")
    stamp(A, 'k1')

    def AFr(gb, i): return a(192 + 4*i, 4) if gb % 2 == 0 else v(144 + 4*i, 4)
    Yr = lambda u: 16 + 16*((u+3) % 6)
    Tr = lambda u: 16 + 16*((u+1) % 6)
    Pq = lambda c, rt: (112 + 4*rt) if rt < 2 else (120 + 8*(c % 3) + 4*(rt-2))
    Sr = lambda u: 4
    NU = 96
    def dsread(gb, i):
        u, kb = divmod(gb, 3)
        return (f"ds_read_b128 {AFr(gb, i)}, {v(vRB)} offset:{((u % 2)*12 + kb*4 + i)*1024}", ('a', gb))
    def period(A, p, bargap):
        has_m = p < NU
        trans = []
        if p-1 < NU: trans += [f"v_exp_f32 {v(Tr(p-1)+i)}, {v(Tr(p-1)+i)}" for i in range(16)]
        if p-2 < NU: trans += [f"v_rcp_f32 {v(Tr(p-2)+i)}, {v(Tr(p-2)+i)}" for i in range(16)]
        u = p-3; c, ht = divmod(u, 2); T = Tr(u); S_ = Sr(u)
        cv = [f"v_cvt_pk_bf16_f32 {v(Pq(c, rt)+2*ht+d)}, {v(T+4*rt+2*d)}, {v(T+4*rt+2*d+1)}" for rt in range(4) for d in range(2)]
        dp = [f"v_add_f32_dpp {v(S_)}, {v(S_)}, {v(S_)} row_ror:8 row_mask:0xf bank_mask:0x3",
              f"v_add_f32_dpp {v(S_+1)}, {v(S_+1)}, {v(S_+1)} row_ror:8 row_mask:0xf bank_mask:0x3",
              f"v_add_f32_dpp {v(S_)}, {v(S_+2)}, {v(S_+2)} row_ror:8 row_mask:0xf bank_mask:0xc",
              f"v_add_f32_dpp {v(S_+1)}, {v(S_+3)}, {v(S_+3)} row_ror:8 row_mask:0xf bank_mask:0xc",
              f"v_add_f32_dpp {v(S_)}, {v(S_)}, {v(S_)} row_shl:4 row_mask:0xf bank_mask:0x5",
              f"v_add_f32_dpp {v(S_)}, {v(S_+1)}, {v(S_+1)} row_shr:4 row_mask:0xf bank_mask:0xa",
              f"v_add_f32_dpp {v(S_)}, {v(S_)}, {v(S_)} quad_perm:[2,3,0,1] row_mask:0xf bank_mask:0xf",
              f"v_add_f32_dpp {v(S_)}, {v(S_)}, {v(S_)} quad_perm:[1,0,3,2] row_mask:0xf bank_mask:0xf"]
        plain = dp + cv
        dsw = f"ds_write_b32 {v(vSUMA)}, {v(S_)} offset:{(p % 6)*64 - (384 if p % 6 == 5 else 0) + 64}"
        c2, hf = divmod(p-4, 2)
        rts = [2*hf, 2*hf+1] + ([2, 3] if p == NU+2 else [])
        stores = [f"buffer_store_dwordx4 {v(Pq(c2, rt),4)}, {v(vL16)}, {s(SH,4)}, {s(sH4+rt)} offen {OPT['hpol']}" for rt in rts]
        k = p // 2
        dm = dma1(k+3, p % 2) if has_m else None
        scal = []
        if p % 6 == 4: scal.append(f"s_mov_b32 {s(SH+2)}, {48*16384:#x}")
        for rt in (2*((p-5) % 2), 2*((p-5) % 2)+1): scal.append(f"s_add_u32 {s(sH4+rt)}, {s(sH4+rt)}, {16384:#x}")
        if p % 2 == 0:
            scal += [f"s_add_u32 {s(sWM)}, {s(sWM)}, 24576", f"s_cmp_eq_u32 {s(sWM)}, {s(sWEND)}", f"s_cselect_b32 {s(sWM)}, {s(sM0B)}, {s(sWM)}"]
        else:
            scal += [f"s_add_u32 {s(sRB)}, {s(sRB)}, 24576", f"s_cmp_eq_u32 {s(sRB)}, {4*24576}", f"s_cselect_b32 {s(sRB)}, 0, {s(sRB)}"]
        scal += dma1((p-1)//2+3, (p-1) % 2)[2] + dm[0]
        lastp = (p % 6 == 5)
        if lastp: scal += [f"s_sub_u32 {s(sCNT)}, {s(sCNT)}, 1", f"s_cmp_lg_u32 {s(sCNT)}, 0"]
        bar = has_m and p % 2 == 0
        if has_m:
            gap = 0
            for kb in range(3):
                gb = p*3 + kb
                seq = [(rt, ks if rt % 2 == 0 else 3-ks) for rt in range(4) for ks in range(4)]
                for n, (rt, kk) in enumerate(seq):
                    D = v(Yr(p)+4*rt, 4)
                    Cc = '0' if (kb == 0 and n % 4 == 0) else D
                    A(f"v_mfma_f32_16x16x32_bf16 {D}, {AFr(gb, kk)}, {a(rt*48+(kb*4+kk)*4,4)}, {Cc}")
                    w1 = A.wait_lg_str(lambda t: t == ('a', gb+1)) if (gap in (15, 31, 46)) else None
                    w2 = A.wait_vm_str(lambda t: t == ('w', k+1)) if (bar and gap == bargap-1) else None
                    if w1 and w2: A(w2 + ' ' + w1.split()[1])
                    elif w1 or w2: A(w1 or w2)
                    elif bar and gap == bargap: pass
                    elif scal and n % 2 == 0: A(scal.pop(0))
                    if bar and gap == bargap: A("s_barrier")
                    if gap == 47: break
                    if n in (1, 3, 5, 7):
                        A.lds(*dsread(gb+1, n//2))
                        A(plain.pop(0))
                    elif gap in (41, 43):
                        A(plain.pop(0)); A(plain.pop(0))
                    elif gap == 26:
                        assert not scal
                        A.lds(dsw, 's')
                        if p % 6 == 4: A(f"v_add_u32 {v(vSUMA)}, 384, {v(vSUMA)}")
                        if p % 2 == 1: A(f"v_add_u32 {v(vRB)}, {s(sRB)}, {v(vL16)}")
                    else:
                        l = trans.pop(0)
                        if gap == 46:
                            extra4 = 4 if (bar and bargap == 47) else 0
                            if (A.pc + 4 + extra4) % 8: l = l.replace('_f32', '_f32_e64')
                        A(l)
                    gap += 1
            assert not trans and not plain and not scal, (p, trans, plain, scal)
            assert A.pc % 8 == 0
        else:
            for l in scal + trans + plain: A(l)
            A.lds(dsw, 's')
            align8(A)
        dl = list(dm[1]) if dm else []
        st = list(stores)
        while st or dl:
            if st: A.vmem(st.pop(0), 'st')
            if dl: A.vmem(dl.pop(0), ('w', k+3))
        pb, pq = [], []
        if p-2 < NU:
            u = p-2; T = Tr(u); Y = Yr(u); S_ = Sr(u)
            for i in range(0, 16, 2): A(f"v_pk_mul_f32 {v(T+i,2)}, {v(T+i,2)}, {v(Y+i,2)}")
            for rt in range(4):
                for d in (0, 2):
                    if rt == 0: pq.append(f"v_pk_mul_f32 {v(S_+d,2)}, {v(T+d,2)}, {v(T+d,2)}")
                    else: pq.append(f"v_pk_fma_f32 {v(S_+d,2)}, {v(T+4*rt+d,2)}, {v(T+4*rt+d,2)}, {v(S_+d,2)}")
        if p-1 < NU:
            T = Tr(p-1)
            pb = [f"v_pk_fma_f32 {v(T+i,2)}, {v(T+i,2)}, {s(sA,2)}, {s(sA,2)}" for i in range(0, 16, 2)]
        while pb or pq:
            if pq: A(pq.pop(0))
            if pb: A(pb.pop(0))
        if has_m:
            T = Tr(p); Y = Yr(p)
            for i in range(0, 16, 2): A(f"v_pk_fma_f32 {v(T+i,2)}, {v(Y+i,2)}, {v(Y+i,2)}, {s(sK,2)}")
            for i in range(0, 16, 2): A(f"v_pk_mul_f32 {v(T+i,2)}, {v(T+i,2)}, {v(Y+i,2)} neg_lo:[1,0] neg_hi:[1,0]")

    for i in range(4): A.lds(*dsread(0, i))
    for h in range(2): dma1_now(2, h)
    ncopy = 4 if OPT['skew'] else 1
    for w in range(1, ncopy):
        A(f"s_cmp_eq_u32 {s(sWAVE)}, {w}")
        A(f"s_cbranch_scc1 L_k1_pre{w}")
    final_state = None
    for w in range(ncopy):
        A.label(f"L_k1_pre{w}")
        A("s_waitcnt lgkmcnt(0)")
        align8(A)
        bodies = []
        B = Asm()
        B.vm = [('w', 1)] + ['st']*4 + [('w', 2)]*6
        for it in range(16):
            start = len(B.lines)
            for p in range(it*6, it*6+6): period(B, p, 47 - OPT['skew']*w)
            bodies.append(B.lines[start:])
        assert all(b == bodies[0] for b in bodies)
        A.label(f"L_k1_loop{w}")
        for l in bodies[0]:
            if OPT['drop'] and re.match(OPT['drop'], l): continue
            A(l)
        A(f"s_cbranch_scc1 L_k1_loop{w}")
        if OPT['pf4']:
            A(f"s_cmp_lg_u32 {s(sPH)}, 0")
            A("s_cbranch_scc1 L_k1_tail")
            A(f"s_mov_b32 {s(sPH)}, 1")
            A(f"s_mov_b32 {s(sCNT)}, 1")
            A(f"s_lshl_b32 {s(sT0)}, {s(sWAVE)}, 12")
            A(f"v_lshl_add_u32 {v(Yr(0)+3)}, {v(vL16)}, 2, {s(sT0)}")
            code_pf(A, 'L_k1_tail', OPT['pf4'], Yr(0), Yr(0)+3, vDUM)
            A(f"s_branch L_k1_loop{w}")
        elif w < ncopy-1: A("s_branch L_k1_tail")
        final_state = (B.vm, B.lg)
    A.label("L_k1_tail")
    A.vm, A.lg = list(final_state[0]), list(final_state[1])
    def dpp_ops(S_):
        f = lambda d, x, ctl: f"v_add_f32_dpp {v(d)}, {v(x)}, {v(x)} {ctl}"
        return [f(S_, S_, "row_ror:8 row_mask:0xf bank_mask:0x3"), f(S_+1, S_+1, "row_ror:8 row_mask:0xf bank_mask:0x3"),
                f(S_, S_+2, "row_ror:8 row_mask:0xf bank_mask:0xc"), f(S_+1, S_+3, "row_ror:8 row_mask:0xf bank_mask:0xc"),
                f(S_, S_, "row_shl:4 row_mask:0xf bank_mask:0x5"), f(S_, S_+1, "row_shr:4 row_mask:0xf bank_mask:0xa"),
                f(S_, S_, "quad_perm:[2,3,0,1] row_mask:0xf bank_mask:0xf"), f(S_, S_, "quad_perm:[1,0,3,2] row_mask:0xf bank_mask:0xf")]
    def tr(op, u): return [f"{op} {v(Tr(u)+i)}, {v(Tr(u)+i)}" for i in range(16)]
    def pkC(u):
        T, Y, S_ = Tr(u), Yr(u), Sr(u)
        o = [f"v_pk_mul_f32 {v(T+i,2)}, {v(T+i,2)}, {v(Y+i,2)}" for i in range(0, 16, 2)]
        for rt in range(4):
            for d in (0, 2):
                if rt == 0: o.append(f"v_pk_mul_f32 {v(S_+d,2)}, {v(T+d,2)}, {v(T+d,2)}")
                else: o.append(f"v_pk_fma_f32 {v(S_+d,2)}, {v(T+4*rt+d,2)}, {v(T+4*rt+d,2)}, {v(S_+d,2)}")
        return o
    BS = 32
    def cvts(u):
        c, ht = divmod(u, 2); T = Tr(u)
        return [f"v_cvt_pk_bf16_f32 {v(BS+16*(c-46)+4*rt+2*ht+d)}, {v(T+4*rt+2*d)}, {v(T+4*rt+2*d+1)}" for rt in range(4) for d in range(2)]
    def weave(dpp, fill):
        fill = list(fill)
        for d in dpp:
            A(fill.pop(0)); A(fill.pop(0)); A(d)
        for l in fill: A(l)
    def sumw(u): A.lds(f"ds_write_b32 {v(vSUMA)}, {v(Sr(u))} offset:{(u-93)*64 + 64}", 's')
    A(f"v_subrev_u32 {v(vSUMA)}, 6144, {v(vSUMA)}")
    weave(dpp_ops(Sr(93)), tr('v_exp_f32', 95)); sumw(93)
    for l in tr('v_rcp_f32', 94): A(l)
    align8(A)
    for i in range(0, 16, 2): A(f"v_pk_fma_f32 {v(Tr(95)+i,2)}, {v(Tr(95)+i,2)}, {s(sA,2)}, {s(sA,2)}")
    for l in pkC(94): A(l)
    weave(dpp_ops(Sr(94)), tr('v_rcp_f32', 95)); sumw(94)
    align8(A)
    for l in pkC(95): A(l)
    weave(dpp_ops(Sr(95)), cvts(93) + cvts(94)); sumw(95)
    stamp(A, 'k1end')

    def acc(t, rt):
        r = {2: 0, 1: 96, 3: 192, 0: 288}[rt] + 4*((t+16) % 24 if rt == 3 and OPT['r3'] else t)
        return a(r, 4) if r < 256 else v(r - 128, 4)
    def accname(t, rt, i):
        r = {2: 0, 1: 96, 3: 192, 0: 288}[rt] + 4*((t+16) % 24 if rt == 3 and OPT['r3'] else t) + i
        return ('a', r) if r < 256 else ('v', r - 128)
    A("s_waitcnt lgkmcnt(0)"); A.lg = []
    A("s_barrier")
    vTID4 = 4
    A(f"v_lshrrev_b32 {v(vTID4)}, 2, {v(vL16)}")
    A(f"s_lshl_b32 {s(sT0)}, {s(sWAVE)}, 8")
    A(f"v_add_u32 {v(vTID4)}, {s(sT0)}, {v(vTID4)}")
    A(f"v_add_u32 v5, {LDS_SUM + 192:#x}, {v(vTID4)}")
    A(f"v_cmp_lt_u32 vcc, {208*4-1}, {v(vTID4)}")
    A(f"v_subrev_u32 v7, 6144, v5")
    RB = 64
    for q in range(6):
        if q == 5: A("v_cndmask_b32 v5, v5, v7, vcc")
        for w in range(4): A.lds(f"ds_read_b32 {v(RB+4*q+w)}, v5 offset:{w*6144 + q*1024}", ('r', q))
    A(f"v_and_b32 v6, {0xe3*4:#x}, {v(vTID4)}")
    A(f"v_bfe_u32 v7, {v(vTID4)}, 4, 2")
    A("v_lshl_add_u32 v6, v7, 5, v6")
    A(f"v_bfe_u32 v7, {v(vTID4)}, 6, 1")
    A("v_lshl_add_u32 v6, v7, 4, v6")
    A(f"s_lshr_b32 {s(sT0)}, s2, 3")
    A(f"s_and_b32 {s(sT0)}, {s(sT0)}, {NREP-1}")
    A(f"s_mul_i32 {s(sT0)}, {s(sT0)}, 6144")
    A(f"s_add_u32 {s(sT1)}, {s(sT0)}, 3072")
    for q in range(6):
        A.wait_lg(lambda t: t == ('r', q))
        r = RB+4*q
        A(f"v_add_f32 {v(r)}, {v(r)}, {v(r+1)}")
        A(f"v_add_f32 {v(r+2)}, {v(r+2)}, {v(r+3)}")
        A(f"v_add_f32 {v(r)}, {v(r)}, {v(r+2)}")
        A.vmem(f"buffer_atomic_add_f32 {v(r)}, v6, {s(ST,4)}, {s(sT0 if q < 3 else sT1)} offen offset:{(q%3)*1024} {OPT['apol']}", 'at')
    stamp(A, 'atom')
    GB, SHF, sSH = 104, 108, 30
    for q in range(3):
        A.vmem(f"buffer_load_dword {v(GB+q)}, {v(vTID4)}, {s(SG,4)}, 0 offen offset:{q*1024}", 'gb')
    A(f"s_add_u32 {s(sT1)}, {s(sGW)}, 128")
    A(f"s_lshl_b32 {s(sSH)}, {s(sT1)}, 10")
    A(f"s_add_u32 {s(sSH)}, {s(sSH)}, {W_BYTES:#x}")
    A.vmem(f"buffer_load_dwordx4 {v(SHF,4)}, {v(vL16)}, {s(SD,4)}, {s(sSH)} offen sc1", 'gb')
    A(f"s_add_u32 {s(sSH)}, {s(sSH)}, {W_BYTES:#x}")
    A(f"s_mul_hi_u32 {s(sT0)}, {s(sT1)}, 0x5555556")
    A(f"s_and_b32 {s(sT1)}, {s(sT1)}, 1")
    A(f"s_lshl_b32 {s(sT0)}, {s(sT0)}, 1")
    A(f"s_add_u32 {s(sT0)}, {s(sT0)}, {s(sT1)}")
    A(f"s_sub_u32 {s(sT0)}, {s(sT0)}, 2")
    A(f"s_lshl_b32 s31, {s(sT0)}, 7")
    for l in cvts(95): A(l)
    for rt in range(4):
        for d in range(2): A(f"v_mov_b32 {v(BS+4*rt+d)}, {v(Pq(46, rt)+d)}")
    vK0, vK1 = 2, 3
    A(f"v_lshrrev_b32 v5, 8, {v(vL16)}")
    A(f"v_bfe_u32 v7, {v(vL16)}, 4, 3")
    A("v_xor_b32 v7, v7, v5")
    A(f"v_and_b32 {v(vK0)}, 0xf0, {v(vL16)}")
    A(f"v_lshlrev_b32 {v(vK0)}, 3, {v(vK0)}")
    A(f"v_lshl_add_u32 {v(vK0)}, v7, 4, {v(vK0)}")
    A(f"s_lshl_b32 {s(sT0)}, {s(sWAVE)}, 11")
    A(f"s_add_u32 {s(sT0)}, {s(sT0)}, {LDS_XK:#x}")
    A(f"v_add_u32 {v(vK0)}, {s(sT0)}, {v(vK0)}")
    A(f"v_xor_b32 {v(vK1)}, 64, {v(vK0)}")
    XK = 56
    for u in range(2, 12):
        A.lds(f"ds_read_b128 {v(XK+4*u,4)}, {v((vK0, vK1)[u % 2])} offset:{(u//2)*8192}", ('xk', u))
    SEL = 24
    A(f"v_lshrrev_b32 v5, 8, {v(vL16)}")
    A(f"v_bfe_u32 v7, {v(vL16)}, 6, 2")
    A("v_cmp_eq_u32 vcc, v5, v7")
    A(f"v_and_b32 v5, 16, {v(vL16)}")
    A("v_mov_b32 v7, 0x3f80")
    A("v_lshlrev_b32 v7, v5, v7")
    A("v_cndmask_b32 v7, 0, v7, vcc")
    A(f"v_and_b32 v5, 32, {v(vL16)}")
    A("v_cmp_eq_u32 vcc, 0, v5")
    for i in (0, 1, 4, 5): A(f"v_mov_b32 {v(SEL+i)}, 0")
    A(f"v_cndmask_b32 {v(SEL+2)}, 0, v7, vcc")
    A(f"v_sub_u32 {v(SEL+3)}, v7, {v(SEL+2)}")
    A("s_nop 1")
    def xinit(rt, u, src):
        for e in range(2):
            A(f"v_mfma_f32_16x16x32_bf16 {acc(2*u+e, rt)}, {v(SEL+2-2*e,4)}, {src}, 0")
    for u in range(12): xinit(2, u, v(208+4*u, 4))
    for u in range(12): xinit(1, u, a(208+4*u, 4))
    A.wait_vm(lambda t: t == 'at')
    A("s_barrier")
    stamp(A, 'sigB')
    arrive_issue(A, 'arrB', 6, 4, 1)
    sHOFF, sINV, sM6 = 28, 29, 3
    A(f"s_mov_b32 {s(sM6)}, {s(sM0B)}")
    A(f"s_mul_i32 {s(sM0B)}, {s(sWAVE)}, 12288")
    A(f"s_lshl_b32 {s(sHOFF)}, {s(sWAVE)}, 10")
    vPA, vPD = 8, 9
    A(f"v_and_b32 {v(vXO)}, 0xf0, {v(vL16)}")
    A(f"v_mul_u32_u24 {v(vXO)}, 48, {v(vXO)}")
    A(f"v_lshrrev_b32 v5, 8, {v(vL16)}")
    A(f"v_lshl_add_u32 {v(vXO)}, v5, 4, {v(vXO)}")
    for u in range(12): xinit(3, u, v(160+4*u, 4))
    A.wait_lg(lambda t: True)
    for u in range(12): xinit(0, u, v(8+4*u if u < 2 else XK+4*u, 4))
    arrive_finish(A, 'arrB', 6, 4, 1)
    stamp(A, 'arr')
    def dma2_line(i): return f"buffer_load_dwordx4 {v(vL16)}, {s(SD,4)}, {s(sWOFF)} offen offset:{(i%4)*1024} {OPT['wpol']} lds"
    def dma2_ops(pos):
        ops = []
        if pos == 1:
            for i in range(6):
                pre = []
                if i % 3 == 0:
                    pre = [f"s_add_u32 {s(sWOFF)}, {s(sM6)}, {W_BYTES + 73728 + i*1024:#x}", f"s_add_u32 m0, {s(sM6)}, {73728 + i*1024:#x}"]
                ops.append((pre, dma2_line(i % 3), ('w2', pos), []))
            return ops
        for i in range(12):
            pre = []
            if i % 4 == 0:
                if i: pre.append(f"s_add_u32 {s(sWOFF)}, {s(sWOFF)}, 4096")
                elif pos == 2: pre.append(f"s_add_u32 {s(sWOFF)}, {s(sM0B)}, {W_BYTES + 2*49152:#x}")
                elif pos == 3: pre.append(f"s_add_u32 {s(sWOFF)}, {s(sWOFF)}, {49152-8192+W_BYTES:#x}")
                elif pos: pre.append(f"s_add_u32 {s(sWOFF)}, {s(sWOFF)}, {49152-8192}")
                pre.append(f"s_add_u32 m0, {s(sM0B)}, {(pos % 3)*49152 + i*1024:#x}")
            ops.append((pre, dma2_line(i), ('w2', pos), []))
        return ops
    vB1, vB2, TMP, RAW, AR, BQ, vTAB, vSA, vSD, vPL = 2, 3, 4, 16, 96, 120, 124, 125, 126, 127
    SQ = (8, 12)
    SETC = [16, 20, 24, 28, 4, 8, 12, 120]
    def hreg(pos, f):
        if pos < 2: return BS + 32*pos + 4*f
        return (SETC[f], BS + 32 + 4*f, BS + 4*f)[pos % 3]
    def hline(dst): return f"buffer_load_dwordx4 {v(dst,4)}, {v(vL16)}, {s(SH,4)}, {s(sHOFF)} offen {OPT['hlpol']}"
    hadv = f"s_add_u32 {s(sHOFF)}, {s(sHOFF)}, 4096"
    def h_ops(pos, fs, raw=False):
        return [([], hline(RAW + 4*f if raw else hreg(pos, f)), ('h', pos, f//4), [hadv]) for f in fs]
    A(f"v_add_u32 {v(vB1)}, 0x10000, {v(vL16)}")
    A(f"v_add_u32 {v(vB2)}, 0x20000, {v(vL16)}")
    A(f"v_lshrrev_b32 {v(vTAB)}, 8, {v(vL16)}")
    A(f"v_lshlrev_b32 {v(vTAB)}, 5, {v(vTAB)}")
    A(f"v_add_u32 {v(vTAB)}, {LDS_TAB:#x}, {v(vTAB)}")
    A(f"v_add_u32 v13, s31, {v(vTAB)}")
    A(f"v_cmp_eq_u32 vcc, 256, {v(vTID4)}")
    A(f"s_lshr_b32 {s(sT0)}, s2, 3")
    A(f"s_and_b32 {s(sT0)}, {s(sT0)}, 15")
    A(f"s_lshl_b32 {s(sT0)}, {s(sT0)}, 8")
    A(f"s_add_u32 {s(sT0)}, {s(sT0)}, {CNT_C:#x}")
    A(f"v_mov_b32 {v(vSA)}, 0x100000")
    A(f"v_mov_b32 {v(vSD)}, {s(sT0)}")
    A(f"v_cndmask_b32 {v(vSA)}, {v(vSA)}, {v(vSD)}, vcc")
    A(f"v_mov_b32 {v(vSD)}, 1")
    A(f"v_lshlrev_b32 v5, 1, {v(vTID4)}")
    A(f"s_lshl_b32 {s(sT0)}, {s(sWAVE)}, 8")
    A(f"s_add_u32 m0, {s(sT0)}, {LDS_TAB + 6144:#x}")
    A(f"s_lshl_b32 {s(sT0)}, {s(sWAVE)}, 2")
    A(f"s_add_u32 {s(sT0)}, {s(sT0)}, {LDS_RED:#x}")
    A(f"v_mov_b32 v14, {s(sT0)}")
    A(f"v_mov_b32 v15, {LDS_RED:#x}")
    A.wait_vm(lambda t: t == 'gb')
    GF = 96
    for q in range(3):
        A(f"v_lshlrev_b32 {v(GF+2*q)}, 16, {v(GB+q)}")
        A(f"v_and_b32 {v(GF+2*q+1)}, 0xffff0000, {v(GB+q)}")
    SU = 112
    for d in range(4):
        A(f"v_lshlrev_b32 {v(SU+2*d)}, 16, {v(SHF+d)}")
        A(f"v_and_b32 {v(SU+2*d+1)}, 0xffff0000, {v(SHF+d)}")
    A(f"s_cmp_lg_u32 {s(sWAVE)}, 0")
    A("s_cbranch_scc1 L_pollB_ok")
    keep = list(A.vm)
    poll_issue(A, 'pollB', vPA, vPD, 4)
    poll(A, 'pollB', vPA, vPD, 4)
    A.vm = keep
    A("s_barrier")
    stamp(A, 'go')
    SR = 64
    sreg = lambda j: SR + j if j < 16 else 102 + j - 16
    assert NREP*6 <= 26
    for r in range(NREP):
        A(f"s_mov_b32 {s(sT0)}, {r*6144:#x}")
        A(f"s_mov_b32 {s(sT1)}, {r*6144 + 4096:#x}")
        for q in range(3):
            A.vmem(f"buffer_load_dwordx2 {v(sreg((r*3+q)*2),2)}, v5, {s(ST,4)}, {s(sT1 if q == 2 else sT0)} offen offset:{(q%2)*2048} sc1", 'sum')
    A(f"s_mov_b32 {s(sT0)}, {NREP*6144:#x}")
    for j in range(2):
        A.vmem(f"buffer_load_dword {v(vTID4)}, {s(ST,4)}, {s(sT0)} offen offset:{j*1024} sc1 lds", 'biasld')
    for _, l, tg, _ in h_ops(1, range(4), raw=True) + h_ops(1, range(4, 8)):
        A.vmem(l, tg); A(hadv)
    A(f"v_add_u32 v5, {LDS_TAB:#x}, v5")
    A.wait_vm(lambda t: t == 'sum')
    for r in range(1, NREP):
        for i in range(6): A(f"v_add_f32 {v(SR+i)}, {v(SR+i)}, {v(sreg(r*6+i))}")
    for i in range(6): A(f"v_add_f32 {v(SR+i)}, {f2u(1e-6):#x}, {v(SR+i)}")
    for i in range(6): A(f"v_sqrt_f32 {v(SR+i)}, {v(SR+i)}")
    A("s_nop 0")
    A(f"v_add_f32 v6, {v(SR)}, {v(SR+1)}")
    for i in range(2, 6): A(f"v_add_f32 v6, v6, {v(SR+i)}")
    for j, n in enumerate((8, 4, 2, 1)):
        if j < 3:
            for i in (2*j, 2*j+1): A(f"v_mul_f32 {v(SR+i)}, {v(SR+i)}, {v(GF+i)}")
        else: A("s_nop 1")
        A(f"v_add_f32_dpp v6, v6, v6 row_ror:{n} row_mask:0xf bank_mask:0xf")
    for q in range(3): A.lds(f"ds_write_b64 v5, {v(SR+2*q,2)} offset:{q*2048}", 'tb')
    xlane_sum(A, (6,), (7,))
    A.lds("ds_write_b32 v14, v6", 'tb')
    A(f"v_mov_b32 v6, {f2u(1e-6):#x}")
    A.wait_vm(lambda t: t == 'biasld')
    A.wait_lg(lambda t: True)
    A("s_barrier")
    S8, SS = 64, 104
    A.lds("ds_read_b128 v[8:11], v15", 'red')
    for hh in range(2): A.lds(f"ds_read_b128 {v(SS+4*hh,4)}, v13 offset:{hh*16}", 'ss')
    for k2 in range(2):
        for hh in range(2):
            A.lds(f"ds_read_b128 {v(S8+8*k2+4*hh,4)}, {v(vTAB)} offset:{23*256 + k2*128 + hh*16}", 't0')
    A.wait_lg(lambda t: t == 'red')
    A("v_add_f32 v8, v8, v9")
    A("v_add_f32 v10, v10, v11")
    A("v_add_f32 v8, v8, v10")
    A(f"v_fmac_f32 v6, {f2u(1.0/1536):#x}, v8")
    A("v_rcp_f32 v6, v6")
    A.wait_lg(lambda t: t == 'ss')
    for i in range(8): A(f"v_fma_f32 {v(SS+i)}, {v(SS+i)}, v6, 1.0")
    A(f"v_readfirstlane_b32 {s(sINV)}, v6")
    for d in range(4): A(f"v_pk_mul_f32 {v(SU+2*d,2)}, {v(SU+2*d,2)}, {v(SS+2*d,2)}")
    for d in range(4): A(f"v_cvt_pk_bf16_f32 {v(BQ+d)}, {v(SU+2*d)}, {v(SU+2*d+1)}")
    A.vmem(f"buffer_store_dwordx4 {v(BQ,4)}, {v(vL16)}, {s(SD,4)}, {s(sSH)} offen sc1", 'share')
    def dsA(idx, step, k2):
        pos, t = step[:2]
        ad = (pos % 3)*49152 + (t*2+k2)*1024
        return (f"ds_read_b128 {v(AR + 8*(idx % 3) + 4*k2, 4)}, {v((vL16, vB1, vB2)[ad >> 16])} offset:{ad & 0xffff}", ('a2', idx))
    for i in range(2):
        for k2 in range(2): A.lds(*dsA(i, (0, i), k2))
    A.wait_lg(lambda t: t == 't0')
    for i in range(16): A(f"v_fma_f32 {v(S8+i)}, {v(S8+i)}, v6, 1.0")
    A(f"s_mov_b32 {s(sT2)}, 0xffff0000")
    align8(A)
    for k2 in range(2):
        for rt in range(4):
            F = BS + (k2*4+rt)*4
            T8 = 8
            for d in range(4):
                A(f"v_lshlrev_b32 {v(T8+2*d)}, 16, {v(F+d)}")
                A(f"v_and_b32 {v(T8+2*d+1)}, {s(sT2)}, {v(F+d)}")
            for d in range(4):
                A(f"v_pk_mul_f32 {v(T8+2*d,2)}, {v(T8+2*d,2)}, {v(S8+8*k2+2*d,2)}")
            for d in range(4):
                A(f"v_cvt_pk_bf16_f32 {v(F+d)}, {v(T8+2*d)}, {v(T8+2*d+1)}")
    sPF = 20
    A(f"s_getpc_b64 {s(sPF,2)}")
    A.label("L_pcl")
    A(f"s_add_u32 {s(sPF)}, {s(sPF)}, L_k3_last-L_pcl"); A.pc += 4
    A(f"s_addc_u32 {s(sPF+1)}, {s(sPF+1)}, 0")
    A(f"s_lshl_b32 {s(sPF+2)}, {s(sWAVE)}, 12")
    A(f"s_mov_b32 {s(sCNT)}, 6")
    A(f"s_sub_u32 s40, {s(sPF)}, L_k3_last-L_k3_loop"); A.pc += 4
    A(f"s_subb_u32 s41, {s(sPF+1)}, 0")
    sM3 = sPF + 3
    A(f"s_mul_i32 {s(sM3)}, {s(sWAVE)}, 3072")
    A(f"s_lshl_b32 {s(sT1)}, {s(sWAVE)}, 10")
    if OPT['fakest']:
        for rt in range(4):
            for j in range(3): A(f"s_add_u32 {s(82+rt*3+j)}, {s(sXO+rt)}, {j*4096}")
    A.wait_lg(lambda t: t == ('a2', 0))
    stamp(A, 'k3')

    def run(A, idx0, steps, after, vm, at, prog):
        allsteps = steps + after
        scal = []
        for i, st_ in enumerate(steps):
            pos, t = st_[:2]
            rows = st_[2] if len(st_) > 2 else (0, 1, 2, 3)
            nm = 2*len(rows)
            idx = idx0 + i
            q = list(vm.get(i, []))
            vgaps = ({0: (), 1: (4,), 2: (4, 6), 3: (2, 4, 6)} if nm == 8 else {0: (), 1: (2,)})[len(q)]
            if q: scal = list(q[0][0]) + scal
            stamp(A, f"s{idx}")
            for n in range(nm):
                rt, k2 = rows[n//2], n % 2
                kk = k2 if (n//2) % 2 == 0 else 1-k2
                D = acc(t, rt)
                A(f"v_mfma_f32_16x16x32_bf16 {D}, {v(AR+8*(idx%3)+4*kk,4)}, {v(hreg(pos, kk*4+rt),4)}, {D}")
                slots = 2
                wl, wv, bar, raw = [], [], False, []
                if n == nm-1: wl.append(('a2', idx+1))
                for act in at.get((i, n), []):
                    if act[0] == 'wv': wv.append(act[1])
                    elif act[0] == 'bar': bar = True
                    elif act[0] == 'scal': scal = scal + act[1]
                    elif act[0] == 'raw': raw.append(act[1])
                if not bar and (wl or wv or not scal):
                    while prog and prog[0][0] in ('wl', 'wv') and prog[0][2] <= i:
                        k_, tg, _ = prog.pop(0)
                        (wl if k_ == 'wl' else wv).append(tg)
                for tg in wv:
                    assert not any(o[2] == tg for j in range(i+1, len(steps)) for o in vm.get(j, [])) and not any(o[2] == tg for o in q), (tg, i, n)
                w1 = A.wait_lg_str(lambda tg: tg in wl)
                w2 = A.wait_vm_str(lambda tg: tg in wv)
                if w1 and w2: A(w2 + ' ' + w1.split()[1])
                elif w1 or w2: A(w1 or w2)
                elif bar: pass
                elif scal: A(scal.pop(0))
                if bar: A("s_barrier"); slots = 0
                for f in raw: f(A); slots = 0
                valu = False
                if nm == 4 and n == 0 and i+2 < len(allsteps):
                    for k_ in range(2): A.lds(*dsA(idx+2, allsteps[i+2], k_))
                    slots = 0
                elif nm == 8 and n in (0, 1) and i+2 < len(allsteps):
                    A.lds(*dsA(idx+2, allsteps[i+2], n)); slots -= 1
                elif n in vgaps:
                    assert slots == 2, (i, n)
                    o = q.pop(0)
                    while any(x in scal for x in o[0]) or hadv in scal:
                        A(scal.pop(0))
                        if not (any(x in scal for x in o[0]) or hadv in scal): A("s_nop 0")
                    if A.lines[-1].startswith(('s_add_u32 m0', 's_mov_b32 m0')): A("s_nop 0")
                    if len(o) > 4: o[4]()
                    A.vmem(o[1], o[2]); slots = 0
                    scal = list(o[3]) + (list(q[0][0]) if q else []) + scal
                while slots > 0 and prog and prog[0][2] <= i:
                    kind, pay, _ = prog[0]
                    if kind == 'v':
                        if isinstance(pay, tuple):
                            assert abs(pay[1] - t) >= 2, (pay, t)
                            pay = pay[0]
                        A(pay); slots -= 1; valu = True
                    elif kind == 'lds':
                        if valu: break
                        A.lds(*pay); slots -= 1
                    elif kind == 'st':
                        if slots < 2: break
                        A.vmem(pay, 'o'); slots = 0
                    elif kind == 'mark':
                        pay()
                    else: break
                    prog.pop(0)
            assert not q
        assert not scal, scal
        return prog

    def spread(ops, first, per):
        d = {}
        for j, o in enumerate(ops): d.setdefault(first + j//per, []).append(o)
        return d
    def merge(*ds):
        r = {}
        for d in ds:
            for k_, l in d.items(): r.setdefault(k_, []).extend(l)
        return r
    def biasrd(q, t): return (f"ds_read_b128 {v(q,4)}, {v(vTAB)} offset:{6144 + (t>>1)*128 + (t&1)*16}", ('bq', t))
    def bias_prog(tiles):
        qs = (BQ, TMP)
        pr = [('lds', biasrd(qs[0], tiles[0][0]), 0)]
        for j, (t, ms) in enumerate(tiles):
            if j+1 < len(tiles): pr.append(('lds', biasrd(qs[(j+1) % 2], tiles[j+1][0]), 0))
            pr.append(('wl', ('bq', t), ms))
            for rt in range(4):
                f, r0 = accname(t, rt, 0)
                if f == 'v':
                    for r in range(4): pr.append(('v', (f"v_add_f32 {v(r0+r)}, {v(r0+r)}, {v(qs[j % 2]+r)}", t), ms))
        return pr
    done = {}
    def conv_prog(pos, starts):
        rd = lambda g4: ('lds', (f"ds_read_b128 {v(SQ[g4 % 2],4)}, {v(vTAB)} offset:{(pos-1)*256 + (g4//2)*128 + (g4%2)*16}", ('tab', g4)), 0)
        pr = [rd(0), rd(1)]
        head = list(pr); pr = []
        for g4 in range(4):
            k2, hh = divmod(g4, 2)
            Q = SQ[g4 % 2]; ms = starts[k2]
            pr += [('wl', ('tab', g4), ms), ('wv', ('h', pos, k2), ms)]
            for j in range(4): pr.append(('v', f"v_fma_f32 {v(Q+j)}, {v(Q+j)}, {s(sINV)}, 1.0", ms))
            for rt in range(4):
                dst = hreg(pos, k2*4+rt) + 2*hh
                src = (RAW + 4*rt + 2*hh) if k2 == 0 else dst
                for d in range(2):
                    pr.append(('v', f"v_lshlrev_b32 {v(TMP+2*d)}, 16, {v(src+d)}", ms))
                    pr.append(('v', f"v_and_b32 {v(TMP+2*d+1)}, {s(sT2)}, {v(src+d)}", ms))
                for j in range(4): pr.append(('v', f"v_mul_f32 {v(TMP+j)}, {v(TMP+j)}, {v(Q+j)}", ms))
                for d in range(2): pr.append(('v', f"v_cvt_pk_bf16_f32 {v(dst+d)}, {v(TMP+2*d)}, {v(TMP+2*d+1)}", ms))
            if g4+2 < 4: pr.append(rd(g4+2))
            if g4 == 1: pr.append(('mark', lambda: done.__setitem__(pos, True), 0))
        return head, pr
    def need(pos):
        def f(): assert done.get(pos), pos
        return f
    blk = lambda pos: [(pos, t) for t in range(24)]

    head, cv = conv_prog(1, (0, 0))
    vm = merge(spread(dma2_ops(1), 0, 1),
               {OPT['ta']+1: [([], f"buffer_atomic_add {v(vSD)}, {v(vSA)}, {s(ST,4)}, 0 offen {OPT['apol']}", 'arrC', [])]},
               spread([o + (need(1),) for o in h_ops(2, range(4), raw=True)], 17, 2))
    at = {(OPT['ta'], 5): [('wv', 'share')], (OPT['ta'], 6): [('bar',)],
          (21, 5): [('wv', ('w2', 1))], (21, 6): [('bar',)]}
    left = run(A, 0, blk(0), blk(1)[:2], vm, at, head + bias_prog([(t, 1) for t in range(8 if OPT['r3'] else 12, 24)]) + cv)
    assert not left, len(left)
    stamp(A, 'b1')
    def pollC(A):
        pollA(A, 'pollC', vSA, vPL, ST, 16)
    head, cv = conv_prog(2, (7, 14))
    d3 = dma2_ops(3)
    vm = merge(spread(h_ops(2, range(4, 8)), 0, 2), spread(dma2_ops(2), 2, 2),
               {OPT['tp']: [([], f"buffer_load_dword {v(vPL)}, {v(vSA)}, {s(ST,4)}, 0 offen sc1", 'pollC', [])]},
               spread([o + (need(2),) for o in h_ops(3, range(4))], 16, 2), spread(d3[:4], 22, 2))
    at = {(21, 3): [('raw', pollC)], (21, 5): [('wv', ('w2', 2))], (21, 6): [('bar',)]}
    bp = [('v', f"v_and_b32 {v(vSA)}, 0xf0, {v(vL16)}", 0), ('v', f"v_lshlrev_b32 {v(vSA)}, 4, {v(vSA)}", 0), ('v', f"v_add_u32 {v(vSA)}, {CNT_C:#x}, {v(vSA)}", 0)] + bias_prog([(t, 1) for t in ((5, 6, 7) if OPT['r3'] else (6, 7, 8, 9, 10, 11))] + [(t, t+2) for t in range(5 if OPT['r3'] else 6)])
    left = run(A, 24, blk(1), blk(2)[:2], vm, at, head + bp + cv)
    assert not left, len(left)
    stamp(A, 'b2')
    vm = merge(spread(h_ops(3, range(4, 8)), 0, 2), spread(d3[4:], 2, 2), spread(dma2_ops(4), 6, 2), spread(h_ops(4, range(8)), 12, 1))
    at = {(5, 2): [('bar',)], (21, 5): [('wv', ('w2', 3))], (21, 6): [('bar',)], (23, 7): [('wv', ('h', 3, 1))]}
    pr = []
    if OPT['pf5']:
        pr = [('v', f"v_min_u32 {v(vSD)}, 496, {v(vL16)}", 0),
              ('v', f"v_lshl_add_u32 {v(vSD)}, {v(vSD)}, 2, {s(sT0)}", 0),
              ('v', f"v_add_co_u32 {v(vSD)}, vcc, s40, {v(vSD)}", 0),
              ('v', f"v_mov_b32 {v(vSD+1)}, s41", 0), ('v', f"v_mov_b32 {v(vSD+1)}, s41", 0),
              ('v', f"v_addc_co_u32 {v(vSD+1)}, vcc, 0, {v(vSD+1)}, vcc", 0)]
        A(f"s_lshl_b32 {s(sT0)}, {s(sWAVE)}, 11")
        vm[1].append(([f"s_mov_b32 m0, {LDS_SCR:#x}"], f"global_load_lds_dword {v(vSD,2)}, off", 'pf', []))
    run(A, 48, blk(2), blk(3)[:2], vm, at, pr)
    align8(A)
    stamp(A, 'k3l')
    def pf_prog(off, lim='L_end-L_k3_last'):
        return [('v', f"v_lshl_add_u32 {v(vSD)}, {v(vL16)}, 2, {s(sPF+2)}", 0)] + \
               ([('v', f"v_add_u32 {v(vSD)}, {off}, {v(vSD)}", 0)] if off else []) + \
               [('v', f"v_min_u32 {v(vSD)}, {lim}, {v(vSD)}", 0),
                ('v', f"v_add_co_u32 {v(vSD)}, vcc, {s(sPF)}, {v(vSD)}", 0),
                ('v', f"v_mov_b32 {v(vSD+1)}, {s(sPF+1)}", 0),
                ('v', f"v_mov_b32 {v(vSD+1)}, {s(sPF+1)}", 0),
                ('v', f"v_addc_co_u32 {v(vSD+1)}, vcc, 0, {v(vSD+1)}, vcc", 0)]
    pf_op = ([f"s_mov_b32 m0, {LDS_SCR:#x}"], f"global_load_lds_dword {v(vSD,2)}, off", 'pf', [])
    def steady(A, pos):
        vm = merge(spread(dma2_ops(pos+2), 2, 1), spread(h_ops(pos+2, range(8)), 14, 1))
        at = {(1, 2): [('wv', ('w2', pos+1))], (1, 3): [('bar',)], (23, 7): [('wv', ('h', pos+1, 1))]}
        pr = []
        if pos % 3 == 1:
            at[(22, 0)] = [('scal', [f"s_sub_u32 {s(sCNT)}, {s(sCNT)}, 1", f"s_cmp_lg_u32 {s(sCNT)}, 0"])]
            if OPT['pf3']:
                pr = pf_prog(0, s(sT0) if OPT['pfl'] else 'L_end-L_k3_last'); vm[1] = [pf_op]
        if pos % 3 == 0 and OPT['pf3'] and OPT['pfl']:
            at[(22, 0)] = [('scal', [f"s_cmp_eq_u32 {s(sCNT)}, 1", f"s_cselect_b32 {s(sT0)}, L_end-L_k3_last, 0"])]
        left = run(A, 24*pos, blk(pos), blk(pos+1)[:2], vm, at, pr)
        assert not left
    B = Asm(); B.vm, B.lg = list(A.vm), list(A.lg)
    bodies = {}
    for pos in range(3, 20):
        start = len(B.lines)
        steady(B, pos)
        assert bodies.setdefault(pos % 3, B.lines[start:]) == B.lines[start:], pos
    A("s_branch L_k3_enter")
    align8(A)
    A.label("L_k3_loop")
    for r in (2, 0, 1):
        if r == 0: A.label("L_k3_enter")
        for l in bodies[r]:
            if OPT['drop3'] and re.match(OPT['drop3'], l): continue
            A(l)
    A("s_cbranch_scc1 L_k3_loop")
    A.label("L_k3_last")
    A.vm, A.lg = list(B.vm), list(B.lg)
    stamp(A, 'k3loopend')
    RA, RB_ = (0, 3), (1, 2)
    L = OPT['L']
    steps = [(20, t, RA) for t in range(24)] + [(20, t, RB_) for t in range(24)]
    def zig(t, rows): return [(21, t, rows), (22, t, rows[::-1]), (23, t, rows)]
    for t in range(L): steps += zig(t, RA)
    for t in range(L): steps += zig(t, RB_)
    for t in range(L, 24): steps += zig(t, (0, 1, 2, 3))
    fin = {}
    for i, (pos, t, rows) in enumerate(steps):
        if pos == 23 and t % 2 == 1:
            for rt in rows: fin[(t//2, rt)] = i + (2 if len(steps[min(i+1, len(steps)-1)][2]) == 4 else 3)
    def hx(pos, rows):
        return [([f"s_add_u32 {s(sHOFF)}, {s(sT1)}, {(pos-1)*32768 + k2*16384 + rt*4096:#x}"], hline(hreg(pos, k2*4+rt)), ('hx', pos, rows), [])
                for rt in rows for k2 in range(2)]
    def wq(pos, qu):
        pre = [f"s_add_u32 {s(sWOFF)}, {s(sM3)}, {2*W_BYTES + pos*49152 + qu*12288:#x}", f"s_add_u32 m0, {s(sM3)}, {(pos % 3)*49152 + qu*12288:#x}"]
        return [(pre if j == 0 else [], dma2_line(j), ('wq', pos, qu), []) for j in range(3)]
    pool, pr = [], []
    def ostore(P, u, rt):
        if OPT['fakest']: return f"buffer_store_dwordx4 {v(P,4)}, {v(vL16)}, {s(SO,4)}, {s(40+u//4+3*(rt%1))} offen offset:{(u%4)*1024} {OPT['opol']}".replace(f", {s(40+u//4)} ", f", {s(82+rt*3+u//4)} ")
        return f"buffer_store_dwordx4 {v(P,4)}, {v(vXO)}, {s(SO,4)}, {s(sXO+rt)} offen offset:{u*64} {OPT['opol']}"
    def pack(a0_, b0_, u, rt, ms):
        pr.append(('v', f"v_cvt_pk_bf16_f32 {v(a0_)}, {v(a0_)}, {v(a0_+1)}", ms))
        pr.append(('v', f"v_cvt_pk_bf16_f32 {v(a0_+1)}, {v(a0_+2)}, {v(a0_+3)}", ms))
        pr.append(('v', f"v_cvt_pk_bf16_f32 {v(a0_+2)}, {v(b0_)}, {v(b0_+1)}", ms))
        pr.append(('v', f"v_cvt_pk_bf16_f32 {v(a0_+3)}, {v(b0_+2)}, {v(b0_+3)}", ms))
        pr.append(('st', ostore(a0_, u, rt), ms))
        pool.append(b0_); pool.append(a0_)
    bq = {}
    def bias_fetch(key):
        bq[key] = (pool.pop(0), pool.pop(0))
        for e in range(2):
            l, _ = biasrd(bq[key][e], 2*key[0]+e)
            pr.append(('lds', (l, ('bq', key)), 0))
    def unit(u, rt, key=None):
        f, r0 = accname(2*u, rt, 0)
        ms = fin[(u, rt)]
        if f == 'v': return pack(r0, r0+4, u, rt, ms)
        assert len(pool) >= 3, (u, rt)
        T = (pool.pop(0), pool.pop(0))
        for e in range(2):
            for r in range(4): pr.append(('v', f"v_accvgpr_read_b32 {v(T[e]+r)}, {a(r0+4*e+r)}", ms))
        pr.append(('wl', ('bq', key), 0))
        for e in range(2):
            for r in range(4): pr.append(('v', f"v_add_f32 {v(T[e]+r)}, {v(T[e]+r)}, {v(bq[key][e]+r)}", ms))
        pack(T[0], T[1], u, rt, ms)
    groups = [((u, 'a'), [(u, 3)]) for u in range(L//2) if accname(2*u, 3, 0)[0] == 'a'] + [((u, 'b'), [(u, 1), (u, 2)]) for u in range(L//2)]
    groups += [((u, 'c'), [(u, rt) for rt in (1, 2, 3) if accname(2*u, rt, 0)[0] == 'a']) for u in range(L//2, 12)]
    vlist = [(u, rt) for u in range(12) for rt in (0, 3) if accname(2*u, rt, 0)[0] == 'v']
    unit(*vlist.pop(0)); unit(*vlist.pop(0)); bias_fetch(groups[0][0]); unit(*vlist.pop(0))
    groups.sort(key=lambda g_: fin[g_[1][0]])
    for gi, (key, us) in enumerate(groups):
        while vlist and fin[vlist[0]] <= max(fin[us[0]], fin[(2, 0)] + 4*gi): unit(*vlist.pop(0))
        early = gi+1 < len(groups) and len(pool) >= 5
        if early: bias_fetch(groups[gi+1][0])
        for u, rt in us: unit(u, rt, key)
        pool.extend(bq[key])
        if gi+1 < len(groups) and not early: bias_fetch(groups[gi+1][0])
    assert not vlist
    def place(d, ops, first, stride=1):
        for j, o in enumerate(ops):
            assert first + j*stride not in d
            d[first + j*stride] = [o]
    vm = {}
    T0_ = 48
    if OPT['sch'] == 0:
        place(vm, hx(22, RA), 0); place(vm, wq(22, 0) + wq(22, 1), 4, 2); place(vm, hx(22, RB_), 16, 2)
        place(vm, hx(23, RA), 24); place(vm, wq(22, 2), 28); place(vm, wq(23, 0), 31); place(vm, wq(22, 3), 34)
        place(vm, wq(23, 1), 37); place(vm, wq(23, 2), 43); place(vm, hx(23, RB_), T0_); place(vm, wq(23, 3), T0_+4)
        at = {(2, 3): [('wv', ('w2', 21))], (3, 1): [('bar',)],
              (30, 1): [('bar',)], (36, 1): [('bar',)],
              (41, 3): [('wv', ('wq', 23, 0))], (42, 1): [('bar',)],
              (T0_+2, 3): [('wv', ('wq', 23, 1))], (T0_+3, 1): [('bar',)],
              (T0_+3*L-4, 3): [('wv', ('wq', 23, 3))], (T0_+3*L-3, 1): [('bar',)]}
    else:
        place(vm, wq(22, 0) + wq(22, 1), 4); place(vm, hx(22, RA), 10, 2); place(vm, wq(22, 2) + wq(22, 3), 18)
        place(vm, hx(23, RA), 24, 2); place(vm, wq(23, 0), 31)
        place(vm, hx(22, RB_)[:2], 34, 2); place(vm, wq(23, 1), 37); place(vm, hx(22, RB_)[2:], 40, 2)
        place(vm, wq(23, 2), 43); place(vm, hx(23, RB_), T0_); place(vm, wq(23, 3), T0_+4)
        at = {(2, 3): [('wv', ('w2', 21))], (3, 1): [('bar',)],
              (30, 1): [('bar',)], (36, 1): [('bar',)], (42, 1): [('bar',)],
              (45, 3): [('wv', ('wq', 23, 0))], (46, 1): [('bar',)],
              (T0_+3, 1): [('bar',)],
              (T0_+14, 3): [('wv', ('wq', 23, 1))], (T0_+15, 1): [('bar',)],
              (T0_+3*L-1, 3): [('wv', ('hx', 22, RB_))],
              (T0_+3*L+1, 3): [('wv', ('wq', 23, 3))], (T0_+3*L+2, 1): [('bar',)]}
    assert L <= 12 and min(fin.values()) > T0_+6
    if OPT['pf3'] and OPT['sch'] == 0:
        pr = pf_prog(8192) + pr
        place(vm, [pf_op], 15)
    at.setdefault((T0_, 1), []).append(('raw', lambda A: stamp(A, 't1')))
    at.setdefault((T0_+6*L, 3), []).append(('raw', lambda A: stamp(A, 't2')))
    left = run(A, 24*20, steps, [], vm, at, pr)
    stamp(A, 't3')
    A("s_nop 7")
    for kind, pay, _ in left:
        if kind == 'v': A(pay)
        elif kind == 'lds': A.lds(*pay)
        elif kind == 'st': A.vmem(pay, 'o')
        elif kind == 'wl': A.wait_lg(lambda tg: tg == pay)
        else: assert False
    print("epilogue items left after the last MFMA:", len(left), "stores:", sum(1 for x in left if x[0] == 'st'))
    if OPT['stamps']:
        A("s_waitcnt vmcnt(0)")
        stamp(A, 'end')
        A(f"s_lshl_b32 {s(sT0)}, {s(sGW)}, 7")
        A(f"s_add_u32 {s(sT0)}, {s(sT0)}, {STAMP:#x}")
        A("s_waitcnt lgkmcnt(0)")
        A("s_mov_b64 exec, 1")
        A("v_mov_b32 v2, 0")
        for i in range(nstamp[0]):
            A(f"v_mov_b32 v4, {s(streg(i))}")
            A(f"v_mov_b32 v5, {s(streg(i) + (0 if OPT['rtonly'] else 2))}")
            A(f"buffer_store_dwordx2 v[4:5], v2, {s(SW,4)}, {s(sT0)} offen offset:{8*i}")
    if OPT['leak']:
        A("s_waitcnt vmcnt(0)")
        stamp(A, 'end')
        A("s_memrealtime s[100:101]")
        A(f"s_cmp_lg_u32 {s(sGW)}, 0")
        A("s_cbranch_scc1 L_end")
        A("s_waitcnt lgkmcnt(0)")
        A("s_sub_u32 s94, s98, s96")
        A("s_mul_i32 s94, s94, 10")
        A("s_min_u32 s94, s94, 200000")
        A.label("L_leak")
        A("s_memrealtime s[92:93]")
        A("s_waitcnt lgkmcnt(0)")
        A("s_sub_u32 s92, s92, s100")
        A("s_cmp_lt_u32 s92, s94")
        A("s_cbranch_scc1 L_leak")
    A.label("L_end")
    A("s_endpgm")
    return A


def main():
    A = gen()
    body = A.text()
    body = body.replace(" s_cbranch_scc1 L_exit_early\n", " s_cbranch_scc0 L_go\n s_endpgm\n s_nop 0\nL_go:\n")
    head = open('standalone__modern_conv_block_slak__vision.s.ref').read().split('; Override launch')[0]
    out = head
    out += f"; @launch grid=(256,1,1) block=(256,1,1) lds={LDS_BYTES}\n"
    out += '.amdgcn_target "amdgcn-amd-amdhsa--gfx950"\n'
    out += kernel_text(NAME, body)
    out += '.section .rodata,"a"\n'
    out += descriptor(NAME, 512, 256)
    open(sys.argv[1], 'w').write(out)
    print(f"wrote {sys.argv[1]}: {len(out)} bytes, {out.count(chr(10))} lines, code ~{A.pc} B")

main()
```

```python
import sys, math, re
import asmlib
from asmlib import *
asmlib.AUTO_LABEL = True

OPT = dict(xpol='nt', pf3=1, L=8, r3=1, pfl=1, notask=0, e1=0, itr=0, itr3=0, pkb0=1, pkc0=1, pkb1=1, pkc1=1, bo=0, bon=4, pf5=1, rev=0, pf6=47, sch=1, ta=10, tp=11, n2=4, n3=8, tc=18, c0=8, c00=0, c01=0, th=16, hold=1, sp=1, fakest=0, pf4=2, hpf=0, xf=0, n1=12, n2x=0, pf1=1, apol='sc1', cws=0, rtonly=0, D=12, n0=6, hpol='sc1', hlpol='', wpol='sc1', opol='sc1', stamps=0, R=4, skew=5, drop='', drop3='', sleep=1, leak='', stn='start,ln2,k1,k1end,sigB,go,k3,k3loopend,end', pf2=2)
for arg in sys.argv[2:]:
    k, val = arg.split('=')
    OPT[k] = type(OPT[k])(val.replace('+', ' '))
NREP = OPT['R']
NAME = 'standalone__modern_conv_block_slak__vision_kernel'

WS_BYTES = 0x10000000
X_BYTES = 65536 * 768
W_BYTES = 384 * 1536 * 2
HSTR = 0xC3000
W1P = 0xC400000
W2P = 0xC520000
W2S = W2P + W_BYTES
SUMS = 0xC780000
CNT_C = NREP*6144 + 2048
ZERO_BYTES = CNT_C + 4096
STAMP = 0xC800000
SPIN_MAX = 1 << 16

KG = 2.0 * math.sqrt(2.0 / math.pi) * math.log2(math.e)
A_SC = (KG * 0.044715) ** (1.0 / 3.0)
K_SC = KG / A_SC

SX, SW, ST, SH, SD, SP, SO, SDBG, SG, SBB = 4, 8, 12, 32, 36, 40, 44, 48, 52, 56
sWAVE, sWOFF, sGW, sCNT, sK, sA, sM0B = 16, 17, 18, 19, 20, 22, 24
sT0, sT1, sT2 = 25, 26, 27
sH4 = 28
sPC = 64
sXO = 60
KA = 64
STB = 66

LDS_SUM = 4 * 24576
LDS_XK = 112 * 1024
LDS_TAB = 3 * 49152
LDS_RED = LDS_TAB + 12288
LDS_SCR = LDS_RED + 256
LDS_BYTES = 160 * 1024

nstamp = [0]
def streg(i):
    if OPT['rtonly']: return (100, 98, 96, 66, 68, 70, 72, 74, 76, 78, 80, 86)[i]
    return (66, 70, 74, 78, 82, 86, 90, 96, 56)[i]
LK = {}
def stamp(A, label):
    if OPT['leak']:
        if label in OPT['leak'].split(','):
            r = 96 + 2*OPT['leak'].split(',').index(label)
            A(f"s_memrealtime {s(r, 2)}")
        return
    if not OPT['stamps'] or label not in OPT['stn'].split(','): return
    i = nstamp[0]; nstamp[0] += 1
    A(f"s_memrealtime {s(streg(i), 2)}")
    if not OPT['rtonly']: A(f"s_memtime {s(streg(i) + 2, 2)}")


def srd(A, d, src, nbytes, add=None):
    if add is None:
        A(f"s_mov_b32 {s(d)}, {s(src)}")
        A(f"s_mov_b32 {s(d+1)}, {s(src+1)}")
    else:
        A(f"s_add_u32 {s(d)}, {s(src)}, {add}")
        A(f"s_addc_u32 {s(d+1)}, {s(src+1)}, 0")
    A(f"s_mov_b32 {s(d+2)}, {nbytes:#x}")
    A(f"s_mov_b32 {s(d+3)}, 0x20000")


def xlane_sum(A, regs, tmps):
    for op in ('v_permlane16_swap_b32', 'v_permlane32_swap_b32'):
        for r, t in zip(regs, tmps): A(f"v_mov_b32 {v(t)}, {v(r)}")
        A("s_nop 1")
        for r, t in zip(regs, tmps): A(f"{op} {v(r)}, {v(t)}")
        A("s_nop 1")
        for r, t in zip(regs, tmps): A(f"v_add_f32 {v(r)}, {v(r)}, {v(t)}")


def align8(A):
    if A.pc % 8: A("s_nop 0")


def poll_issue(A, name, vz, vdst, off):
    A(f"v_mov_b32 {v(vz)}, 0")
    A.vmem(f"buffer_load_dword {v(vdst)}, {v(vz)}, {s(SDBG,4)}, 0 offen offset:{128+off} sc1", name)


def poll(A, name, vz, vdst, off):
    A(f"s_mov_b32 {s(sT0)}, {SPIN_MAX}")
    A.wait_vm(lambda t: t == name)
    A(f"v_cmp_eq_u32 vcc, 0, {v(vdst)}")
    A("s_nop 4")
    A(f"s_cbranch_vccz L_{name}_ok")
    A.label(f"L_{name}_spin")
    if OPT['sleep']: A(f"s_sleep {OPT['sleep']}")
    if OPT['bo']:
        A(f"s_cmp_gt_u32 {s(sT0)}, {SPIN_MAX - OPT['bon']}")
        A(f"s_cbranch_scc1 L_{name}_now")
        A(f"s_sleep {OPT['bo']}")
        A.label(f"L_{name}_now")
    A(f"buffer_load_dword {v(vdst)}, {v(vz)}, {s(SDBG,4)}, 0 offen offset:{128+off} sc1")
    A(f"s_sub_u32 {s(sT0)}, {s(sT0)}, 1")
    A("s_waitcnt vmcnt(0)")
    A(f"s_cbranch_scc1 L_{name}_ok")
    A(f"v_cmp_eq_u32 vcc, 0, {v(vdst)}")
    A("s_nop 4")
    A(f"s_cbranch_vccnz L_{name}_spin")
    A.label(f"L_{name}_ok")


def arrive_issue(A, name, vt, off, wave):
    A(f"s_cmp_eq_u32 {s(sWAVE)}, {wave}")
    A(f"s_cselect_b32 {s(sT0)}, 0, 0x100000")
    A(f"s_mov_b32 {s(sT1)}, {CNT_C + 128:#x}")
    A(f"v_mov_b32 {v(vt)}, 1")
    A(f"v_mov_b32 {v(vt+1)}, {s(sT0)}")
    A("s_mov_b64 exec, 1")
    A.vmem(f"buffer_atomic_add {v(vt)}, {v(vt+1)}, {s(ST,4) if OPT['cws'] else s(SDBG,4)}, {s(sT1) if OPT['cws'] else 0} offen offset:{off} sc0 {OPT['apol']}", name)
    A("s_mov_b64 exec, -1")


def arrive_finish(A, name, vt, off, wave):
    keep = list(A.vm)
    A(f"s_cmp_lg_u32 {s(sWAVE)}, {wave}")
    A(f"s_cbranch_scc1 L_{name}_done")
    A.wait_vm(lambda t: t == name)
    A(f"v_readfirstlane_b32 {s(sT0)}, {v(vt)}")
    A("s_nop 3")
    A(f"s_cmp_lg_u32 {s(sT0)}, 255")
    A(f"s_cbranch_scc1 L_{name}_done")
    A("s_mov_b64 exec, 1")
    A(f"buffer_store_dword {v(vt)}, {v(vt+1)}, {s(SDBG,4)}, 0 offen offset:{128+off} sc1")
    A("s_mov_b64 exec, -1")
    A.label(f"L_{name}_done")
    A.vm = keep


def pollA(A, name, vaddr, vdst, sr=SDBG, cnt=64):
    A(f"s_mov_b32 {s(sT0)}, {SPIN_MAX}")
    A.wait_vm(lambda t: t == name)
    A(f"v_cmp_gt_u32 vcc, {cnt}, {v(vdst)}")
    A("s_nop 4")
    A(f"s_cbranch_vccz L_{name}_ok")
    A.label(f"L_{name}_spin")
    A("s_sleep 16")
    A(f"buffer_load_dword {v(vdst)}, {v(vaddr)}, {s(sr,4)}, 0 offen sc1")
    A(f"s_sub_u32 {s(sT0)}, {s(sT0)}, 1")
    A("s_waitcnt vmcnt(0)")
    A(f"s_cbranch_scc1 L_{name}_ok")
    A(f"v_cmp_gt_u32 vcc, {cnt}, {v(vdst)}")
    A("s_nop 4")
    A(f"s_cbranch_vccnz L_{name}_spin")
    A.label(f"L_{name}_ok")


def signalA(A, name, vt):
    A(f"s_cmp_lg_u32 {s(sWAVE)}, 0")
    A(f"s_cbranch_scc1 L_{name}_nosig")
    A(f"s_lshr_b32 {s(sT0)}, s2, 3")
    A(f"s_and_b32 {s(sT0)}, {s(sT0)}, 3")
    A(f"s_lshl_b32 {s(sT0)}, {s(sT0)}, 6")
    A(f"v_mov_b32 {v(vt)}, 1")
    A(f"v_mov_b32 {v(vt+1)}, {s(sT0)}")
    A("s_mov_b64 exec, 1")
    A(f"buffer_atomic_add {v(vt)}, {v(vt+1)}, {s(SDBG,4)}, 0 offen {OPT['apol']}")
    A("s_mov_b64 exec, -1")
    A.label(f"L_{name}_nosig")


npf = [0]
sSL = 95
def code_pf(A, label, t, vL16, dst, sp=sPC):
    npf[0] += 1
    A(f"s_getpc_b64 {s(sp,2)}")
    A.label(f"L_pc{npf[0]}")
    A(f"s_add_u32 {s(sp)}, {s(sp)}, {label}-L_pc{npf[0]}")
    A(f"s_addc_u32 {s(sp+1)}, {s(sp+1)}, 0")
    for l in pf_addr(f"L_end-{label}", t, vL16, sp): A(l)
    A.vmem(f"global_load_dword {v(dst)}, {v(t,2)}, off", 'pf')


def pf_addr(lim, t, vL16, sp):
    return [f"v_and_b32 {v(t)}, 0xf0, {v(vL16)}",
            f"v_lshl_add_u32 {v(t)}, {v(t)}, 2, {s(sSL)}",
            f"v_min_u32 {v(t)}, {lim}, {v(t)}",
            f"v_add_co_u32 {v(t)}, vcc, {s(sp)}, {v(t)}",
            f"v_mov_b32 {v(t+1)}, {s(sp+1)}",
            f"v_mov_b32 {v(t+1)}, {s(sp+1)}",
            f"v_addc_co_u32 {v(t+1)}, vcc, 0, {v(t+1)}, vcc"]


def pollA_smem(A, r, vL16, vaddr, vdst):
    A("s_waitcnt lgkmcnt(0)"); A.lg = []
    A(f"s_min_u32 {s(r)}, {s(r)}, {s(r+1)}")
    A(f"s_min_u32 {s(r+2)}, {s(r+2)}, {s(r+3)}")
    A(f"s_min_u32 {s(r)}, {s(r)}, {s(r+2)}")
    A(f"s_cmp_ge_u32 {s(r)}, 64")
    A("s_cbranch_scc1 L_pollA_ok")
    A(f"s_mov_b32 {s(sT0)}, {SPIN_MAX}")
    A(f"v_and_b32 {v(vaddr)}, 48, {v(vL16)}")
    A(f"v_lshlrev_b32 {v(vaddr)}, 2, {v(vaddr)}")
    A.label("L_pollA_spin")
    A(f"buffer_load_dword {v(vdst)}, {v(vaddr)}, {s(SDBG,4)}, 0 offen sc1")
    A(f"s_sub_u32 {s(sT0)}, {s(sT0)}, 1")
    A("s_waitcnt vmcnt(0)")
    A("s_cbranch_scc1 L_pollA_ok")
    A(f"v_cmp_gt_u32 vcc, 64, {v(vdst)}")
    A("s_nop 4")
    A("s_cbranch_vccz L_pollA_ok")
    A("s_sleep 16")
    A("s_branch L_pollA_spin")
    A.label("L_pollA_ok")


def gen():
    A = Asm()
    A("s_cmp_ge_u32 s2, 256")
    A("s_cbranch_scc1 L_exit_early")
    stamp(A, 'entry')
    A(f"s_load_dwordx16 {s(KA,16)}, s[0:1], 0")
    A(f"s_load_dwordx2 {s(KA+16,2)}, s[0:1], 64")
    vL16, vXO = 0, 1
    A("v_lshrrev_b32 v2, 6, v0")
    A("v_and_b32 v3, 63, v0")
    A(f"v_readfirstlane_b32 {s(sWAVE)}, v2")
    A(f"v_lshlrev_b32 {v(vL16)}, 4, v3")
    A(f"s_bfe_u32 {s(sSL)}, s2, 0x30003")
    A(f"s_lshl_b32 {s(sSL)}, {s(sSL)}, 2")
    A(f"s_add_u32 {s(sSL)}, {s(sSL)}, {s(sWAVE)}")
    A(f"s_lshl_b32 {s(sSL)}, {s(sSL)}, 10")
    if OPT['pf1'] == 1: code_pf(A, 'L_head', 16, vL16, 20, sp=26); A.label("L_head")
    A("v_lshrrev_b32 v4, 4, v3")
    A("v_and_b32 v5, 15, v3")
    A("v_lshlrev_b32 v6, 4, v4")
    A(f"s_lshl_b32 {s(sGW)}, s2, 2")
    A(f"s_add_u32 {s(sGW)}, {s(sGW)}, {s(sWAVE)}")
    A(f"s_mul_i32 {s(sXO)}, {s(sGW)}, {64*768}")
    for rt in range(1, 4): A(f"s_add_u32 {s(sXO+rt)}, {s(sXO)}, {rt*16*768}")
    sSEL, sTASK, sVAL, sSTR, sSRC, sDST, sD1, sD2 = 82, 83, 84, 85, 86, 87, 88, 89
    sBK, sBC = 92, 3
    A(f"s_mov_b32 {s(sTASK)}, s2")
    A(f"s_mov_b32 {s(sSEL)}, {s(sWAVE)}")
    A(f"s_mov_b32 {s(sVAL)}, {0 if OPT['notask'] else W_BYTES:#x}")
    A(f"s_cmp_lt_u32 {s(sWAVE)}, 2")
    A("s_cbranch_scc1 L_task_ok")
    A(f"s_lshr_b32 {s(sTASK)}, s2, 3")
    A(f"s_add_u32 {s(sTASK)}, {s(sTASK)}, 256")
    A(f"s_bfe_u32 {s(sSEL)}, s2, 0x10002")
    A(f"s_and_b32 {s(sT0)}, s2, 3")
    A(f"s_sub_u32 {s(sT1)}, {s(sWAVE)}, 2")
    A(f"s_or_b32 {s(sT0)}, {s(sT0)}, {s(sT1)}")
    A(f"s_cmp_eq_u32 {s(sT0)}, 0")
    A(f"s_cselect_b32 {s(sVAL)}, {s(sVAL)}, 0")
    A.label("L_task_ok")
    A(f"s_cmp_eq_u32 {s(sSEL)}, 0")
    A("s_cbranch_scc0 L_task_w2")
    A(f"s_mul_hi_u32 {s(sT0)}, {s(sTASK)}, 0x15555556")
    A(f"s_mul_i32 {s(sT1)}, {s(sT0)}, 12")
    A(f"s_sub_u32 {s(sT1)}, {s(sTASK)}, {s(sT1)}")
    A(f"s_mov_b32 {s(sSTR)}, 3072")
    A(f"s_mul_i32 {s(sDST)}, {s(sT0)}, {2*24576}")
    A(f"s_lshl_b32 {s(sT2)}, {s(sT1)}, 10")
    A(f"s_add_u32 {s(sDST)}, {s(sDST)}, {s(sT2)}")
    A(f"s_mov_b32 {s(sD1)}, 12288")
    A(f"s_mov_b32 {s(sD2)}, 24576")
    A("s_branch L_task_j")
    A.label("L_task_w2")
    A(f"s_mul_hi_u32 {s(sT1)}, {s(sTASK)}, 0x2AAAAAAB")
    A(f"s_mul_i32 {s(sT0)}, {s(sT1)}, 6")
    A(f"s_sub_u32 {s(sT0)}, {s(sTASK)}, {s(sT0)}")
    A(f"s_mov_b32 {s(sSTR)}, 768")
    A(f"s_lshr_b32 {s(sT2)}, {s(sT1)}, 1")
    if OPT['rev']:
        A(f"s_sub_u32 {s(sT2)}, 23, {s(sT2)}")
    else:
        A(f"s_add_u32 {s(sT2)}, {s(sT2)}, 1")
        A(f"s_cmp_eq_u32 {s(sT2)}, 24")
        A(f"s_cselect_b32 {s(sT2)}, 0, {s(sT2)}")
    A(f"s_mul_i32 {s(sDST)}, {s(sT2)}, 49152")
    A(f"s_and_b32 {s(sT2)}, {s(sT1)}, 1")
    A(f"s_lshl_b32 {s(sT2)}, {s(sT2)}, 10")
    A(f"s_add_u32 {s(sDST)}, {s(sDST)}, {s(sT2)}")
    A(f"s_lshl_b32 {s(sT2)}, {s(sT0)}, 13")
    A(f"s_add_u32 {s(sDST)}, {s(sDST)}, {s(sT2)}")
    A(f"s_mov_b32 {s(sD1)}, 2048")
    A(f"s_mov_b32 {s(sD2)}, 4096")
    A.label("L_task_j")
    A(f"s_lshl_b32 {s(sBK)}, {s(sT1)}, 6")
    A(f"s_lshl_b32 {s(sBC)}, {s(sT0)}, 8")
    A(f"s_add_u32 {s(sBC)}, {s(sBC)}, {NREP*6144}")
    A(f"s_mul_i32 {s(sT2)}, {s(sSEL)}, {s(sVAL)}")
    A(f"s_cmp_eq_u32 {s(sT2)}, 0")
    A(f"s_cselect_b32 {s(sBC)}, 0x100000, {s(sBC)}")
    A(f"s_mul_i32 {s(sSRC)}, {s(sT1)}, {s(sSTR)}")
    A(f"s_lshl_b32 {s(sSRC)}, {s(sSRC)}, 5")
    A(f"s_lshl_b32 {s(sT0)}, {s(sT0)}, 7")
    A(f"s_add_u32 {s(sSRC)}, {s(sSRC)}, {s(sT0)}")
    A(f"s_lshl_b32 {s(sT0)}, {s(sSTR)}, 3")
    A(f"v_mul_lo_u32 v7, v4, {s(sT0)}")
    A("v_lshl_add_u32 v7, v5, 3, v7")
    vXD, sXM = 11, 90
    A("v_lshrrev_b32 v8, 3, v3")
    A("v_and_b32 v9, 7, v3")
    A("v_xor_b32 v9, v8, v9")
    A(f"v_mul_u32_u24 {v(vXD)}, 768, v8")
    A(f"v_lshl_add_u32 {v(vXD)}, v9, 4, {v(vXD)}")
    A(f"s_lshl_b32 {s(sXM)}, {s(sWAVE)}, 11")
    A("s_waitcnt lgkmcnt(0)")
    stamp(A, 'ka')
    srd(A, SX, KA+0, X_BYTES)
    XREG = (LDS_XK, 49152, 0, 49152)
    def xload(rt, j):
        kp, rh = divmod(j, 2)
        A(f"s_add_u32 m0, {s(sXM)}, {XREG[rt] + kp*8192 + rh*1024:#x}")
        A(f"s_add_u32 {s(sXM+1)}, {s(sXO+rt)}, {rh*8*768 + kp*128}")
        A.vmem(f"buffer_load_dwordx4 {v(vXD)}, {s(SX,4)}, {s(sXM+1)} offen {OPT['xpol']} lds", ('x', rt, kp))
    nissued = [0]
    def issue_upto(n):
        while nissued[0] < min(n, 60):
            i = nissued[0]; nissued[0] += 1
            if i < 48: xload(i // 12, i % 12)
            else: wpiece(i - 48)
    issue_upto(OPT['xf'])
    if OPT['pf1'] == 2: code_pf(A, 'L_head2', 16, vL16, 20, sp=26); A.label("L_head2")
    A(f"s_cmp_eq_u32 {s(sSEL)}, 0")
    A(f"s_cselect_b32 {s(SP)}, {s(KA+4)}, {s(KA+6)}")
    A(f"s_cselect_b32 {s(SP+1)}, {s(KA+5)}, {s(KA+7)}")
    A(f"s_cselect_b32 {s(sT2)}, 0, {W2P-W1P:#x}")
    A(f"s_mov_b32 {s(SP+2)}, {s(sVAL)}")
    A(f"s_mov_b32 {s(SP+3)}, 0x20000")
    GA = 112
    for j in range(8):
        A.vmem(f"buffer_load_dwordx2 {v(GA+2*j,2)}, v7, {s(SP,4)}, {s(sSRC)} offen", 'ga')
        if j < 7: A(f"s_add_u32 {s(sSRC)}, {s(sSRC)}, {s(sSTR)}")
    issue_upto(OPT['n0'])
    srd(A, SBB, KA+10, 3072)
    A.vmem(f"buffer_load_dwordx4 v[160:163], v6, {s(SBB,4)}, {s(sBK)} offen", 'gb0')
    srd(A, ST, KA+2, 768)
    DWL, DWH, Y0 = 16, 64, 112
    for ks in range(12):
        A.vmem(f"buffer_load_dwordx4 {v(DWH+4*ks,4)}, v6, {s(ST,4)}, 0 offen offset:{ks*64}", 'dw')
    srd(A, SW, KA+16, WS_BYTES)
    A(f"s_mul_i32 {s(sT0)}, s2, {HSTR:#x}")
    srd(A, SH, KA+16, 0, add=s(sT0))
    srd(A, SD, KA+16, 3*W_BYTES, add=f"{W1P:#x}")
    srd(A, SO, KA+12, X_BYTES)
    srd(A, SDBG, KA+14, 256)
    srd(A, SG, KA+8, 3072)
    A(f"s_add_u32 {s(SP)}, {s(SD)}, {s(sT2)}")
    A(f"s_addc_u32 {s(SP+1)}, {s(SD+1)}, 0")
    srd(A, ST, KA+16, ZERO_BYTES, add=f"{SUMS:#x}")
    stamp(A, 'start')
    A(f"s_lshl_b32 {s(sT0)}, {s(sWAVE)}, 10")
    for rt in range(4):
        A(f"s_sub_u32 {s(sH4+rt)}, {s(sT0)}, {(2 + rt//2)*16384 - (rt << 12):#x}")
    A(f"s_mul_i32 {s(sM0B)}, {s(sWAVE)}, 6144")
    A(f"s_mov_b32 {s(sWOFF)}, {s(sM0B)}")
    A(f"s_mov_b32 {s(sK)}, {f2u(K_SC):#x}")
    A(f"s_mov_b32 {s(sK+1)}, {f2u(K_SC):#x}")
    A(f"s_mov_b32 {s(sA)}, {f2u(A_SC):#x}")
    A(f"s_mov_b32 {s(sA+1)}, {f2u(A_SC):#x}")
    A("v_lshrrev_b32 v8, 3, v5")
    A("v_and_b32 v9, 1, v5")
    A("v_lshl_add_u32 v8, v8, 1, v9")
    A("v_lshlrev_b32 v8, 10, v8")
    A("v_lshl_add_u32 v8, v4, 8, v8")
    A("v_bfe_u32 v9, v5, 1, 2")
    A("v_lshl_add_u32 v8, v9, 6, v8")
    A(f"s_lshl_b32 {s(sT0)}, {s(sWAVE)}, 12")
    A(f"s_add_u32 {s(sT0)}, {s(sT0)}, {LDS_SUM:#x}")
    A(f"v_add_u32 v8, {s(sT0)}, v8")
    A(f"v_add_u32 v9, {s(sT0)}, {v(vL16)}")
    A(f"s_lshl_b32 {s(sT0)}, {s(sGW)}, 10")
    A(f"v_add_u32 v10, {s(sT0)}, {v(vL16)}")
    A(f"s_mov_b32 {s(sT0)}, 0x05040100")
    A(f"s_mov_b32 {s(sT1)}, 0x07060302")
    for i in range(4): A(f"v_mov_b32 {v(12+i)}, 0")
    A.wait_vm(lambda t: t == 'ga')
    stamp(A, 'ga')
    PB_ = 128
    for i in range(4):
        for d in range(4):
            A(f"v_perm_b32 {v(PB_+4*i+d)}, {v(GA+2*(2*d+1)+(i>>1))}, {v(GA+2*(2*d)+(i>>1))}, {s(sT1 if i & 1 else sT0)}")
        A.lds(f"ds_write_b128 v8, {v(PB_+4*i,4)} offset:{16*i}", 'bw')
    A.wait_lg(lambda t: True)
    for f in range(4):
        A.lds(f"ds_read_b128 {v(144+4*f,4)}, v9 offset:{1024*f}", ('br', f))
    A.vmem(f"buffer_store_dwordx4 v[12:15], v10, {s(ST,4)}, 0 offen sc1", 'pub')
    A(f"s_add_u32 {s(sT0)}, {s(sDST)}, {s(sD1)}")
    A(f"s_add_u32 {s(sT1)}, {s(sDST)}, {s(sD2)}")
    A(f"s_add_u32 {s(sT2)}, {s(sT1)}, {s(sD1)}")
    for f, so in enumerate((sDST, sT0, sT1, sT2)):
        A.wait_lg(lambda t: t == ('br', f))
        A.vmem(f"buffer_store_dwordx4 {v(144+4*f,4)}, {v(vL16)}, {s(SP,4)}, {s(so)} offen sc1", 'pub')
    issue_upto(OPT['n1'])
    A.wait_vm(lambda t: t == 'gb0')
    for d in range(4):
        for i in range(4):
            A(f"v_dot2_f32_bf16 {v(164+i)}, {v(PB_+4*i+d)}, {v(160+d)}, {v(164+i) if d else 0}")
    A("s_nop 3")
    A("v_permlane16_swap_b32 v164, v165")
    A("v_permlane16_swap_b32 v166, v167")
    A("s_nop 1")
    A("v_add_f32 v164, v164, v165")
    A("v_add_f32 v166, v166, v167")
    A("s_nop 1")
    A("v_permlane32_swap_b32 v164, v166")
    A("s_nop 1")
    A("v_add_f32 v164, v164, v166")
    A("v_accvgpr_write_b32 a192, v164")
    A.wait_vm(lambda t: t == 'dw')
    stamp(A, 'dw')
    issue_upto(OPT['n2x'])
    for i in range(48):
        A(f"v_and_b32 {v(DWL+i)}, 0xffff, {v(DWH+i)}")
        A(f"v_and_b32 {v(DWH+i)}, 0xffff0000, {v(DWH+i)}")

    sWM, sWEND, sRB, sPH = 40, 41, 42, 43
    def dma1(c, half):
        ld = [f"buffer_load_dwordx4 {v(vL16)}, {s(SD,4)}, {s(sWOFF)} offen offset:{i*1024} {OPT['wpol']} lds" for i in range(3)]
        m0 = [f"s_add_u32 m0, {s(sM0B)}, {c*24576 + half*3072:#x}" if c < 3 else f"s_add_u32 m0, {s(sWM)}, {half*3072}"]
        adv = [f"s_add_u32 {s(sWOFF)}, {s(sWOFF)}, {3072 if half == 0 else 24576-3072:#x}"]
        return m0, ld, adv
    def dma1_now(c, half):
        m0, ld, adv = dma1(c, half)
        A(m0[0]); A("s_nop 0")
        for l in ld: A.vmem(l, ('w', c))
        if (c, half) != (2, 1): A(adv[0])

    wopen = [False]
    def wpiece(i):
        assert wopen[0]
        c, r = divmod(i, 6); half, j = divmod(r, 3)
        m0, ld, adv = dma1(c, half)
        if j == 0: A(m0[0]); A("s_nop 0")
        A.vmem(ld[j], ('w', c))
        if j == 2: A(adv[0])
    A.wait_vm(lambda t: t == 'pub')
    A("s_barrier")
    signalA(A, 'sigA', 208)
    stamp(A, 'sigA')
    issue_upto(OPT['n0'] + OPT['D'])
    XL = 208
    vR0, vR1, vK0, vK1 = 12, 13, 14, 15
    A("v_and_b32 v8, 7, v5")
    A("v_xor_b32 v9, v8, v4")
    A("v_lshlrev_b32 v9, 4, v9")
    A("v_lshl_add_u32 v9, v5, 7, v9")
    A(f"v_add_u32 {v(vR0)}, {s(sXM)}, v9")
    A(f"v_xor_b32 {v(vR1)}, 64, {v(vR0)}")
    A(f"v_add_u32 {v(vK0)}, {LDS_XK:#x}, {v(vR0)}")
    A(f"v_add_u32 {v(vK1)}, {LDS_XK:#x}, {v(vR1)}")
    def xread(rt, ks, dst, tag):
        kp, par = divmod(ks, 2)
        if rt == 0: base, off = (vK0, vK1)[par], kp*8192
        elif rt == 2: base, off = (vR0, vR1)[par], kp*8192
        else: base, off = (vR0, vR1)[par], kp*8192
        A.lds(f"ds_read_b128 {dst}, {v(base)} offset:{off}", tag)
    T0, S0, S1, Q0, Q1 = 2, 2, 4, 6, 8
    vRB, vSUMA = 2, 3
    vPA, vDUM = 10, 1
    def fetch(rt, kp):
        A.wait_vm(lambda t: t == ('x', rt, kp))
        for ks in (2*kp, 2*kp+1):
            if rt == 1: xread(rt, ks, a(208+4*ks, 4), 'keep')
            if rt == 3: xread(rt, ks, a(144+4*ks, 4), 'keep')
            xread(rt, ks, v(XL+4*ks, 4), ('xl', rt, ks))
        issue_upto(min(rt*12 + 2*kp + 2 + OPT['D'], 60 if wopen[0] else 48))
    for rt in range(4):
        XL = 208 if rt < 3 else 160
        if rt in (1, 3):
            A(f"v_add_u32 {v(vR0)}, 49152, {v(vR0)}"); A(f"v_add_u32 {v(vR1)}, 49152, {v(vR1)}")
        if rt == 2:
            A(f"v_subrev_u32 {v(vR0)}, 49152, {v(vR0)}"); A(f"v_subrev_u32 {v(vR1)}, 49152, {v(vR1)}")
        fetch(rt, 0)
        for ks in range(12):
            if ks % 2 == 0 and ks < 10: fetch(rt, ks//2 + 1)
            A.wait_lg(lambda t: t == ('xl', rt, ks))
            for d in range(4):
                i = ks*4 + d
                A(f"v_dot2_f32_bf16 {v(Y0+2*i)}, {v(XL+i)}, {v(DWL+i)}, 0")
                A(f"v_dot2_f32_bf16 {v(Y0+2*i+1)}, {v(XL+i)}, {v(DWH+i)}, 0")
            if ks == 0:
                A("s_nop 2")
                A(f"v_pk_add_f32 {v(S0,2)}, {v(Y0,2)}, {v(Y0+4,2)}")
                A(f"v_pk_mul_f32 {v(Q0,2)}, {v(Y0,2)}, {v(Y0,2)}")
                A(f"v_pk_add_f32 {v(S1,2)}, {v(Y0+2,2)}, {v(Y0+6,2)}")
                A(f"v_pk_mul_f32 {v(Q1,2)}, {v(Y0+2,2)}, {v(Y0+2,2)}")
                A(f"v_pk_fma_f32 {v(Q0,2)}, {v(Y0+4,2)}, {v(Y0+4,2)}, {v(Q0,2)}")
                A(f"v_pk_fma_f32 {v(Q1,2)}, {v(Y0+6,2)}, {v(Y0+6,2)}, {v(Q1,2)}")
            else:
                for d in range(4):
                    y = Y0 + 2*(ks*4+d)
                    S_, Q_ = (S0, Q0) if d % 2 == 0 else (S1, Q1)
                    A(f"v_pk_add_f32 {v(S_,2)}, {v(S_,2)}, {v(y,2)}")
                    A(f"v_pk_fma_f32 {v(Q_,2)}, {v(y,2)}, {v(y,2)}, {v(Q_,2)}")
        stamp(A, f'p1_{rt}')
        if rt == 1:
            for j in range(4): A(f"s_load_dword {s(82+j)}, {s(SDBG,2)}, {64*j}")
        if rt == 2:
            assert nissued[0] == 48
            pollA_smem(A, 82, vL16, 10, 11)
            stamp(A, 'pollA')
            A("s_barrier")
            wopen[0] = True
            A(f"v_and_b32 v10, 0xf0, {v(vL16)}")
            A(f"v_lshrrev_b32 v11, 8, {v(vL16)}")
            A("v_lshl_add_u32 v10, v11, 2, v10")
            A(f"v_add_u32 v10, {s(sBC)}, v10")
            A.vmem(f"buffer_atomic_add_f32 a192, v10, {s(ST,4)}, 0 offen {OPT['apol']}", 'bias')
        if rt == 3:
            A(f"v_pk_add_f32 v[16:17], {v(S0,2)}, {v(S1,2)}")
            A(f"v_pk_add_f32 v[20:21], {v(Q0,2)}, {v(Q1,2)}")
            S0, S1, Q0, Q1 = 16, 18, 20, 22
            assert nissued[0] == 60
            for ks in range(2): xread(0, ks, v(8+4*ks, 4), 'keep')
            A(f"v_mov_b32 {v(vRB)}, {v(vL16)}")
            A(f"v_lshrrev_b32 {v(vSUMA)}, 2, {v(vL16)}")
            A(f"v_and_b32 {v(vSUMA)}, 0xf0, {v(vSUMA)}")
            A(f"s_lshl_b32 {s(sT0)}, {s(sWAVE)}, 2")
            A(f"s_add_u32 {s(sT0)}, {s(sT0)}, {LDS_SUM - 256:#x}")
            A(f"v_add_u32 {v(vSUMA)}, {s(sT0)}, {v(vSUMA)}")
            A(f"s_add_u32 {s(sWM)}, {s(sM0B)}, {2*24576:#x}")
            A(f"s_add_u32 {s(sWEND)}, {s(sM0B)}, {4*24576:#x}")
            A(f"s_mov_b32 {s(sRB)}, 0")
            A(f"s_mov_b32 {s(sPH)}, 0")
            A(f"s_mov_b32 {s(sCNT)}, {15 if OPT['pf4'] else 16}")
            A.wait_vm(lambda t: t == ('w', 0))
            A.wait_lg(lambda t: True)
            A("s_barrier")
            for i in range(4): A.lds(f"ds_read_b128 {a(192+4*i,4)}, {v(vRB)} offset:{i*1024}", ('a', 0))
            for h in range(2): dma1_now(2, h)
        else:
            A(f"v_pk_add_f32 {v(S0,2)}, {v(S0,2)}, {v(S1,2)}")
            A(f"v_pk_add_f32 {v(Q0,2)}, {v(Q0,2)}, {v(Q1,2)}")
        A(f"v_add_f32 {v(S0)}, {v(S0)}, {v(S0+1)}")
        A(f"v_add_f32 {v(Q0)}, {v(Q0)}, {v(Q0+1)}")
        xlane_sum(A, (S0, Q0), (S1, Q1))
        A(f"v_mul_f32 {v(S0)}, {f2u(1.0/384):#x}, {v(S0)}")
        A(f"v_mul_f32 {v(Q0)}, {f2u(1.0/384):#x}, {v(Q0)}")
        A(f"v_fma_f32 {v(Q0)}, -{v(S0)}, {v(S0)}, {v(Q0)}")
        A(f"v_max_f32 {v(Q0)}, 0, {v(Q0)}")
        A(f"v_cvt_pk_bf16_f32 {v(S1)}, {v(S0)}, {v(Q0)}")
        A(f"v_lshlrev_b32 {v(S0)}, 16, {v(S1)}")
        A(f"v_and_b32 {v(Q0)}, 0xffff0000, {v(S1)}")
        A(f"v_add_f32 {v(Q0)}, {f2u(1e-5):#x}, {v(Q0)}")
        A(f"v_cvt_pk_bf16_f32 {v(Q0)}, {v(Q0)}, {v(Q0)}")
        A(f"v_and_b32 {v(Q0)}, 0xffff0000, {v(Q0)}")
        A(f"v_sqrt_f32 {v(Q0)}, {v(Q0)}")
        A("s_nop 0")
        A(f"v_cvt_pk_bf16_f32 {v(Q0)}, {v(Q0)}, {v(Q0)}")
        A(f"v_and_b32 {v(Q0)}, 0xffff0000, {v(Q0)}")
        A(f"v_rcp_f32 {v(Q0)}, {v(Q0)}")
        A("s_nop 0")
        A(f"v_mul_f32 {v(Q1)}, {s(sA)}, {v(Q0)}")
        A(f"v_mul_f32_e64 {v(Q1+1)}, -{v(S0)}, {v(Q1)}")
        align8(A)
        for i0 in (range(44, -4, -4) if rt == 3 else ()):
            for i in range(i0+3, i0-1, -1):
                A(f"v_pk_fma_f32 {v(Y0+2*i,2)}, {v(Y0+2*i,2)}, {v(Q1,2)}, {v(Q1,2)} op_sel:[0,0,1] op_sel_hi:[1,0,1]")
            for i in range(i0+3, i0-1, -1):
                A(f"v_cvt_pk_bf16_f32 {v(160+i)}, {v(Y0+2*i)}, {v(Y0+2*i+1)}")
        for i0 in (range(0, 48, 4) if rt < 3 else ()):
            for i in range(i0, i0+4):
                A(f"v_pk_fma_f32 {v(Y0+2*i,2)}, {v(Y0+2*i,2)}, {v(Q1,2)}, {v(Q1,2)} op_sel:[0,0,1] op_sel_hi:[1,0,1]")
            for i in range(i0, i0+4):
                A(f"v_cvt_pk_bf16_f32 {v(T0+i%4)}, {v(Y0+2*i)}, {v(Y0+2*i+1)}")
            for i in range(i0, i0+4):
                A(f"v_accvgpr_write_b32 {a(rt*48+i)}, {v(T0+i%4)}")
        if rt == 1 and OPT['pf2']:
            code_pf(A, 'L_k1_pre0', T0, vL16, vDUM)
    assert nissued[0] == 60
    stamp(A, 'ln3')
    A.wait_vm(lambda t: t == ('w', 1))
    stamp(A, 'k1')
    if OPT['itr']: A("s_memrealtime s[98:99]")

    def AFr(gb, i): return a(192 + 4*i, 4) if gb % 2 == 0 else v(144 + 4*i, 4)
    Yr = lambda u: 16 + 16*((u+3) % 6)
    Tr = lambda u: 16 + 16*((u+1) % 6)
    Pq = lambda c, rt: (112 + 4*rt) if rt < 2 else (120 + 8*(c % 3) + 4*(rt-2))
    Sr = lambda u: 4
    NU = 96
    def dsread(gb, i):
        u, kb = divmod(gb, 3)
        return (f"ds_read_b128 {AFr(gb, i)}, {v(vRB)} offset:{((u % 2)*12 + kb*4 + i)*1024}", ('a', gb))
    def period(A, p, bargap):
        has_m = p < NU
        trans = []
        if p-1 < NU: trans += [f"v_exp_f32 {v(Tr(p-1)+i)}, {v(Tr(p-1)+i)}" for i in range(16)]
        if p-2 < NU: trans += [f"v_rcp_f32 {v(Tr(p-2)+i)}, {v(Tr(p-2)+i)}" for i in range(16)]
        u = p-3; c, ht = divmod(u, 2); T = Tr(u); S_ = Sr(u)
        cv = [f"v_cvt_pk_bf16_f32 {v(Pq(c, rt)+2*ht+d)}, {v(T+4*rt+2*d)}, {v(T+4*rt+2*d+1)}" for rt in range(4) for d in range(2)]
        dp = [f"v_add_f32_dpp {v(S_)}, {v(S_)}, {v(S_)} row_ror:8 row_mask:0xf bank_mask:0x3",
              f"v_add_f32_dpp {v(S_+1)}, {v(S_+1)}, {v(S_+1)} row_ror:8 row_mask:0xf bank_mask:0x3",
              f"v_add_f32_dpp {v(S_)}, {v(S_+2)}, {v(S_+2)} row_ror:8 row_mask:0xf bank_mask:0xc",
              f"v_add_f32_dpp {v(S_+1)}, {v(S_+3)}, {v(S_+3)} row_ror:8 row_mask:0xf bank_mask:0xc",
              f"v_add_f32_dpp {v(S_)}, {v(S_)}, {v(S_)} row_shl:4 row_mask:0xf bank_mask:0x5",
              f"v_add_f32_dpp {v(S_)}, {v(S_+1)}, {v(S_+1)} row_shr:4 row_mask:0xf bank_mask:0xa",
              f"v_add_f32_dpp {v(S_)}, {v(S_)}, {v(S_)} quad_perm:[2,3,0,1] row_mask:0xf bank_mask:0xf",
              f"v_add_f32_dpp {v(S_)}, {v(S_)}, {v(S_)} quad_perm:[1,0,3,2] row_mask:0xf bank_mask:0xf"]
        plain = dp + cv
        dsw = f"ds_write_b32 {v(vSUMA)}, {v(S_)} offset:{(p % 6)*256 - (1536 if p % 6 == 5 else 0) + 256}"
        c2, hf = divmod(p-4, 2)
        rts = [2*hf, 2*hf+1] + ([2, 3] if p == NU+2 else [])
        stores = [f"buffer_store_dwordx4 {v(Pq(c2, rt),4)}, {v(vL16)}, {s(SH,4)}, {s(sH4+rt)} offen {OPT['hpol']}" for rt in rts]
        k = p // 2
        dm = dma1(k+3, p % 2) if has_m else None
        scal = []
        if p % 6 == 4: scal.append(f"s_mov_b32 {s(SH+2)}, {48*16384:#x}")
        for rt in (2*((p-5) % 2), 2*((p-5) % 2)+1): scal.append(f"s_add_u32 {s(sH4+rt)}, {s(sH4+rt)}, {16384:#x}")
        if p % 2 == 0:
            scal += [f"s_add_u32 {s(sWM)}, {s(sWM)}, 24576", f"s_cmp_eq_u32 {s(sWM)}, {s(sWEND)}", f"s_cselect_b32 {s(sWM)}, {s(sM0B)}, {s(sWM)}"]
        else:
            scal += [f"s_add_u32 {s(sRB)}, {s(sRB)}, 24576", f"s_cmp_eq_u32 {s(sRB)}, {4*24576}", f"s_cselect_b32 {s(sRB)}, 0, {s(sRB)}"]
        scal += dma1((p-1)//2+3, (p-1) % 2)[2] + dm[0]
        lastp = (p % 6 == 5)
        if lastp: scal += [f"s_sub_u32 {s(sCNT)}, {s(sCNT)}, 1", f"s_cmp_lg_u32 {s(sCNT)}, 0"]
        bar = has_m and p % 2 == 0
        if has_m:
            gap = 0
            for kb in range(3):
                gb = p*3 + kb
                seq = [(rt, ks if rt % 2 == 0 else 3-ks) for rt in range(4) for ks in range(4)]
                for n, (rt, kk) in enumerate(seq):
                    D = v(Yr(p)+4*rt, 4)
                    Cc = '0' if (kb == 0 and n % 4 == 0) else D
                    A(f"v_mfma_f32_16x16x32_bf16 {D}, {AFr(gb, kk)}, {a(rt*48+(kb*4+kk)*4,4) if rt < 3 else v(160+(kb*4+kk)*4,4)}, {Cc}")
                    w1 = A.wait_lg_str(lambda t: t == ('a', gb+1)) if (gap in (15, 31, 46)) else None
                    w2 = A.wait_vm_str(lambda t: t == ('w', k+1)) if (bar and gap == bargap-1) else None
                    if w1 and w2: A(w2 + ' ' + w1.split()[1])
                    elif w1 or w2: A(w1 or w2)
                    elif bar and gap == bargap: pass
                    elif scal and n % 2 == 0: A(scal.pop(0))
                    if bar and gap == bargap: A("s_barrier")
                    if gap == 47: break
                    if n in (1, 3, 5, 7):
                        A.lds(*dsread(gb+1, n//2))
                        A(plain.pop(0))
                    elif gap in (41, 43):
                        A(plain.pop(0)); A(plain.pop(0))
                    elif gap == 26:
                        assert not scal
                        A.lds(dsw, 's')
                        if p % 6 == 4: A(f"v_add_u32 {v(vSUMA)}, 1536, {v(vSUMA)}")
                        if p % 2 == 1: A(f"v_add_u32 {v(vRB)}, {s(sRB)}, {v(vL16)}")
                    else:
                        l = trans.pop(0)
                        if gap == 46:
                            extra4 = 4 if (bar and bargap == 47) else 0
                            if (A.pc + 4 + extra4) % 8: l = l.replace('_f32', '_f32_e64')
                        A(l)
                    gap += 1
            assert not trans and not plain and not scal, (p, trans, plain, scal)
            assert A.pc % 8 == 0
        else:
            for l in scal + trans + plain: A(l)
            A.lds(dsw, 's')
            align8(A)
        dl = list(dm[1]) if dm else []
        st = list(stores)
        while st or dl:
            if st: A.vmem(st.pop(0), 'st')
            if dl: A.vmem(dl.pop(0), ('w', k+3))
        pb, pq = [], []
        if p-2 < NU:
            u = p-2; T = Tr(u); Y = Yr(u); S_ = Sr(u)
            for i in range(0, 16, 2): A(f"v_pk_mul_f32 {v(T+i,2)}, {v(T+i,2)}, {v(Y+i,2)}")
            for rt in range(4):
                for d in (0, 2):
                    if rt == 0: pq.append(f"v_pk_mul_f32 {v(S_+d,2)}, {v(T+d,2)}, {v(T+d,2)}")
                    else: pq.append(f"v_pk_fma_f32 {v(S_+d,2)}, {v(T+4*rt+d,2)}, {v(T+4*rt+d,2)}, {v(S_+d,2)}")
        if p-1 < NU:
            T = Tr(p-1)
            pb = [f"v_pk_fma_f32 {v(T+i,2)}, {v(T+i,2)}, {s(sA,2)}, {s(sA,2)}" for i in range(0, 16, 2)]
        while pb or pq:
            if pq: A(pq.pop(0))
            if pb: A(pb.pop(0))
        if has_m:
            T = Tr(p); Y = Yr(p)
            for i in range(0, 16, 2): A(f"v_pk_fma_f32 {v(T+i,2)}, {v(Y+i,2)}, {v(Y+i,2)}, {s(sK,2)}")
            for i in range(0, 16, 2): A(f"v_pk_mul_f32 {v(T+i,2)}, {v(T+i,2)}, {v(Y+i,2)} neg_lo:[1,0] neg_hi:[1,0]")

    ncopy = 4 if OPT['skew'] else 1
    for w in range(1, ncopy):
        A(f"s_cmp_eq_u32 {s(sWAVE)}, {w}")
        A(f"s_cbranch_scc1 L_k1_pre{w}")
    final_state = None
    for w in range(ncopy):
        A.label(f"L_k1_pre{w}")
        A("s_waitcnt lgkmcnt(0)")
        align8(A)
        bodies = []
        B = Asm()
        B.vm = [('w', 1)] + ['st']*4 + [('w', 2)]*6
        for it in range(16):
            start = len(B.lines)
            for p in range(it*6, it*6+6): period(B, p, 47 - OPT['skew']*w)
            bodies.append(B.lines[start:])
        assert all(b == bodies[0] for b in bodies)
        A.label(f"L_k1_loop{w}")
        for l in bodies[0]:
            if OPT['drop'] and re.match(OPT['drop'], l): continue
            A(l)
        if OPT['itr']:
            A(f"v_writelane_b32 v1, s98, m0".replace('m0', s(sCNT)) if False else f"s_mov_b32 m0, {s(sCNT)}")
            A("s_nop 0")
            A("v_writelane_b32 v1, s98, m0")
            A("s_memrealtime s[98:99]")
        A(f"s_cbranch_scc1 L_k1_loop{w}")
        if OPT['pf4']:
            A(f"s_cmp_lg_u32 {s(sPH)}, 0")
            A("s_cbranch_scc1 L_k1_tail")
            A(f"s_mov_b32 {s(sPH)}, 1")
            A(f"s_mov_b32 {s(sCNT)}, 1")
            code_pf(A, 'L_k1_tail', Yr(0), vL16, vDUM)
            A(f"s_branch L_k1_loop{w}")
        elif w < ncopy-1: A("s_branch L_k1_tail")
        final_state = (B.vm, B.lg)
    A.label("L_k1_tail")
    A.vm, A.lg = list(final_state[0]), list(final_state[1])
    def dpp_ops(S_):
        f = lambda d, x, ctl: f"v_add_f32_dpp {v(d)}, {v(x)}, {v(x)} {ctl}"
        return [f(S_, S_, "row_ror:8 row_mask:0xf bank_mask:0x3"), f(S_+1, S_+1, "row_ror:8 row_mask:0xf bank_mask:0x3"),
                f(S_, S_+2, "row_ror:8 row_mask:0xf bank_mask:0xc"), f(S_+1, S_+3, "row_ror:8 row_mask:0xf bank_mask:0xc"),
                f(S_, S_, "row_shl:4 row_mask:0xf bank_mask:0x5"), f(S_, S_+1, "row_shr:4 row_mask:0xf bank_mask:0xa"),
                f(S_, S_, "quad_perm:[2,3,0,1] row_mask:0xf bank_mask:0xf"), f(S_, S_, "quad_perm:[1,0,3,2] row_mask:0xf bank_mask:0xf")]
    def tr(op, u): return [f"{op} {v(Tr(u)+i)}, {v(Tr(u)+i)}" for i in range(16)]
    def pkC(u):
        T, Y, S_ = Tr(u), Yr(u), Sr(u)
        o = [f"v_pk_mul_f32 {v(T+i,2)}, {v(T+i,2)}, {v(Y+i,2)}" for i in range(0, 16, 2)]
        for rt in range(4):
            for d in (0, 2):
                if rt == 0: o.append(f"v_pk_mul_f32 {v(S_+d,2)}, {v(T+d,2)}, {v(T+d,2)}")
                else: o.append(f"v_pk_fma_f32 {v(S_+d,2)}, {v(T+4*rt+d,2)}, {v(T+4*rt+d,2)}, {v(S_+d,2)}")
        return o
    BS = 32
    def cvts(u):
        c, ht = divmod(u, 2); T = Tr(u)
        return [f"v_cvt_pk_bf16_f32 {v(BS+16*(c-46)+4*rt+2*ht+d)}, {v(T+4*rt+2*d)}, {v(T+4*rt+2*d+1)}" for rt in range(4) for d in range(2)]
    def weave(dpp, fill):
        fill = list(fill)
        for d in dpp:
            A(fill.pop(0)); A(fill.pop(0)); A(d)
        for l in fill: A(l)
    def sumw(u): A.lds(f"ds_write_b32 {v(vSUMA)}, {v(Sr(u))} offset:{(u-93)*256 + 256}", 's')
    A(f"v_subrev_u32 {v(vSUMA)}, 24576, {v(vSUMA)}")
    weave(dpp_ops(Sr(93)), tr('v_exp_f32', 95)); sumw(93)
    for l in tr('v_rcp_f32', 94): A(l)
    align8(A)
    for i in range(0, 16, 2): A(f"v_pk_fma_f32 {v(Tr(95)+i,2)}, {v(Tr(95)+i,2)}, {s(sA,2)}, {s(sA,2)}")
    for l in pkC(94): A(l)
    weave(dpp_ops(Sr(94)), tr('v_rcp_f32', 95)); sumw(94)
    align8(A)
    for l in pkC(95): A(l)
    weave(dpp_ops(Sr(95)), cvts(93) + cvts(94)); sumw(95)
    stamp(A, 'k1end')
    if OPT['itr']:
        A(f"s_lshl_b32 {s(sT0)}, {s(sGW)}, 7")
        A(f"s_add_u32 {s(sT0)}, {s(sT0)}, {STAMP + 0x40000:#x}")
        A(f"v_lshrrev_b32 v5, 2, {v(vL16)}")
        A("s_mov_b64 exec, 0xffff")
        A(f"buffer_store_dword v1, v5, {s(SW,4)}, {s(sT0)} offen")
        A("s_mov_b64 exec, -1")

    def acc(t, rt):
        r = {3: 0, 1: 96, 2: 192, 0: 288}[rt] + 4*((t+16) % 24 if rt == 2 and OPT['r3'] else t)
        return a(r, 4) if r < 256 else v(r - 128, 4)
    def accname(t, rt, i):
        r = {3: 0, 1: 96, 2: 192, 0: 288}[rt] + 4*((t+16) % 24 if rt == 2 and OPT['r3'] else t) + i
        return ('a', r) if r < 256 else ('v', r - 128)
    vTID4 = 4
    RB = 64
    A(f"s_lshl_b32 {s(sT0)}, {s(sWAVE)}, 10")
    A(f"s_add_u32 {s(sT0)}, {s(sT0)}, {LDS_SUM + 768:#x}")
    A(f"v_add_u32 v5, {s(sT0)}, {v(vL16)}")
    A(f"v_cmp_lt_u32 vcc, {LDS_SUM + 768 + 208*16 - 1:#x}, v5")
    A("v_subrev_u32 v7, 24576, v5")
    A("s_waitcnt lgkmcnt(0)"); A.lg = []
    A("v_cndmask_b32 v7, v5, v7, vcc")
    A("s_barrier")
    for q in range(6): A.lds(f"ds_read_b128 {v(RB+4*q,4)}, {'v7' if q == 5 else 'v5'} offset:{q*4096}", ('r', q))
    A(f"v_lshrrev_b32 {v(vTID4)}, 2, {v(vL16)}")
    A(f"s_lshl_b32 {s(sT0)}, {s(sWAVE)}, 8")
    A(f"v_add_u32 {v(vTID4)}, {s(sT0)}, {v(vTID4)}")
    A(f"v_and_b32 v6, {0xe3*4:#x}, {v(vTID4)}")
    A(f"v_bfe_u32 v7, {v(vTID4)}, 4, 2")
    A("v_lshl_add_u32 v6, v7, 5, v6")
    A(f"v_bfe_u32 v7, {v(vTID4)}, 6, 1")
    A("v_lshl_add_u32 v6, v7, 4, v6")
    A(f"s_lshr_b32 {s(sT0)}, s2, 3")
    A(f"s_and_b32 {s(sT0)}, {s(sT0)}, {NREP-1}")
    A(f"s_mul_i32 {s(sT0)}, {s(sT0)}, 6144")
    A(f"s_add_u32 {s(sT1)}, {s(sT0)}, 3072")
    for q in range(6):
        A.wait_lg(lambda t: t == ('r', q))
        r = RB+4*q
        A(f"v_add_f32 {v(r)}, {v(r)}, {v(r+1)}")
        A(f"v_add_f32 {v(r+2)}, {v(r+2)}, {v(r+3)}")
        A(f"v_add_f32 {v(r)}, {v(r)}, {v(r+2)}")
        A.vmem(f"buffer_atomic_add_f32 {v(r)}, v6, {s(ST,4)}, {s(sT0 if q < 3 else sT1)} offen offset:{(q%3)*1024} {OPT['apol']}", 'at')
    stamp(A, 'atom')
    GB, SHF, sSH = 104, 108, 30
    for q in range(3):
        A.vmem(f"buffer_load_dword {v(GB+q)}, {v(vTID4)}, {s(SG,4)}, 0 offen offset:{q*1024}", 'gb')
    A(f"s_add_u32 {s(sT1)}, {s(sGW)}, 128")
    A(f"s_lshl_b32 {s(sSH)}, {s(sT1)}, 10")
    A(f"s_add_u32 {s(sSH)}, {s(sSH)}, {W_BYTES:#x}")
    A.vmem(f"buffer_load_dwordx4 {v(SHF,4)}, {v(vL16)}, {s(SD,4)}, {s(sSH)} offen sc1", 'gb')
    A(f"s_add_u32 {s(sSH)}, {s(sSH)}, {W_BYTES:#x}")
    A(f"s_mul_hi_u32 {s(sT0)}, {s(sT1)}, 0x5555556")
    A(f"s_and_b32 {s(sT1)}, {s(sT1)}, 1")
    if OPT['rev']: A(f"s_sub_u32 {s(sT0)}, 24, {s(sT0)}")
    A(f"s_lshl_b32 {s(sT0)}, {s(sT0)}, 1")
    A(f"s_add_u32 {s(sT0)}, {s(sT0)}, {s(sT1)}")
    A(f"s_sub_u32 {s(sT0)}, {s(sT0)}, 2")
    A(f"s_lshl_b32 s31, {s(sT0)}, 7")
    for l in cvts(95): A(l)
    for rt in range(4):
        for d in range(2): A(f"v_mov_b32 {v(BS+4*rt+d)}, {v(Pq(46, rt)+d)}")
    vK0, vK1 = 2, 3
    A(f"v_lshrrev_b32 v5, 8, {v(vL16)}")
    A(f"v_bfe_u32 v7, {v(vL16)}, 4, 3")
    A("v_xor_b32 v7, v7, v5")
    A(f"v_and_b32 {v(vK0)}, 0xf0, {v(vL16)}")
    A(f"v_lshlrev_b32 {v(vK0)}, 3, {v(vK0)}")
    A(f"v_lshl_add_u32 {v(vK0)}, v7, 4, {v(vK0)}")
    A(f"s_lshl_b32 {s(sT0)}, {s(sWAVE)}, 11")
    A(f"s_add_u32 {s(sT0)}, {s(sT0)}, {LDS_XK:#x}")
    A(f"v_add_u32 {v(vK0)}, {s(sT0)}, {v(vK0)}")
    A(f"v_xor_b32 {v(vK1)}, 64, {v(vK0)}")
    XK = 56
    for u in range(2, 12):
        A.lds(f"ds_read_b128 {v(XK+4*u,4)}, {v((vK0, vK1)[u % 2])} offset:{(u//2)*8192}", ('xk', u))
    SEL = 24
    A(f"v_lshrrev_b32 v5, 8, {v(vL16)}")
    A(f"v_bfe_u32 v7, {v(vL16)}, 6, 2")
    A("v_cmp_eq_u32 vcc, v5, v7")
    A(f"v_and_b32 v5, 16, {v(vL16)}")
    A("v_mov_b32 v7, 0x3f80")
    A("v_lshlrev_b32 v7, v5, v7")
    A("v_cndmask_b32 v7, 0, v7, vcc")
    A(f"v_and_b32 v5, 32, {v(vL16)}")
    A("v_cmp_eq_u32 vcc, 0, v5")
    for i in (0, 1, 4, 5): A(f"v_mov_b32 {v(SEL+i)}, 0")
    A(f"v_cndmask_b32 {v(SEL+2)}, 0, v7, vcc")
    A(f"v_sub_u32 {v(SEL+3)}, v7, {v(SEL+2)}")
    A("s_nop 1")
    def xinit(rt, u, src):
        for e in range(2):
            A(f"v_mfma_f32_16x16x32_bf16 {acc(2*u+e, rt)}, {v(SEL+2-2*e,4)}, {src}, 0")
    for u in range(12): xinit(3, u, a(144+4*u, 4))
    for u in range(12): xinit(1, u, a(208+4*u, 4))
    A.wait_vm(lambda t: t == 'at')
    A("s_barrier")
    stamp(A, 'sigB')
    arrive_issue(A, 'arrB', 6, 4, 1)
    sHOFF, sINV, sM6 = 28, 29, 3
    A(f"s_mov_b32 {s(sM6)}, {s(sM0B)}")
    A(f"s_mul_i32 {s(sM0B)}, {s(sWAVE)}, 12288")
    A(f"s_lshl_b32 {s(sHOFF)}, {s(sWAVE)}, 10")
    kbof = (lambda pos: 23 - pos) if OPT['rev'] else (lambda pos: (pos - 1) % 24)
    if OPT['rev']: A(f"s_add_u32 {s(sHOFF)}, {s(sHOFF)}, {22*32768:#x}")
    vPA, vPD = 8, 9
    A(f"v_and_b32 {v(vXO)}, 0xf0, {v(vL16)}")
    A(f"v_mul_u32_u24 {v(vXO)}, 48, {v(vXO)}")
    A(f"v_lshrrev_b32 v5, 8, {v(vL16)}")
    A(f"v_lshl_add_u32 {v(vXO)}, v5, 4, {v(vXO)}")
    for u in range(12): xinit(2, u, v(208+4*u, 4))
    A.wait_lg(lambda t: True)
    for u in range(12): xinit(0, u, v(8+4*u if u < 2 else XK+4*u, 4))
    arrive_finish(A, 'arrB', 6, 4, 1)
    stamp(A, 'arr')
    def dma2_line(i): return f"buffer_load_dwordx4 {v(vL16)}, {s(SD,4)}, {s(sWOFF)} offen offset:{(i%4)*1024} {OPT['wpol']} lds"
    def dma2_ops(pos):
        ops = []
        if pos == 1:
            for i in range(6):
                pre = []
                if i % 3 == 0:
                    pre = [f"s_add_u32 {s(sWOFF)}, {s(sM6)}, {W_BYTES + 73728 + i*1024:#x}", f"s_add_u32 m0, {s(sM6)}, {73728 + i*1024:#x}"]
                ops.append((pre, dma2_line(i % 3), ('w2', pos), []))
            return ops
        for i in range(12):
            pre = []
            if i % 4 == 0:
                if i: pre.append(f"s_add_u32 {s(sWOFF)}, {s(sWOFF)}, 4096")
                elif pos == 2: pre.append(f"s_add_u32 {s(sWOFF)}, {s(sM0B)}, {W_BYTES + 2*49152:#x}")
                elif pos == 3: pre.append(f"s_add_u32 {s(sWOFF)}, {s(sWOFF)}, {49152-8192+W_BYTES:#x}")
                elif pos: pre.append(f"s_add_u32 {s(sWOFF)}, {s(sWOFF)}, {49152-8192}")
                pre.append(f"s_add_u32 m0, {s(sM0B)}, {(pos % 3)*49152 + i*1024:#x}")
            ops.append((pre, dma2_line(i), ('w2', pos), []))
        return ops
    vB1, vB2, TMP, RAW, AR, BQ, vTAB, vSA, vSD, vPL = 2, 3, 4, 16, 96, 120, 124, 125, 126, 127
    SQ = (8, 12)
    SETC = [16, 20, 24, 28, 4, 8, 12, 120]
    def hreg(pos, f):
        if pos < 2: return BS + 32*pos + 4*f
        return (SETC[f], BS + 32 + 4*f, BS + 4*f)[pos % 3]
    def hline(dst): return f"buffer_load_dwordx4 {v(dst,4)}, {v(vL16)}, {s(SH,4)}, {s(sHOFF)} offen {OPT['hlpol']}"
    hadv = f"s_add_u32 {s(sHOFF)}, {s(sHOFF)}, 4096"
    hback = f"s_sub_u32 {s(sHOFF)}, {s(sHOFF)}, {32768 + 28672}"
    def h_ops(pos, fs, raw=False):
        return [([], hline(RAW + 4*f if raw else hreg(pos, f)), ('h', pos, f//4), [hback if f == 7 and OPT['rev'] else hadv]) for f in fs]
    A(f"v_add_u32 {v(vB1)}, 0x10000, {v(vL16)}")
    A(f"v_add_u32 {v(vB2)}, 0x20000, {v(vL16)}")
    A(f"v_lshrrev_b32 {v(vTAB)}, 8, {v(vL16)}")
    A(f"v_lshlrev_b32 {v(vTAB)}, 5, {v(vTAB)}")
    A(f"v_add_u32 {v(vTAB)}, {LDS_TAB:#x}, {v(vTAB)}")
    A(f"v_add_u32 v13, s31, {v(vTAB)}")
    A(f"v_cmp_eq_u32 vcc, 256, {v(vTID4)}")
    A(f"s_lshr_b32 {s(sT0)}, s2, 3")
    A(f"s_and_b32 {s(sT0)}, {s(sT0)}, 15")
    A(f"s_lshl_b32 {s(sT0)}, {s(sT0)}, 8")
    A(f"s_add_u32 {s(sT0)}, {s(sT0)}, {CNT_C:#x}")
    A(f"v_mov_b32 {v(vSA)}, 0x100000")
    A(f"v_mov_b32 {v(vSD)}, {s(sT0)}")
    A(f"v_cndmask_b32 {v(vSA)}, {v(vSA)}, {v(vSD)}, vcc")
    A(f"v_mov_b32 {v(vSD)}, 1")
    A(f"v_lshlrev_b32 v5, 1, {v(vTID4)}")
    A(f"s_lshl_b32 {s(sT0)}, {s(sWAVE)}, 8")
    A(f"s_add_u32 m0, {s(sT0)}, {LDS_TAB + 6144:#x}")
    A(f"s_lshl_b32 {s(sT0)}, {s(sWAVE)}, 2")
    A(f"s_add_u32 {s(sT0)}, {s(sT0)}, {LDS_RED:#x}")
    A(f"v_mov_b32 v14, {s(sT0)}")
    A(f"v_mov_b32 v15, {LDS_RED:#x}")
    A.wait_vm(lambda t: t == 'gb')
    GF = 96
    for q in range(3):
        A(f"v_lshlrev_b32 {v(GF+2*q)}, 16, {v(GB+q)}")
        A(f"v_and_b32 {v(GF+2*q+1)}, 0xffff0000, {v(GB+q)}")
    SU = 112
    for d in range(4):
        A(f"v_lshlrev_b32 {v(SU+2*d)}, 16, {v(SHF+d)}")
        A(f"v_and_b32 {v(SU+2*d+1)}, 0xffff0000, {v(SHF+d)}")
    A(f"s_cmp_lg_u32 {s(sWAVE)}, 0")
    A("s_cbranch_scc1 L_pollB_ok")
    keep = list(A.vm)
    poll_issue(A, 'pollB', vPA, vPD, 4)
    poll(A, 'pollB', vPA, vPD, 4)
    A.vm = keep
    A("s_barrier")
    stamp(A, 'go')
    SR = 64
    sreg = lambda j: SR + j if j < 16 else 102 + j - 16
    assert NREP*6 <= 26
    for r in range(NREP):
        A(f"s_mov_b32 {s(sT0)}, {r*6144:#x}")
        A(f"s_mov_b32 {s(sT1)}, {r*6144 + 4096:#x}")
        for q in range(3):
            A.vmem(f"buffer_load_dwordx2 {v(sreg((r*3+q)*2),2)}, v5, {s(ST,4)}, {s(sT1 if q == 2 else sT0)} offen offset:{(q%2)*2048} sc1", 'sum')
    A(f"s_mov_b32 {s(sT0)}, {NREP*6144:#x}")
    for j in range(2):
        A.vmem(f"buffer_load_dword {v(vTID4)}, {s(ST,4)}, {s(sT0)} offen offset:{j*1024} sc1 lds", 'biasld')
    for _, l, tg, po in h_ops(1, range(4), raw=True) + h_ops(1, range(4, 8)):
        A.vmem(l, tg); A(po[0])
    A(f"v_add_u32 v5, {LDS_TAB:#x}, v5")
    A.wait_vm(lambda t: t == 'sum')
    for r in range(1, NREP):
        for i in range(6): A(f"v_add_f32 {v(SR+i)}, {v(SR+i)}, {v(sreg(r*6+i))}")
    for i in range(6): A(f"v_add_f32 {v(SR+i)}, {f2u(1e-6):#x}, {v(SR+i)}")
    for i in range(6): A(f"v_sqrt_f32 {v(SR+i)}, {v(SR+i)}")
    A("s_nop 0")
    A(f"v_add_f32 v6, {v(SR)}, {v(SR+1)}")
    for i in range(2, 6): A(f"v_add_f32 v6, v6, {v(SR+i)}")
    for j, n in enumerate((8, 4, 2, 1)):
        if j < 3:
            for i in (2*j, 2*j+1): A(f"v_mul_f32 {v(SR+i)}, {v(SR+i)}, {v(GF+i)}")
        else: A("s_nop 1")
        A(f"v_add_f32_dpp v6, v6, v6 row_ror:{n} row_mask:0xf bank_mask:0xf")
    for q in range(3): A.lds(f"ds_write_b64 v5, {v(SR+2*q,2)} offset:{q*2048}", 'tb')
    xlane_sum(A, (6,), (7,))
    A.lds("ds_write_b32 v14, v6", 'tb')
    A(f"v_mov_b32 v6, {f2u(1e-6):#x}")
    A.wait_vm(lambda t: t == 'biasld')
    A.wait_lg(lambda t: True)
    A("s_barrier")
    S8, SS = 64, 104
    A.lds("ds_read_b128 v[8:11], v15", 'red')
    for hh in range(2): A.lds(f"ds_read_b128 {v(SS+4*hh,4)}, v13 offset:{hh*16}", 'ss')
    for k2 in range(2):
        for hh in range(2):
            A.lds(f"ds_read_b128 {v(S8+8*k2+4*hh,4)}, {v(vTAB)} offset:{23*256 + k2*128 + hh*16}", 't0')
    A.wait_lg(lambda t: t == 'red')
    A("v_add_f32 v8, v8, v9")
    A("v_add_f32 v10, v10, v11")
    A("v_add_f32 v8, v8, v10")
    A(f"v_fmac_f32 v6, {f2u(1.0/1536):#x}, v8")
    A("v_rcp_f32 v6, v6")
    A.wait_lg(lambda t: t == 'ss')
    for i in range(8): A(f"v_fma_f32 {v(SS+i)}, {v(SS+i)}, v6, 1.0")
    A(f"v_readfirstlane_b32 {s(sINV)}, v6")
    for d in range(4): A(f"v_pk_mul_f32 {v(SU+2*d,2)}, {v(SU+2*d,2)}, {v(SS+2*d,2)}")
    for d in range(4): A(f"v_cvt_pk_bf16_f32 {v(BQ+d)}, {v(SU+2*d)}, {v(SU+2*d+1)}")
    A.vmem(f"buffer_store_dwordx4 {v(BQ,4)}, {v(vL16)}, {s(SD,4)}, {s(sSH)} offen sc1", 'share')
    def dsA(idx, step, k2):
        pos, t = step[:2]
        ad = (pos % 3)*49152 + (t*2+k2)*1024
        return (f"ds_read_b128 {v(AR + 8*(idx % 3) + 4*k2, 4)}, {v((vL16, vB1, vB2)[ad >> 16])} offset:{ad & 0xffff}", ('a2', idx))
    for i in range(2):
        for k2 in range(2): A.lds(*dsA(i, (0, i), k2))
    A.wait_lg(lambda t: t == 't0')
    for i in range(16): A(f"v_fma_f32 {v(S8+i)}, {v(S8+i)}, v6, 1.0")
    A(f"s_mov_b32 {s(sT2)}, 0xffff0000")
    align8(A)
    for k2 in range(2):
        for rt in range(4):
            F = BS + (k2*4+rt)*4
            T8 = 8
            for d in range(4):
                A(f"v_lshlrev_b32 {v(T8+2*d)}, 16, {v(F+d)}")
                A(f"v_and_b32 {v(T8+2*d+1)}, {s(sT2)}, {v(F+d)}")
            for d in range(4):
                A(f"v_pk_mul_f32 {v(T8+2*d,2)}, {v(T8+2*d,2)}, {v(S8+8*k2+2*d,2)}")
            for d in range(4):
                A(f"v_cvt_pk_bf16_f32 {v(F+d)}, {v(T8+2*d)}, {v(T8+2*d+1)}")
    sPF = 20
    A(f"s_getpc_b64 {s(sPF,2)}")
    A.label("L_pcl")
    A(f"s_add_u32 {s(sPF)}, {s(sPF)}, L_k3_last-L_pcl")
    A(f"s_addc_u32 {s(sPF+1)}, {s(sPF+1)}, 0")
    A(f"s_lshl_b32 {s(sPF+2)}, {s(sWAVE)}, 12")
    A(f"s_mov_b32 {s(sCNT)}, 6")
    A(f"s_sub_u32 s40, {s(sPF)}, L_k3_last-L_k3_loop")
    A(f"s_subb_u32 s41, {s(sPF+1)}, 0")
    sM3 = sPF + 3
    A(f"s_mul_i32 {s(sM3)}, {s(sWAVE)}, 3072")
    A(f"s_lshl_b32 {s(sT1)}, {s(sWAVE)}, 10")
    if OPT['fakest']:
        for rt in range(4):
            for j in range(3): A(f"s_add_u32 {s(82+rt*3+j)}, {s(sXO+rt)}, {j*4096}")
    A.wait_lg(lambda t: t == ('a2', 0))
    stamp(A, 'k3')

    def run(A, idx0, steps, after, vm, at, prog):
        allsteps = steps + after
        scal = []
        for i, st_ in enumerate(steps):
            pos, t = st_[:2]
            rows = st_[2] if len(st_) > 2 else (0, 1, 2, 3)
            nm = 2*len(rows)
            idx = idx0 + i
            q = list(vm.get(i, []))
            vgaps = ({0: (), 1: (4,), 2: (4, 6), 3: (2, 4, 6)} if nm == 8 else {0: (), 1: (2,)})[len(q)]
            if q: scal = list(q[0][0]) + scal
            stamp(A, f"s{idx}")
            for n in range(nm):
                rt, k2 = rows[n//2], n % 2
                kk = k2 if (n//2) % 2 == 0 else 1-k2
                D = acc(t, rt)
                A(f"v_mfma_f32_16x16x32_bf16 {D}, {v(AR+8*(idx%3)+4*kk,4)}, {v(hreg(pos, kk*4+rt),4)}, {D}")
                slots = 2
                wl, wv, bar, raw = [], [], False, []
                if n == nm-1: wl.append(('a2', idx+1))
                for act in at.get((i, n), []):
                    if act[0] == 'wv': wv.append(act[1])
                    elif act[0] == 'bar': bar = True
                    elif act[0] == 'scal': scal = scal + act[1]
                    elif act[0] == 'raw': raw.append(act[1])
                if not bar and (wl or wv or not scal):
                    while prog and prog[0][0] in ('wl', 'wv') and prog[0][2] <= i:
                        k_, tg, _ = prog.pop(0)
                        (wl if k_ == 'wl' else wv).append(tg)
                for tg in wv:
                    assert not any(o[2] == tg for j in range(i+1, len(steps)) for o in vm.get(j, [])) and not any(o[2] == tg for o in q), (tg, i, n)
                w1 = A.wait_lg_str(lambda tg: tg in wl)
                w2 = A.wait_vm_str(lambda tg: tg in wv)
                if w1 and w2: A(w2 + ' ' + w1.split()[1])
                elif w1 or w2: A(w1 or w2)
                elif bar: pass
                elif scal: A(scal.pop(0))
                if bar: A("s_barrier"); slots = 0
                for f in raw: f(A); slots = 0
                valu = False
                if nm == 4 and n == 0 and i+2 < len(allsteps):
                    for k_ in range(2): A.lds(*dsA(idx+2, allsteps[i+2], k_))
                    slots = 0
                elif nm == 8 and n in (0, 1) and i+2 < len(allsteps):
                    A.lds(*dsA(idx+2, allsteps[i+2], n)); slots -= 1
                elif n in vgaps:
                    assert slots == 2, (i, n)
                    o = q.pop(0)
                    while any(x in scal for x in o[0]) or hadv in scal or hback in scal:
                        A(scal.pop(0))
                        if not (any(x in scal for x in o[0]) or hadv in scal or hback in scal): A("s_nop 0")
                    if A.lines[-1].startswith(('s_add_u32 m0', 's_mov_b32 m0')): A("s_nop 0")
                    if len(o) > 4: o[4]()
                    A.vmem(o[1], o[2]); slots = 0
                    scal = list(o[3]) + (list(q[0][0]) if q else []) + scal
                while slots > 0 and prog and prog[0][2] <= i:
                    kind, pay, _ = prog[0]
                    if kind == 'v':
                        if isinstance(pay, tuple):
                            assert abs(pay[1] - t) >= 2, (pay, t)
                            pay = pay[0]
                        A(pay); slots -= 1; valu = True
                    elif kind == 'lds':
                        if valu: break
                        A.lds(*pay); slots -= 1
                    elif kind == 'st':
                        if slots < 2: break
                        A.vmem(pay, 'o'); slots = 0
                    elif kind == 'mark':
                        pay()
                    else: break
                    prog.pop(0)
            assert not q
        assert not scal, scal
        return prog

    def spread(ops, first, per):
        d = {}
        for j, o in enumerate(ops): d.setdefault(first + j//per, []).append(o)
        return d
    def merge(*ds):
        r = {}
        for d in ds:
            for k_, l in d.items(): r.setdefault(k_, []).extend(l)
        return r
    def biasrd(q, t): return (f"ds_read_b128 {v(q,4)}, {v(vTAB)} offset:{6144 + (t>>1)*128 + (t&1)*16}", ('bq', t))
    def bias_prog(tiles, pk):
        qs = (BQ, TMP)
        pr = [('lds', biasrd(qs[0], tiles[0][0]), 0)]
        for j, (t, ms) in enumerate(tiles):
            if j+1 < len(tiles): pr.append(('lds', biasrd(qs[(j+1) % 2], tiles[j+1][0]), 0))
            pr.append(('wl', ('bq', t), ms))
            for rt in range(4):
                f, r0 = accname(t, rt, 0)
                if f == 'v' and pk:
                    for r in (0, 2): pr.append(('v', (f"v_pk_add_f32 {v(r0+r,2)}, {v(r0+r,2)}, {v(qs[j % 2]+r,2)}", t), ms))
                elif f == 'v':
                    for r in range(4): pr.append(('v', (f"v_add_f32 {v(r0+r)}, {v(r0+r)}, {v(qs[j % 2]+r)}", t), ms))
        return pr
    done = {}
    def conv_prog(pos, starts, pk):
        rd = lambda g4: ('lds', (f"ds_read_b128 {v(SQ[g4 % 2],4)}, {v(vTAB)} offset:{kbof(pos)*256 + (g4//2)*128 + (g4%2)*16}", ('tab', g4)), 0)
        pr = [rd(0), rd(1)]
        head = list(pr); pr = []
        for g4 in range(4):
            k2, hh = divmod(g4, 2)
            Q = SQ[g4 % 2]; ms = starts[k2]
            pr += [('wl', ('tab', g4), ms), ('wv', ('h', pos, k2), ms)]
            for j in range(4): pr.append(('v', f"v_fma_f32 {v(Q+j)}, {v(Q+j)}, {s(sINV)}, 1.0", ms))
            for rt in range(4):
                dst = hreg(pos, k2*4+rt) + 2*hh
                src = (RAW + 4*rt + 2*hh) if k2 == 0 else dst
                for d in range(2):
                    pr.append(('v', f"v_lshlrev_b32 {v(TMP+2*d)}, 16, {v(src+d)}", ms))
                    pr.append(('v', f"v_and_b32 {v(TMP+2*d+1)}, {s(sT2)}, {v(src+d)}", ms))
                if pk:
                    for j in (0, 2): pr.append(('v', f"v_pk_mul_f32 {v(TMP+j,2)}, {v(TMP+j,2)}, {v(Q+j,2)}", ms))
                else:
                    for j in range(4): pr.append(('v', f"v_mul_f32 {v(TMP+j)}, {v(TMP+j)}, {v(Q+j)}", ms))
                for d in range(2): pr.append(('v', f"v_cvt_pk_bf16_f32 {v(dst+d)}, {v(TMP+2*d)}, {v(TMP+2*d+1)}", ms))
            if g4+2 < 4: pr.append(rd(g4+2))
            if g4 == 1: pr.append(('mark', lambda: done.__setitem__(pos, True), 0))
        return head, pr
    def need(pos):
        def f(): assert done.get(pos), pos
        return f
    blk = lambda pos: [(pos, t) for t in range(24)]

    arr_op = ([], f"buffer_atomic_add {v(vSD)}, {v(vSA)}, {s(ST,4)}, 0 offen {OPT['apol']}", 'arrC', [])
    poll_op = ([], f"buffer_load_dword {v(vPL)}, {v(vSA)}, {s(ST,4)}, 0 offen sc1", 'pollC', [])
    d2, d3, d4 = dma2_ops(2), dma2_ops(3), dma2_ops(4)
    n2 = OPT['n2']; tc = OPT['tc']; n3 = OPT['n3']
    head, cv = conv_prog(1, (OPT['c00'], OPT['c01']), OPT['pkc0'])
    vm = merge(spread(dma2_ops(1), 0, 1), {OPT['ta']+1: [arr_op]}, spread(d2[:n2], 6, 1),
               spread([o + (need(1),) for o in h_ops(2, range(4), raw=True)], 17, 2))
    at = {(OPT['ta'], 5): [('wv', 'share')], (OPT['ta'], 6): [('bar',)],
          (21, 5): [('wv', ('w2', 1))], (21, 6): [('bar',)]}
    left = run(A, 0, blk(0), blk(1)[:2], vm, at, head + bias_prog([(t, 1) for t in range(8 if OPT['r3'] else 12, 24)], OPT['pkb0']) + cv)
    assert not left, len(left)
    stamp(A, 'b1')
    def pollC(A):
        pollA(A, 'pollC', vSA, vPL, ST, 16)
    head, cv = conv_prog(2, (OPT['c0'], 14), OPT['pkc1'])
    w3 = {}
    for j, o in enumerate(d3[:n3]): w3.setdefault(tc + 1 + j*(23-tc)//n3, []).append(o)
    vm = merge(spread(h_ops(2, range(4, 8)), 0, 2), spread(d2[n2:], 2, 1 if n2 >= 4 else 2), {OPT['tp']: [poll_op]},
               spread([o + (need(2),) for o in h_ops(3, range(4))], OPT['th'], 2), w3)
    at = {(tc, 1): [('raw', pollC)], (tc, 2): [('wv', ('w2', 2))], (tc, 3): [('bar',)]}
    bp = [('v', f"v_and_b32 {v(vSA)}, 0xf0, {v(vL16)}", 0), ('v', f"v_lshlrev_b32 {v(vSA)}, 4, {v(vSA)}", 0), ('v', f"v_add_u32 {v(vSA)}, {CNT_C:#x}, {v(vSA)}", 0)] + bias_prog([(t, 1) for t in ((5, 6, 7) if OPT['r3'] else (6, 7, 8, 9, 10, 11))] + [(t, t+2) for t in range(5 if OPT['r3'] else 6)], OPT['pkb1'])
    left = run(A, 24, blk(1), blk(2)[:2], vm, at, head + bp + cv)
    assert not left, len(left)
    stamp(A, 'b2')
    if n3 == 4:
        vm = merge(spread(h_ops(3, range(4, 8)), 0, 2), spread(d3[4:], 2, 2), spread(d4, 6, 2), spread(h_ops(4, range(8)), 12, 1))
    else:
        assert n3 == 8
        w4 = {}
        for j, o in enumerate(d4): w4.setdefault(6 + j*9//12, []).append(o)
        vm = merge(spread(h_ops(3, range(4, 8)), 0, 2), spread(d3[8:], 2, 1), w4, spread(h_ops(4, range(8)), 15, 1))
    at = {(5, 2): [('bar',)], (21, 2): [('wv', ('w2', 3))], (21, 3): [('bar',)], (23, 7): [('wv', ('h', 3, 1))]}
    pr = []
    if OPT['pf5']:
        pr = [('v', l, 0) for l in pf_addr("L_end-L_k3_loop", vSD, vL16, 40)]
        vm[1].append(([f"s_mov_b32 m0, {LDS_SCR:#x}"], f"global_load_lds_dword {v(vSD,2)}, off", 'pf', []))
    run(A, 48, blk(2), blk(3)[:2], vm, at, pr)
    align8(A)
    stamp(A, 'k3l')
    def pf_prog(lim='L_end-L_k3_last'): return [('v', l, 0) for l in pf_addr(lim, vSD, vL16, sPF)]
    pf_op = ([f"s_mov_b32 m0, {LDS_SCR:#x}"], f"global_load_lds_dword {v(vSD,2)}, off", 'pf', [])
    def steady(A, pos):
        vm = merge(spread(dma2_ops(pos+2), 2, 1), spread(h_ops(pos+2, range(8)), 14, 1))
        at = {(1, 2): [('wv', ('w2', pos+1))], (1, 3): [('bar',)], (23, 7): [('wv', ('h', pos+1, 1))]}
        pr = []
        if pos % 3 == 1:
            at[(22, 0)] = [('scal', [f"s_sub_u32 {s(sCNT)}, {s(sCNT)}, 1", f"s_cmp_lg_u32 {s(sCNT)}, 0"])]
            if OPT['pf3']:
                pr = pf_prog(s(sT0) if OPT['pfl'] else 'L_end-L_k3_last'); vm[1] = [pf_op]
        if pos % 3 == 0 and OPT['pf3'] and OPT['pfl']:
            at[(22, 0)] = [('scal', [f"s_cmp_eq_u32 {s(sCNT)}, 1", f"s_cselect_b32 {s(sT0)}, L_end-L_k3_last, 0"])]
        left = run(A, 24*pos, blk(pos), blk(pos+1)[:2], vm, at, pr)
        assert not left
    B = Asm(); B.vm, B.lg = list(A.vm), list(A.lg)
    bodies = {}
    for pos in range(3, 20):
        start = len(B.lines)
        steady(B, pos)
        assert bodies.setdefault(pos % 3, B.lines[start:]) == B.lines[start:], pos
    if OPT['itr3']: A("s_mov_b32 s93, 0")
    A("s_branch L_k3_enter")
    align8(A)
    A.label("L_k3_loop")
    for r in (2, 0, 1):
        if r == 0: A.label("L_k3_enter")
        if OPT['itr3']:
            A("s_mov_b32 m0, s93"); A("s_add_u32 s93, s93, 1")
            A("v_writelane_b32 v125, s98, m0") if OPT['itr3'] == 1 else A("v_writelane_b32 v125, s98, m0")
            A("s_memrealtime s[98:99]" if OPT['itr3'] == 1 else "s_memtime s[98:99]")
        for l in bodies[r]:
            if OPT['drop3'] and re.match(OPT['drop3'], l): continue
            A(l)
    A("s_cbranch_scc1 L_k3_loop")
    A.label("L_k3_last")
    A.vm, A.lg = list(B.vm), list(B.lg)
    stamp(A, 'k3loopend')
    if OPT['itr3']:
        A(f"s_lshl_b32 {s(sT0)}, {s(sGW)}, 7")
        A(f"s_add_u32 {s(sT0)}, {s(sT0)}, {STAMP + 0x40000:#x}")
        A(f"v_lshrrev_b32 v126, 2, {v(vL16)}")
        A("s_mov_b64 exec, 0x1ffff")
        A(f"buffer_store_dword v125, v126, {s(SW,4)}, {s(sT0)} offen")
        A("s_mov_b64 exec, -1")
        A("s_nop 4")
    RA, RB_ = (0, 2), (1, 3)
    L = OPT['L']
    steps = [(20, t, RA) for t in range(24)] + [(20, t, RB_) for t in range(24)]
    def zig(t, rows): return [(21, t, rows), (22, t, rows[::-1]), (23, t, rows)]
    for t in range(L): steps += zig(t, RA)
    for t in range(L): steps += zig(t, RB_)
    for t in range(L, 24): steps += zig(t, (0, 1, 2, 3))
    fin = {}
    for i, (pos, t, rows) in enumerate(steps):
        if pos == 23 and t % 2 == 1:
            for rt in rows: fin[(t//2, rt)] = i + (2 if len(steps[min(i+1, len(steps)-1)][2]) == 4 else 3)
    def hx(pos, rows):
        return [([f"s_add_u32 {s(sHOFF)}, {s(sT1)}, {kbof(pos)*32768 + k2*16384 + rt*4096:#x}"], hline(hreg(pos, k2*4+rt)), ('hx', pos, rows), [])
                for rt in rows for k2 in range(2)]
    def wq(pos, qu):
        pre = [f"s_add_u32 {s(sWOFF)}, {s(sM3)}, {2*W_BYTES + pos*49152 + qu*12288:#x}", f"s_add_u32 m0, {s(sM3)}, {(pos % 3)*49152 + qu*12288:#x}"]
        return [(pre if j == 0 else [], dma2_line(j), ('wq', pos, qu), []) for j in range(3)]
    pool, pr = [], []
    def ostore(P, u, rt):
        if OPT['fakest']: return f"buffer_store_dwordx4 {v(P,4)}, {v(vL16)}, {s(SO,4)}, {s(40+u//4+3*(rt%1))} offen offset:{(u%4)*1024} {OPT['opol']}".replace(f", {s(40+u//4)} ", f", {s(82+rt*3+u//4)} ")
        return f"buffer_store_dwordx4 {v(P,4)}, {v(vXO)}, {s(SO,4)}, {s(sXO+rt)} offen offset:{u*64} {OPT['opol']}"
    def pack(a0_, b0_, u, rt, ms):
        pr.append(('v', f"v_cvt_pk_bf16_f32 {v(a0_)}, {v(a0_)}, {v(a0_+1)}", ms))
        pr.append(('v', f"v_cvt_pk_bf16_f32 {v(a0_+1)}, {v(a0_+2)}, {v(a0_+3)}", ms))
        pr.append(('v', f"v_cvt_pk_bf16_f32 {v(a0_+2)}, {v(b0_)}, {v(b0_+1)}", ms))
        pr.append(('v', f"v_cvt_pk_bf16_f32 {v(a0_+3)}, {v(b0_+2)}, {v(b0_+3)}", ms))
        pr.append(('st', ostore(a0_, u, rt), ms))
        pool.append(b0_); pool.append(a0_)
    bq = {}
    def bias_fetch(key):
        bq[key] = (pool.pop(0), pool.pop(0))
        for e in range(2):
            l, _ = biasrd(bq[key][e], 2*key[0]+e)
            pr.append(('lds', (l, ('bq', key)), 0))
    def unit(u, rt, key=None):
        f, r0 = accname(2*u, rt, 0)
        ms = fin[(u, rt)]
        if f == 'v': return pack(r0, r0+4, u, rt, ms)
        assert len(pool) >= 3, (u, rt)
        T = (pool.pop(0), pool.pop(0))
        for e in range(2):
            for r in range(4): pr.append(('v', f"v_accvgpr_read_b32 {v(T[e]+r)}, {a(r0+4*e+r)}", ms))
        pr.append(('wl', ('bq', key), 0))
        for e in range(2):
            for r in range(4): pr.append(('v', f"v_add_f32 {v(T[e]+r)}, {v(T[e]+r)}, {v(bq[key][e]+r)}", ms))
        pack(T[0], T[1], u, rt, ms)
    groups = [((u, 'a'), [(u, 2)]) for u in range(L//2) if accname(2*u, 2, 0)[0] == 'a'] + [((u, 'b'), [(u, 1), (u, 3)]) for u in range(L//2)]
    groups += [((u, 'c'), [(u, rt) for rt in (1, 2, 3) if accname(2*u, rt, 0)[0] == 'a']) for u in range(L//2, 12)]
    vlist = [(u, rt) for u in range(12) for rt in (0, 2) if accname(2*u, rt, 0)[0] == 'v']
    unit(*vlist.pop(0)); unit(*vlist.pop(0)); bias_fetch(groups[0][0]); unit(*vlist.pop(0))
    groups.sort(key=lambda g_: fin[g_[1][0]])
    for gi, (key, us) in enumerate(groups):
        while vlist and fin[vlist[0]] <= max(fin[us[0]], fin[(2, 0)] + 4*gi): unit(*vlist.pop(0))
        early = gi+1 < len(groups) and len(pool) >= 5
        if early: bias_fetch(groups[gi+1][0])
        for u, rt in us: unit(u, rt, key)
        pool.extend(bq[key])
        if gi+1 < len(groups) and not early: bias_fetch(groups[gi+1][0])
    assert not vlist
    def place(d, ops, first, stride=1):
        for j, o in enumerate(ops):
            assert first + j*stride not in d
            d[first + j*stride] = [o]
    vm = {}
    T0_ = 48
    if OPT['sch'] == 0:
        place(vm, hx(22, RA), 0); place(vm, wq(22, 0) + wq(22, 1), 4, 2); place(vm, hx(22, RB_), 16, 2)
        place(vm, hx(23, RA), 24); place(vm, wq(22, 2), 28); place(vm, wq(23, 0), 31); place(vm, wq(22, 3), 34)
        place(vm, wq(23, 1), 37); place(vm, wq(23, 2), 43); place(vm, hx(23, RB_), T0_); place(vm, wq(23, 3), T0_+4)
        at = {(2, 3): [('wv', ('w2', 21))], (3, 1): [('bar',)],
              (30, 1): [('bar',)], (36, 1): [('bar',)],
              (41, 3): [('wv', ('wq', 23, 0))], (42, 1): [('bar',)],
              (T0_+2, 3): [('wv', ('wq', 23, 1))], (T0_+3, 1): [('bar',)],
              (T0_+3*L-4, 3): [('wv', ('wq', 23, 3))], (T0_+3*L-3, 1): [('bar',)]}
    else:
        place(vm, wq(22, 0) + wq(22, 1), 4); place(vm, hx(22, RA), 10, 2); place(vm, wq(22, 2) + wq(22, 3), 18)
        place(vm, hx(23, RA), 24, 2); place(vm, wq(23, 0), 31)
        place(vm, hx(22, RB_)[:2], 34, 2); place(vm, wq(23, 1), 37); place(vm, hx(22, RB_)[2:], 40, 2)
        place(vm, wq(23, 2), 43); place(vm, hx(23, RB_), T0_); place(vm, wq(23, 3), T0_+4)
        at = {(2, 3): [('wv', ('w2', 21))], (3, 1): [('bar',)],
              (30, 1): [('bar',)], (36, 1): [('bar',)], (42, 1): [('bar',)],
              (45, 3): [('wv', ('wq', 23, 0))], (46, 1): [('bar',)],
              (T0_+3, 1): [('bar',)],
              (T0_+14, 3): [('wv', ('wq', 23, 1))], (T0_+15, 1): [('bar',)],
              (T0_+3*L-1, 3): [('wv', ('hx', 22, RB_))],
              (T0_+3*L+1, 3): [('wv', ('wq', 23, 3))], (T0_+3*L+2, 1): [('bar',)]}
    assert L <= 12 and min(fin.values()) > T0_+6
    if OPT['pf6']:
        pr = pf_prog() + pr
        place(vm, [pf_op], OPT['pf6'])
    at.setdefault((T0_, 1), []).append(('raw', lambda A: stamp(A, 't1')))
    at.setdefault((T0_+6*L, 3), []).append(('raw', lambda A: stamp(A, 't2')))
    left = run(A, 24*20, steps, [], vm, at, pr)
    stamp(A, 't3')
    A("s_nop 7")
    for kind, pay, _ in left:
        if kind == 'v': A(pay)
        elif kind == 'lds': A.lds(*pay)
        elif kind == 'st': A.vmem(pay, 'o')
        elif kind == 'wl': A.wait_lg(lambda tg: tg == pay)
        else: assert False
    print("epilogue items left after the last MFMA:", len(left), "stores:", sum(1 for x in left if x[0] == 'st'))
    if OPT['stamps']:
        A("s_waitcnt vmcnt(0)")
        stamp(A, 'end')
        A(f"s_lshl_b32 {s(sT0)}, {s(sGW)}, 7")
        A(f"s_add_u32 {s(sT0)}, {s(sT0)}, {STAMP:#x}")
        A("s_waitcnt lgkmcnt(0)")
        A("s_mov_b64 exec, 1")
        A("v_mov_b32 v2, 0")
        for i in range(nstamp[0]):
            A(f"v_mov_b32 v4, {s(streg(i))}")
            A(f"v_mov_b32 v5, {s(streg(i) + (0 if OPT['rtonly'] else 2))}")
            A(f"buffer_store_dwordx2 v[4:5], v2, {s(SW,4)}, {s(sT0)} offen offset:{8*i}")
    if OPT['leak']:
        A("s_waitcnt vmcnt(0)")
        stamp(A, 'end')
        A("s_memrealtime s[100:101]")
        A(f"s_cmp_lg_u32 {s(sGW)}, 0")
        A("s_cbranch_scc1 L_end")
        A("s_waitcnt lgkmcnt(0)")
        A("s_sub_u32 s94, s98, s96")
        A("s_mul_i32 s94, s94, 10")
        A("s_min_u32 s94, s94, 200000")
        A.label("L_leak")
        A("s_memrealtime s[92:93]")
        A("s_waitcnt lgkmcnt(0)")
        A("s_sub_u32 s92, s92, s100")
        A("s_cmp_lt_u32 s92, s94")
        A("s_cbranch_scc1 L_leak")
    A.label("L_end")
    A("s_endpgm")
    return A


def main():
    A = gen()
    body = A.text()
    body = body.replace(" s_cbranch_scc1 L_exit_early\n", " s_cbranch_scc0 L_go\n s_endpgm\n s_nop 0\nL_go:\n")
    head = open('standalone__modern_conv_block_slak__vision.s.ref').read().split('; Override launch')[0]
    out = head
    out += f"; @launch grid=(256,1,1) block=(256,1,1) lds={LDS_BYTES}\n"
    out += '.amdgcn_target "amdgcn-amd-amdhsa--gfx950"\n'
    out += kernel_text(NAME, body)
    out += '.section .rodata,"a"\n'
    out += descriptor(NAME, 512, 256)
    open(sys.argv[1], 'w').write(out)
    print(f"wrote {sys.argv[1]}: {len(out)} bytes, {out.count(chr(10))} lines, code ~{A.pc} B")

main()
```

```python
import sys, math, re
import asmlib
from asmlib import *
asmlib.AUTO_LABEL = True

OPT = dict(xpol='nt', pf3=1, L=8, r3=1, pfl=1, notask=0, e1=0, itr=0, itr3=0, hpre=0, pkb0=0, pkc0=2, pkb1=1, pkc1=3, bo=0, bon=4, pf5=1, rev=0, pf6=47, sch=1, ta=10, tp=11, n2=4, n3=8, tc=18, c0=8, c00=0, c01=0, th=16, hold=1, sp=1, fakest=0, pf4=2, hpf=0, xf=0, n1=12, n2x=0, pf1=1, apol='sc1', cws=0, rtonly=0, D=12, n0=6, hpol='sc1', hlpol='', wpol='sc1', opol='sc1', stamps=0, R=4, skew=5, drop='', drop3='', sleep=1, leak='', stn='start,ln2,k1,k1end,sigB,go,k3,k3loopend,end', pf2=2)
for arg in sys.argv[2:]:
    k, val = arg.split('=')
    OPT[k] = type(OPT[k])(val.replace('+', ' '))
NREP = OPT['R']
NAME = 'standalone__modern_conv_block_slak__vision_kernel'

WS_BYTES = 0x10000000
X_BYTES = 65536 * 768
W_BYTES = 384 * 1536 * 2
HSTR = 0xC3000
W1P = 0xC400000
W2P = 0xC520000
W2S = W2P + W_BYTES
SUMS = 0xC780000
CNT_C = NREP*6144 + 2048
ZERO_BYTES = CNT_C + 4096
STAMP = 0xC800000
SPIN_MAX = 1 << 16

KG = 2.0 * math.sqrt(2.0 / math.pi) * math.log2(math.e)
A_SC = (KG * 0.044715) ** (1.0 / 3.0)
K_SC = KG / A_SC

SX, SW, ST, SH, SD, SP, SO, SDBG, SG, SBB = 4, 8, 12, 32, 36, 40, 44, 48, 52, 56
sWAVE, sWOFF, sGW, sCNT, sK, sA, sM0B = 16, 17, 18, 19, 20, 22, 24
sT0, sT1, sT2 = 25, 26, 27
sH4 = 28
sPC = 64
sXO = 60
KA = 64
STB = 66

LDS_SUM = 4 * 24576
LDS_XK = 112 * 1024
LDS_TAB = 3 * 49152
LDS_RED = LDS_TAB + 12288
LDS_SCR = LDS_RED + 256
LDS_BYTES = 160 * 1024

nstamp = [0]
def streg(i):
    if OPT['rtonly']: return (100, 98, 96, 66, 68, 70, 72, 74, 76, 78, 80, 86)[i]
    return (66, 70, 74, 78, 82, 86, 90, 96, 56)[i]
LK = {}
def stamp(A, label):
    if OPT['leak']:
        if label in OPT['leak'].split(','):
            r = 96 + 2*OPT['leak'].split(',').index(label)
            A(f"s_memrealtime {s(r, 2)}")
        return
    if not OPT['stamps'] or label not in OPT['stn'].split(','): return
    i = nstamp[0]; nstamp[0] += 1
    A(f"s_memrealtime {s(streg(i), 2)}")
    if not OPT['rtonly']: A(f"s_memtime {s(streg(i) + 2, 2)}")


def srd(A, d, src, nbytes, add=None):
    if add is None:
        A(f"s_mov_b32 {s(d)}, {s(src)}")
        A(f"s_mov_b32 {s(d+1)}, {s(src+1)}")
    else:
        A(f"s_add_u32 {s(d)}, {s(src)}, {add}")
        A(f"s_addc_u32 {s(d+1)}, {s(src+1)}, 0")
    A(f"s_mov_b32 {s(d+2)}, {nbytes:#x}")
    A(f"s_mov_b32 {s(d+3)}, 0x20000")


def xlane_sum(A, regs, tmps):
    for op in ('v_permlane16_swap_b32', 'v_permlane32_swap_b32'):
        for r, t in zip(regs, tmps): A(f"v_mov_b32 {v(t)}, {v(r)}")
        A("s_nop 1")
        for r, t in zip(regs, tmps): A(f"{op} {v(r)}, {v(t)}")
        A("s_nop 1")
        for r, t in zip(regs, tmps): A(f"v_add_f32 {v(r)}, {v(r)}, {v(t)}")


def align8(A):
    if A.pc % 8: A("s_nop 0")


def poll_issue(A, name, vz, vdst, off):
    A(f"v_mov_b32 {v(vz)}, 0")
    A.vmem(f"buffer_load_dword {v(vdst)}, {v(vz)}, {s(SDBG,4)}, 0 offen offset:{128+off} sc1", name)


def poll(A, name, vz, vdst, off):
    A(f"s_mov_b32 {s(sT0)}, {SPIN_MAX}")
    A.wait_vm(lambda t: t == name)
    A(f"v_cmp_eq_u32 vcc, 0, {v(vdst)}")
    A("s_nop 4")
    A(f"s_cbranch_vccz L_{name}_ok")
    A.label(f"L_{name}_spin")
    if OPT['sleep']: A(f"s_sleep {OPT['sleep']}")
    if OPT['bo']:
        A(f"s_cmp_gt_u32 {s(sT0)}, {SPIN_MAX - OPT['bon']}")
        A(f"s_cbranch_scc1 L_{name}_now")
        A(f"s_sleep {OPT['bo']}")
        A.label(f"L_{name}_now")
    A(f"buffer_load_dword {v(vdst)}, {v(vz)}, {s(SDBG,4)}, 0 offen offset:{128+off} sc1")
    A(f"s_sub_u32 {s(sT0)}, {s(sT0)}, 1")
    A("s_waitcnt vmcnt(0)")
    A(f"s_cbranch_scc1 L_{name}_ok")
    A(f"v_cmp_eq_u32 vcc, 0, {v(vdst)}")
    A("s_nop 4")
    A(f"s_cbranch_vccnz L_{name}_spin")
    A.label(f"L_{name}_ok")


def arrive_issue(A, name, vt, off, wave):
    A(f"s_cmp_eq_u32 {s(sWAVE)}, {wave}")
    A(f"s_cselect_b32 {s(sT0)}, 0, 0x100000")
    A(f"s_mov_b32 {s(sT1)}, {CNT_C + 128:#x}")
    A(f"v_mov_b32 {v(vt)}, 1")
    A(f"v_mov_b32 {v(vt+1)}, {s(sT0)}")
    A("s_mov_b64 exec, 1")
    A.vmem(f"buffer_atomic_add {v(vt)}, {v(vt+1)}, {s(ST,4) if OPT['cws'] else s(SDBG,4)}, {s(sT1) if OPT['cws'] else 0} offen offset:{off} sc0 {OPT['apol']}", name)
    A("s_mov_b64 exec, -1")


def arrive_finish(A, name, vt, off, wave):
    keep = list(A.vm)
    A(f"s_cmp_lg_u32 {s(sWAVE)}, {wave}")
    A(f"s_cbranch_scc1 L_{name}_done")
    A.wait_vm(lambda t: t == name)
    A(f"v_readfirstlane_b32 {s(sT0)}, {v(vt)}")
    A("s_nop 3")
    A(f"s_cmp_lg_u32 {s(sT0)}, 255")
    A(f"s_cbranch_scc1 L_{name}_done")
    A("s_mov_b64 exec, 1")
    A(f"buffer_store_dword {v(vt)}, {v(vt+1)}, {s(SDBG,4)}, 0 offen offset:{128+off} sc1")
    A("s_mov_b64 exec, -1")
    A.label(f"L_{name}_done")
    A.vm = keep


def pollA(A, name, vaddr, vdst, sr=SDBG, cnt=64):
    A(f"s_mov_b32 {s(sT0)}, {SPIN_MAX}")
    A.wait_vm(lambda t: t == name)
    A(f"v_cmp_gt_u32 vcc, {cnt}, {v(vdst)}")
    A("s_nop 4")
    A(f"s_cbranch_vccz L_{name}_ok")
    A.label(f"L_{name}_spin")
    A("s_sleep 16")
    A(f"buffer_load_dword {v(vdst)}, {v(vaddr)}, {s(sr,4)}, 0 offen sc1")
    A(f"s_sub_u32 {s(sT0)}, {s(sT0)}, 1")
    A("s_waitcnt vmcnt(0)")
    A(f"s_cbranch_scc1 L_{name}_ok")
    A(f"v_cmp_gt_u32 vcc, {cnt}, {v(vdst)}")
    A("s_nop 4")
    A(f"s_cbranch_vccnz L_{name}_spin")
    A.label(f"L_{name}_ok")


def signalA(A, name, vt):
    A(f"s_cmp_lg_u32 {s(sWAVE)}, 0")
    A(f"s_cbranch_scc1 L_{name}_nosig")
    A(f"s_lshr_b32 {s(sT0)}, s2, 3")
    A(f"s_and_b32 {s(sT0)}, {s(sT0)}, 3")
    A(f"s_lshl_b32 {s(sT0)}, {s(sT0)}, 6")
    A(f"v_mov_b32 {v(vt)}, 1")
    A(f"v_mov_b32 {v(vt+1)}, {s(sT0)}")
    A("s_mov_b64 exec, 1")
    A(f"buffer_atomic_add {v(vt)}, {v(vt+1)}, {s(SDBG,4)}, 0 offen {OPT['apol']}")
    A("s_mov_b64 exec, -1")
    A.label(f"L_{name}_nosig")


npf = [0]
sSL = 95
def code_pf(A, label, t, vL16, dst, sp=sPC):
    npf[0] += 1
    A(f"s_getpc_b64 {s(sp,2)}")
    A.label(f"L_pc{npf[0]}")
    A(f"s_add_u32 {s(sp)}, {s(sp)}, {label}-L_pc{npf[0]}")
    A(f"s_addc_u32 {s(sp+1)}, {s(sp+1)}, 0")
    for l in pf_addr(f"L_end-{label}", t, vL16, sp): A(l)
    A.vmem(f"global_load_dword {v(dst)}, {v(t,2)}, off", 'pf')


def pf_addr(lim, t, vL16, sp):
    return [f"v_and_b32 {v(t)}, 0xf0, {v(vL16)}",
            f"v_lshl_add_u32 {v(t)}, {v(t)}, 2, {s(sSL)}",
            f"v_min_u32 {v(t)}, {lim}, {v(t)}",
            f"v_add_co_u32 {v(t)}, vcc, {s(sp)}, {v(t)}",
            f"v_mov_b32 {v(t+1)}, {s(sp+1)}",
            f"v_mov_b32 {v(t+1)}, {s(sp+1)}",
            f"v_addc_co_u32 {v(t+1)}, vcc, 0, {v(t+1)}, vcc"]


def pollA_smem(A, r, vL16, vaddr, vdst):
    A("s_waitcnt lgkmcnt(0)"); A.lg = []
    A(f"s_min_u32 {s(r)}, {s(r)}, {s(r+1)}")
    A(f"s_min_u32 {s(r+2)}, {s(r+2)}, {s(r+3)}")
    A(f"s_min_u32 {s(r)}, {s(r)}, {s(r+2)}")
    A(f"s_cmp_ge_u32 {s(r)}, 64")
    A("s_cbranch_scc1 L_pollA_ok")
    A(f"s_mov_b32 {s(sT0)}, {SPIN_MAX}")
    A(f"v_and_b32 {v(vaddr)}, 48, {v(vL16)}")
    A(f"v_lshlrev_b32 {v(vaddr)}, 2, {v(vaddr)}")
    A.label("L_pollA_spin")
    A(f"buffer_load_dword {v(vdst)}, {v(vaddr)}, {s(SDBG,4)}, 0 offen sc1")
    A(f"s_sub_u32 {s(sT0)}, {s(sT0)}, 1")
    A("s_waitcnt vmcnt(0)")
    A("s_cbranch_scc1 L_pollA_ok")
    A(f"v_cmp_gt_u32 vcc, 64, {v(vdst)}")
    A("s_nop 4")
    A("s_cbranch_vccz L_pollA_ok")
    A("s_sleep 16")
    A("s_branch L_pollA_spin")
    A.label("L_pollA_ok")


def gen():
    A = Asm()
    A("s_cmp_ge_u32 s2, 256")
    A("s_cbranch_scc1 L_exit_early")
    stamp(A, 'entry')
    A(f"s_load_dwordx16 {s(KA,16)}, s[0:1], 0")
    A(f"s_load_dwordx2 {s(KA+16,2)}, s[0:1], 64")
    vL16, vXO = 0, 1
    A("v_lshrrev_b32 v2, 6, v0")
    A("v_and_b32 v3, 63, v0")
    A(f"v_readfirstlane_b32 {s(sWAVE)}, v2")
    A(f"v_lshlrev_b32 {v(vL16)}, 4, v3")
    A(f"s_bfe_u32 {s(sSL)}, s2, 0x30003")
    A(f"s_lshl_b32 {s(sSL)}, {s(sSL)}, 2")
    A(f"s_add_u32 {s(sSL)}, {s(sSL)}, {s(sWAVE)}")
    A(f"s_lshl_b32 {s(sSL)}, {s(sSL)}, 10")
    if OPT['pf1'] == 1: code_pf(A, 'L_head', 16, vL16, 20, sp=26); A.label("L_head")
    A("v_lshrrev_b32 v4, 4, v3")
    A("v_and_b32 v5, 15, v3")
    A("v_lshlrev_b32 v6, 4, v4")
    A(f"s_lshl_b32 {s(sGW)}, s2, 2")
    A(f"s_add_u32 {s(sGW)}, {s(sGW)}, {s(sWAVE)}")
    A(f"s_mul_i32 {s(sXO)}, {s(sGW)}, {64*768}")
    for rt in range(1, 4): A(f"s_add_u32 {s(sXO+rt)}, {s(sXO)}, {rt*16*768}")
    sSEL, sTASK, sVAL, sSTR, sSRC, sDST, sD1, sD2 = 82, 83, 84, 85, 86, 87, 88, 89
    sBK, sBC = 92, 3
    A(f"s_mov_b32 {s(sTASK)}, s2")
    A(f"s_mov_b32 {s(sSEL)}, {s(sWAVE)}")
    A(f"s_mov_b32 {s(sVAL)}, {0 if OPT['notask'] else W_BYTES:#x}")
    A(f"s_cmp_lt_u32 {s(sWAVE)}, 2")
    A("s_cbranch_scc1 L_task_ok")
    A(f"s_lshr_b32 {s(sTASK)}, s2, 3")
    A(f"s_add_u32 {s(sTASK)}, {s(sTASK)}, 256")
    A(f"s_bfe_u32 {s(sSEL)}, s2, 0x10002")
    A(f"s_and_b32 {s(sT0)}, s2, 3")
    A(f"s_sub_u32 {s(sT1)}, {s(sWAVE)}, 2")
    A(f"s_or_b32 {s(sT0)}, {s(sT0)}, {s(sT1)}")
    A(f"s_cmp_eq_u32 {s(sT0)}, 0")
    A(f"s_cselect_b32 {s(sVAL)}, {s(sVAL)}, 0")
    A.label("L_task_ok")
    A(f"s_cmp_eq_u32 {s(sSEL)}, 0")
    A("s_cbranch_scc0 L_task_w2")
    A(f"s_mul_hi_u32 {s(sT0)}, {s(sTASK)}, 0x15555556")
    A(f"s_mul_i32 {s(sT1)}, {s(sT0)}, 12")
    A(f"s_sub_u32 {s(sT1)}, {s(sTASK)}, {s(sT1)}")
    A(f"s_mov_b32 {s(sSTR)}, 3072")
    A(f"s_mul_i32 {s(sDST)}, {s(sT0)}, {2*24576}")
    A(f"s_lshl_b32 {s(sT2)}, {s(sT1)}, 10")
    A(f"s_add_u32 {s(sDST)}, {s(sDST)}, {s(sT2)}")
    A(f"s_mov_b32 {s(sD1)}, 12288")
    A(f"s_mov_b32 {s(sD2)}, 24576")
    A("s_branch L_task_j")
    A.label("L_task_w2")
    A(f"s_mul_hi_u32 {s(sT1)}, {s(sTASK)}, 0x2AAAAAAB")
    A(f"s_mul_i32 {s(sT0)}, {s(sT1)}, 6")
    A(f"s_sub_u32 {s(sT0)}, {s(sTASK)}, {s(sT0)}")
    A(f"s_mov_b32 {s(sSTR)}, 768")
    A(f"s_lshr_b32 {s(sT2)}, {s(sT1)}, 1")
    if OPT['rev']:
        A(f"s_sub_u32 {s(sT2)}, 23, {s(sT2)}")
    else:
        A(f"s_add_u32 {s(sT2)}, {s(sT2)}, 1")
        A(f"s_cmp_eq_u32 {s(sT2)}, 24")
        A(f"s_cselect_b32 {s(sT2)}, 0, {s(sT2)}")
    A(f"s_mul_i32 {s(sDST)}, {s(sT2)}, 49152")
    A(f"s_and_b32 {s(sT2)}, {s(sT1)}, 1")
    A(f"s_lshl_b32 {s(sT2)}, {s(sT2)}, 10")
    A(f"s_add_u32 {s(sDST)}, {s(sDST)}, {s(sT2)}")
    A(f"s_lshl_b32 {s(sT2)}, {s(sT0)}, 13")
    A(f"s_add_u32 {s(sDST)}, {s(sDST)}, {s(sT2)}")
    A(f"s_mov_b32 {s(sD1)}, 2048")
    A(f"s_mov_b32 {s(sD2)}, 4096")
    A.label("L_task_j")
    A(f"s_lshl_b32 {s(sBK)}, {s(sT1)}, 6")
    A(f"s_lshl_b32 {s(sBC)}, {s(sT0)}, 8")
    A(f"s_add_u32 {s(sBC)}, {s(sBC)}, {NREP*6144}")
    A(f"s_mul_i32 {s(sT2)}, {s(sSEL)}, {s(sVAL)}")
    A(f"s_cmp_eq_u32 {s(sT2)}, 0")
    A(f"s_cselect_b32 {s(sBC)}, 0x100000, {s(sBC)}")
    A(f"s_mul_i32 {s(sSRC)}, {s(sT1)}, {s(sSTR)}")
    A(f"s_lshl_b32 {s(sSRC)}, {s(sSRC)}, 5")
    A(f"s_lshl_b32 {s(sT0)}, {s(sT0)}, 7")
    A(f"s_add_u32 {s(sSRC)}, {s(sSRC)}, {s(sT0)}")
    A(f"s_lshl_b32 {s(sT0)}, {s(sSTR)}, 3")
    A(f"v_mul_lo_u32 v7, v4, {s(sT0)}")
    A("v_lshl_add_u32 v7, v5, 3, v7")
    vXD, sXM = 11, 90
    A("v_lshrrev_b32 v8, 3, v3")
    A("v_and_b32 v9, 7, v3")
    A("v_xor_b32 v9, v8, v9")
    A(f"v_mul_u32_u24 {v(vXD)}, 768, v8")
    A(f"v_lshl_add_u32 {v(vXD)}, v9, 4, {v(vXD)}")
    A(f"s_lshl_b32 {s(sXM)}, {s(sWAVE)}, 11")
    A("s_waitcnt lgkmcnt(0)")
    stamp(A, 'ka')
    srd(A, SX, KA+0, X_BYTES)
    XREG = (LDS_XK, 49152, 0, 49152)
    def xload(rt, j):
        kp, rh = divmod(j, 2)
        A(f"s_add_u32 m0, {s(sXM)}, {XREG[rt] + kp*8192 + rh*1024:#x}")
        A(f"s_add_u32 {s(sXM+1)}, {s(sXO+rt)}, {rh*8*768 + kp*128}")
        A.vmem(f"buffer_load_dwordx4 {v(vXD)}, {s(SX,4)}, {s(sXM+1)} offen {OPT['xpol']} lds", ('x', rt, kp))
    nissued = [0]
    def issue_upto(n):
        while nissued[0] < min(n, 60):
            i = nissued[0]; nissued[0] += 1
            if i < 48: xload(i // 12, i % 12)
            else: wpiece(i - 48)
    issue_upto(OPT['xf'])
    if OPT['pf1'] == 2: code_pf(A, 'L_head2', 16, vL16, 20, sp=26); A.label("L_head2")
    A(f"s_cmp_eq_u32 {s(sSEL)}, 0")
    A(f"s_cselect_b32 {s(SP)}, {s(KA+4)}, {s(KA+6)}")
    A(f"s_cselect_b32 {s(SP+1)}, {s(KA+5)}, {s(KA+7)}")
    A(f"s_cselect_b32 {s(sT2)}, 0, {W2P-W1P:#x}")
    A(f"s_mov_b32 {s(SP+2)}, {s(sVAL)}")
    A(f"s_mov_b32 {s(SP+3)}, 0x20000")
    GA = 112
    for j in range(8):
        A.vmem(f"buffer_load_dwordx2 {v(GA+2*j,2)}, v7, {s(SP,4)}, {s(sSRC)} offen", 'ga')
        if j < 7: A(f"s_add_u32 {s(sSRC)}, {s(sSRC)}, {s(sSTR)}")
    issue_upto(OPT['n0'])
    srd(A, SBB, KA+10, 3072)
    A.vmem(f"buffer_load_dwordx4 v[160:163], v6, {s(SBB,4)}, {s(sBK)} offen", 'gb0')
    srd(A, ST, KA+2, 768)
    DWL, DWH, Y0 = 16, 64, 112
    for ks in range(12):
        A.vmem(f"buffer_load_dwordx4 {v(DWH+4*ks,4)}, v6, {s(ST,4)}, 0 offen offset:{ks*64}", 'dw')
    srd(A, SW, KA+16, WS_BYTES)
    A(f"s_mul_i32 {s(sT0)}, s2, {HSTR:#x}")
    srd(A, SH, KA+16, 0, add=s(sT0))
    srd(A, SD, KA+16, 3*W_BYTES, add=f"{W1P:#x}")
    srd(A, SO, KA+12, X_BYTES)
    srd(A, SDBG, KA+14, 256)
    srd(A, SG, KA+8, 3072)
    A(f"s_add_u32 {s(SP)}, {s(SD)}, {s(sT2)}")
    A(f"s_addc_u32 {s(SP+1)}, {s(SD+1)}, 0")
    srd(A, ST, KA+16, ZERO_BYTES, add=f"{SUMS:#x}")
    stamp(A, 'start')
    A(f"s_lshl_b32 {s(sT0)}, {s(sWAVE)}, 10")
    for rt in range(4):
        A(f"s_sub_u32 {s(sH4+rt)}, {s(sT0)}, {(2 + rt//2)*16384 - (rt << 12):#x}")
    A(f"s_mul_i32 {s(sM0B)}, {s(sWAVE)}, 6144")
    A(f"s_mov_b32 {s(sWOFF)}, {s(sM0B)}")
    A(f"s_mov_b32 {s(sK)}, {f2u(K_SC):#x}")
    A(f"s_mov_b32 {s(sK+1)}, {f2u(K_SC):#x}")
    A(f"s_mov_b32 {s(sA)}, {f2u(A_SC):#x}")
    A(f"s_mov_b32 {s(sA+1)}, {f2u(A_SC):#x}")
    A("v_lshrrev_b32 v8, 3, v5")
    A("v_and_b32 v9, 1, v5")
    A("v_lshl_add_u32 v8, v8, 1, v9")
    A("v_lshlrev_b32 v8, 10, v8")
    A("v_lshl_add_u32 v8, v4, 8, v8")
    A("v_bfe_u32 v9, v5, 1, 2")
    A("v_lshl_add_u32 v8, v9, 6, v8")
    A(f"s_lshl_b32 {s(sT0)}, {s(sWAVE)}, 12")
    A(f"s_add_u32 {s(sT0)}, {s(sT0)}, {LDS_SUM:#x}")
    A(f"v_add_u32 v8, {s(sT0)}, v8")
    A(f"v_add_u32 v9, {s(sT0)}, {v(vL16)}")
    A(f"s_lshl_b32 {s(sT0)}, {s(sGW)}, 10")
    A(f"v_add_u32 v10, {s(sT0)}, {v(vL16)}")
    A(f"s_mov_b32 {s(sT0)}, 0x05040100")
    A(f"s_mov_b32 {s(sT1)}, 0x07060302")
    for i in range(4): A(f"v_mov_b32 {v(12+i)}, 0")
    A.wait_vm(lambda t: t == 'ga')
    stamp(A, 'ga')
    PB_ = 128
    for i in range(4):
        for d in range(4):
            A(f"v_perm_b32 {v(PB_+4*i+d)}, {v(GA+2*(2*d+1)+(i>>1))}, {v(GA+2*(2*d)+(i>>1))}, {s(sT1 if i & 1 else sT0)}")
        A.lds(f"ds_write_b128 v8, {v(PB_+4*i,4)} offset:{16*i}", 'bw')
    A.wait_lg(lambda t: True)
    for f in range(4):
        A.lds(f"ds_read_b128 {v(144+4*f,4)}, v9 offset:{1024*f}", ('br', f))
    A.vmem(f"buffer_store_dwordx4 v[12:15], v10, {s(ST,4)}, 0 offen sc1", 'pub')
    A(f"s_add_u32 {s(sT0)}, {s(sDST)}, {s(sD1)}")
    A(f"s_add_u32 {s(sT1)}, {s(sDST)}, {s(sD2)}")
    A(f"s_add_u32 {s(sT2)}, {s(sT1)}, {s(sD1)}")
    for f, so in enumerate((sDST, sT0, sT1, sT2)):
        A.wait_lg(lambda t: t == ('br', f))
        A.vmem(f"buffer_store_dwordx4 {v(144+4*f,4)}, {v(vL16)}, {s(SP,4)}, {s(so)} offen sc1", 'pub')
    issue_upto(OPT['n1'])
    A.wait_vm(lambda t: t == 'gb0')
    for d in range(4):
        for i in range(4):
            A(f"v_dot2_f32_bf16 {v(164+i)}, {v(PB_+4*i+d)}, {v(160+d)}, {v(164+i) if d else 0}")
    A("s_nop 3")
    A("v_permlane16_swap_b32 v164, v165")
    A("v_permlane16_swap_b32 v166, v167")
    A("s_nop 1")
    A("v_add_f32 v164, v164, v165")
    A("v_add_f32 v166, v166, v167")
    A("s_nop 1")
    A("v_permlane32_swap_b32 v164, v166")
    A("s_nop 1")
    A("v_add_f32 v164, v164, v166")
    A("v_accvgpr_write_b32 a192, v164")
    A.wait_vm(lambda t: t == 'dw')
    stamp(A, 'dw')
    issue_upto(OPT['n2x'])
    for i in range(48):
        A(f"v_and_b32 {v(DWL+i)}, 0xffff, {v(DWH+i)}")
        A(f"v_and_b32 {v(DWH+i)}, 0xffff0000, {v(DWH+i)}")

    sWM, sWEND, sRB, sPH = 40, 41, 42, 43
    def dma1(c, half):
        ld = [f"buffer_load_dwordx4 {v(vL16)}, {s(SD,4)}, {s(sWOFF)} offen offset:{i*1024} {OPT['wpol']} lds" for i in range(3)]
        m0 = [f"s_add_u32 m0, {s(sM0B)}, {c*24576 + half*3072:#x}" if c < 3 else f"s_add_u32 m0, {s(sWM)}, {half*3072}"]
        adv = [f"s_add_u32 {s(sWOFF)}, {s(sWOFF)}, {3072 if half == 0 else 24576-3072:#x}"]
        return m0, ld, adv
    def dma1_now(c, half):
        m0, ld, adv = dma1(c, half)
        A(m0[0]); A("s_nop 0")
        for l in ld: A.vmem(l, ('w', c))
        if (c, half) != (2, 1): A(adv[0])

    wopen = [False]
    def wpiece(i):
        assert wopen[0]
        c, r = divmod(i, 6); half, j = divmod(r, 3)
        m0, ld, adv = dma1(c, half)
        if j == 0: A(m0[0]); A("s_nop 0")
        A.vmem(ld[j], ('w', c))
        if j == 2: A(adv[0])
    A.wait_vm(lambda t: t == 'pub')
    A("s_barrier")
    signalA(A, 'sigA', 208)
    stamp(A, 'sigA')
    issue_upto(OPT['n0'] + OPT['D'])
    XL = 208
    vR0, vR1, vK0, vK1 = 12, 13, 14, 15
    A("v_and_b32 v8, 7, v5")
    A("v_xor_b32 v9, v8, v4")
    A("v_lshlrev_b32 v9, 4, v9")
    A("v_lshl_add_u32 v9, v5, 7, v9")
    A(f"v_add_u32 {v(vR0)}, {s(sXM)}, v9")
    A(f"v_xor_b32 {v(vR1)}, 64, {v(vR0)}")
    A(f"v_add_u32 {v(vK0)}, {LDS_XK:#x}, {v(vR0)}")
    A(f"v_add_u32 {v(vK1)}, {LDS_XK:#x}, {v(vR1)}")
    def xread(rt, ks, dst, tag):
        kp, par = divmod(ks, 2)
        if rt == 0: base, off = (vK0, vK1)[par], kp*8192
        elif rt == 2: base, off = (vR0, vR1)[par], kp*8192
        else: base, off = (vR0, vR1)[par], kp*8192
        A.lds(f"ds_read_b128 {dst}, {v(base)} offset:{off}", tag)
    T0, S0, S1, Q0, Q1 = 2, 2, 4, 6, 8
    vRB, vSUMA = 2, 3
    vPA, vDUM = 10, 1
    def fetch(rt, kp):
        A.wait_vm(lambda t: t == ('x', rt, kp))
        for ks in (2*kp, 2*kp+1):
            if rt == 1: xread(rt, ks, a(208+4*ks, 4), 'keep')
            if rt == 3: xread(rt, ks, a(144+4*ks, 4), 'keep')
            xread(rt, ks, v(XL+4*ks, 4), ('xl', rt, ks))
        issue_upto(min(rt*12 + 2*kp + 2 + OPT['D'], 60 if wopen[0] else 48))
    for rt in range(4):
        XL = 208 if rt < 3 else 160
        if rt in (1, 3):
            A(f"v_add_u32 {v(vR0)}, 49152, {v(vR0)}"); A(f"v_add_u32 {v(vR1)}, 49152, {v(vR1)}")
        if rt == 2:
            A(f"v_subrev_u32 {v(vR0)}, 49152, {v(vR0)}"); A(f"v_subrev_u32 {v(vR1)}, 49152, {v(vR1)}")
        fetch(rt, 0)
        for ks in range(12):
            if ks % 2 == 0 and ks < 10: fetch(rt, ks//2 + 1)
            A.wait_lg(lambda t: t == ('xl', rt, ks))
            for d in range(4):
                i = ks*4 + d
                A(f"v_dot2_f32_bf16 {v(Y0+2*i)}, {v(XL+i)}, {v(DWL+i)}, 0")
                A(f"v_dot2_f32_bf16 {v(Y0+2*i+1)}, {v(XL+i)}, {v(DWH+i)}, 0")
            if ks == 0:
                A("s_nop 2")
                A(f"v_pk_add_f32 {v(S0,2)}, {v(Y0,2)}, {v(Y0+4,2)}")
                A(f"v_pk_mul_f32 {v(Q0,2)}, {v(Y0,2)}, {v(Y0,2)}")
                A(f"v_pk_add_f32 {v(S1,2)}, {v(Y0+2,2)}, {v(Y0+6,2)}")
                A(f"v_pk_mul_f32 {v(Q1,2)}, {v(Y0+2,2)}, {v(Y0+2,2)}")
                A(f"v_pk_fma_f32 {v(Q0,2)}, {v(Y0+4,2)}, {v(Y0+4,2)}, {v(Q0,2)}")
                A(f"v_pk_fma_f32 {v(Q1,2)}, {v(Y0+6,2)}, {v(Y0+6,2)}, {v(Q1,2)}")
            else:
                for d in range(4):
                    y = Y0 + 2*(ks*4+d)
                    S_, Q_ = (S0, Q0) if d % 2 == 0 else (S1, Q1)
                    A(f"v_pk_add_f32 {v(S_,2)}, {v(S_,2)}, {v(y,2)}")
                    A(f"v_pk_fma_f32 {v(Q_,2)}, {v(y,2)}, {v(y,2)}, {v(Q_,2)}")
        stamp(A, f'p1_{rt}')
        if rt == 1:
            for j in range(4): A(f"s_load_dword {s(82+j)}, {s(SDBG,2)}, {64*j}")
        if rt == 2:
            assert nissued[0] == 48
            pollA_smem(A, 82, vL16, 10, 11)
            stamp(A, 'pollA')
            A("s_barrier")
            wopen[0] = True
            A(f"v_and_b32 v10, 0xf0, {v(vL16)}")
            A(f"v_lshrrev_b32 v11, 8, {v(vL16)}")
            A("v_lshl_add_u32 v10, v11, 2, v10")
            A(f"v_add_u32 v10, {s(sBC)}, v10")
            A.vmem(f"buffer_atomic_add_f32 a192, v10, {s(ST,4)}, 0 offen {OPT['apol']}", 'bias')
        if rt == 3:
            A(f"v_pk_add_f32 v[16:17], {v(S0,2)}, {v(S1,2)}")
            A(f"v_pk_add_f32 v[20:21], {v(Q0,2)}, {v(Q1,2)}")
            S0, S1, Q0, Q1 = 16, 18, 20, 22
            assert nissued[0] == 60
            for ks in range(2): xread(0, ks, v(8+4*ks, 4), 'keep')
            A(f"v_mov_b32 {v(vRB)}, {v(vL16)}")
            A(f"v_lshrrev_b32 {v(vSUMA)}, 2, {v(vL16)}")
            A(f"v_and_b32 {v(vSUMA)}, 0xf0, {v(vSUMA)}")
            A(f"s_lshl_b32 {s(sT0)}, {s(sWAVE)}, 2")
            A(f"s_add_u32 {s(sT0)}, {s(sT0)}, {LDS_SUM - 256:#x}")
            A(f"v_add_u32 {v(vSUMA)}, {s(sT0)}, {v(vSUMA)}")
            A(f"s_add_u32 {s(sWM)}, {s(sM0B)}, {2*24576:#x}")
            A(f"s_add_u32 {s(sWEND)}, {s(sM0B)}, {4*24576:#x}")
            A(f"s_mov_b32 {s(sRB)}, 0")
            A(f"s_mov_b32 {s(sPH)}, 0")
            A(f"s_mov_b32 {s(sCNT)}, {15 if OPT['pf4'] else 16}")
            A.wait_vm(lambda t: t == ('w', 0))
            A.wait_lg(lambda t: True)
            A("s_barrier")
            for i in range(4): A.lds(f"ds_read_b128 {a(192+4*i,4)}, {v(vRB)} offset:{i*1024}", ('a', 0))
            for h in range(2): dma1_now(2, h)
        else:
            A(f"v_pk_add_f32 {v(S0,2)}, {v(S0,2)}, {v(S1,2)}")
            A(f"v_pk_add_f32 {v(Q0,2)}, {v(Q0,2)}, {v(Q1,2)}")
        A(f"v_add_f32 {v(S0)}, {v(S0)}, {v(S0+1)}")
        A(f"v_add_f32 {v(Q0)}, {v(Q0)}, {v(Q0+1)}")
        xlane_sum(A, (S0, Q0), (S1, Q1))
        A(f"v_mul_f32 {v(S0)}, {f2u(1.0/384):#x}, {v(S0)}")
        A(f"v_mul_f32 {v(Q0)}, {f2u(1.0/384):#x}, {v(Q0)}")
        A(f"v_fma_f32 {v(Q0)}, -{v(S0)}, {v(S0)}, {v(Q0)}")
        A(f"v_max_f32 {v(Q0)}, 0, {v(Q0)}")
        A(f"v_cvt_pk_bf16_f32 {v(S1)}, {v(S0)}, {v(Q0)}")
        A(f"v_lshlrev_b32 {v(S0)}, 16, {v(S1)}")
        A(f"v_and_b32 {v(Q0)}, 0xffff0000, {v(S1)}")
        A(f"v_add_f32 {v(Q0)}, {f2u(1e-5):#x}, {v(Q0)}")
        A(f"v_cvt_pk_bf16_f32 {v(Q0)}, {v(Q0)}, {v(Q0)}")
        A(f"v_and_b32 {v(Q0)}, 0xffff0000, {v(Q0)}")
        A(f"v_sqrt_f32 {v(Q0)}, {v(Q0)}")
        A("s_nop 0")
        A(f"v_cvt_pk_bf16_f32 {v(Q0)}, {v(Q0)}, {v(Q0)}")
        A(f"v_and_b32 {v(Q0)}, 0xffff0000, {v(Q0)}")
        A(f"v_rcp_f32 {v(Q0)}, {v(Q0)}")
        A("s_nop 0")
        A(f"v_mul_f32 {v(Q1)}, {s(sA)}, {v(Q0)}")
        A(f"v_mul_f32_e64 {v(Q1+1)}, -{v(S0)}, {v(Q1)}")
        align8(A)
        for i0 in (range(44, -4, -4) if rt == 3 else ()):
            for i in range(i0+3, i0-1, -1):
                A(f"v_pk_fma_f32 {v(Y0+2*i,2)}, {v(Y0+2*i,2)}, {v(Q1,2)}, {v(Q1,2)} op_sel:[0,0,1] op_sel_hi:[1,0,1]")
            for i in range(i0+3, i0-1, -1):
                A(f"v_cvt_pk_bf16_f32 {v(160+i)}, {v(Y0+2*i)}, {v(Y0+2*i+1)}")
        for i0 in (range(0, 48, 4) if rt < 3 else ()):
            for i in range(i0, i0+4):
                A(f"v_pk_fma_f32 {v(Y0+2*i,2)}, {v(Y0+2*i,2)}, {v(Q1,2)}, {v(Q1,2)} op_sel:[0,0,1] op_sel_hi:[1,0,1]")
            for i in range(i0, i0+4):
                A(f"v_cvt_pk_bf16_f32 {v(T0+i%4)}, {v(Y0+2*i)}, {v(Y0+2*i+1)}")
            for i in range(i0, i0+4):
                A(f"v_accvgpr_write_b32 {a(rt*48+i)}, {v(T0+i%4)}")
        if rt == 1 and OPT['pf2']:
            code_pf(A, 'L_k1_pre0', T0, vL16, vDUM)
    assert nissued[0] == 60
    stamp(A, 'ln3')
    A.wait_vm(lambda t: t == ('w', 1))
    stamp(A, 'k1')
    if OPT['itr']: A("s_memrealtime s[98:99]")

    def AFr(gb, i): return a(192 + 4*i, 4) if gb % 2 == 0 else v(144 + 4*i, 4)
    Yr = lambda u: 16 + 16*((u+3) % 6)
    Tr = lambda u: 16 + 16*((u+1) % 6)
    Pq = lambda c, rt: (112 + 4*rt) if rt < 2 else (120 + 8*(c % 3) + 4*(rt-2))
    Sr = lambda u: 4
    NU = 96
    def dsread(gb, i):
        u, kb = divmod(gb, 3)
        return (f"ds_read_b128 {AFr(gb, i)}, {v(vRB)} offset:{((u % 2)*12 + kb*4 + i)*1024}", ('a', gb))
    def period(A, p, bargap):
        has_m = p < NU
        trans = []
        if p-1 < NU: trans += [f"v_exp_f32 {v(Tr(p-1)+i)}, {v(Tr(p-1)+i)}" for i in range(16)]
        if p-2 < NU: trans += [f"v_rcp_f32 {v(Tr(p-2)+i)}, {v(Tr(p-2)+i)}" for i in range(16)]
        u = p-3; c, ht = divmod(u, 2); T = Tr(u); S_ = Sr(u)
        cv = [f"v_cvt_pk_bf16_f32 {v(Pq(c, rt)+2*ht+d)}, {v(T+4*rt+2*d)}, {v(T+4*rt+2*d+1)}" for rt in range(4) for d in range(2)]
        dp = [f"v_add_f32_dpp {v(S_)}, {v(S_)}, {v(S_)} row_ror:8 row_mask:0xf bank_mask:0x3",
              f"v_add_f32_dpp {v(S_+1)}, {v(S_+1)}, {v(S_+1)} row_ror:8 row_mask:0xf bank_mask:0x3",
              f"v_add_f32_dpp {v(S_)}, {v(S_+2)}, {v(S_+2)} row_ror:8 row_mask:0xf bank_mask:0xc",
              f"v_add_f32_dpp {v(S_+1)}, {v(S_+3)}, {v(S_+3)} row_ror:8 row_mask:0xf bank_mask:0xc",
              f"v_add_f32_dpp {v(S_)}, {v(S_)}, {v(S_)} row_shl:4 row_mask:0xf bank_mask:0x5",
              f"v_add_f32_dpp {v(S_)}, {v(S_+1)}, {v(S_+1)} row_shr:4 row_mask:0xf bank_mask:0xa",
              f"v_add_f32_dpp {v(S_)}, {v(S_)}, {v(S_)} quad_perm:[2,3,0,1] row_mask:0xf bank_mask:0xf",
              f"v_add_f32_dpp {v(S_)}, {v(S_)}, {v(S_)} quad_perm:[1,0,3,2] row_mask:0xf bank_mask:0xf"]
        plain = dp + cv
        dsw = f"ds_write_b32 {v(vSUMA)}, {v(S_)} offset:{(p % 6)*256 - (1536 if p % 6 == 5 else 0) + 256}"
        c2, hf = divmod(p-4, 2)
        rts = [2*hf, 2*hf+1] + ([2, 3] if p == NU+2 else [])
        stores = [f"buffer_store_dwordx4 {v(Pq(c2, rt),4)}, {v(vL16)}, {s(SH,4)}, {s(sH4+rt)} offen {OPT['hpol']}" for rt in rts]
        k = p // 2
        dm = dma1(k+3, p % 2) if has_m else None
        scal = []
        if p % 6 == 4: scal.append(f"s_mov_b32 {s(SH+2)}, {48*16384:#x}")
        for rt in (2*((p-5) % 2), 2*((p-5) % 2)+1): scal.append(f"s_add_u32 {s(sH4+rt)}, {s(sH4+rt)}, {16384:#x}")
        if p % 2 == 0:
            scal += [f"s_add_u32 {s(sWM)}, {s(sWM)}, 24576", f"s_cmp_eq_u32 {s(sWM)}, {s(sWEND)}", f"s_cselect_b32 {s(sWM)}, {s(sM0B)}, {s(sWM)}"]
        else:
            scal += [f"s_add_u32 {s(sRB)}, {s(sRB)}, 24576", f"s_cmp_eq_u32 {s(sRB)}, {4*24576}", f"s_cselect_b32 {s(sRB)}, 0, {s(sRB)}"]
        scal += dma1((p-1)//2+3, (p-1) % 2)[2] + dm[0]
        lastp = (p % 6 == 5)
        if lastp: scal += [f"s_sub_u32 {s(sCNT)}, {s(sCNT)}, 1", f"s_cmp_lg_u32 {s(sCNT)}, 0"]
        bar = has_m and p % 2 == 0
        if has_m:
            gap = 0
            for kb in range(3):
                gb = p*3 + kb
                seq = [(rt, ks if rt % 2 == 0 else 3-ks) for rt in range(4) for ks in range(4)]
                for n, (rt, kk) in enumerate(seq):
                    D = v(Yr(p)+4*rt, 4)
                    Cc = '0' if (kb == 0 and n % 4 == 0) else D
                    A(f"v_mfma_f32_16x16x32_bf16 {D}, {AFr(gb, kk)}, {a(rt*48+(kb*4+kk)*4,4) if rt < 3 else v(160+(kb*4+kk)*4,4)}, {Cc}")
                    w1 = A.wait_lg_str(lambda t: t == ('a', gb+1)) if (gap in (15, 31, 46)) else None
                    w2 = A.wait_vm_str(lambda t: t == ('w', k+1)) if (bar and gap == bargap-1) else None
                    if w1 and w2: A(w2 + ' ' + w1.split()[1])
                    elif w1 or w2: A(w1 or w2)
                    elif bar and gap == bargap: pass
                    elif scal and n % 2 == 0: A(scal.pop(0))
                    if bar and gap == bargap: A("s_barrier")
                    if gap == 47: break
                    if n in (1, 3, 5, 7):
                        A.lds(*dsread(gb+1, n//2))
                        A(plain.pop(0))
                    elif gap in (41, 43):
                        A(plain.pop(0)); A(plain.pop(0))
                    elif gap == 26:
                        assert not scal
                        A.lds(dsw, 's')
                        if p % 6 == 4: A(f"v_add_u32 {v(vSUMA)}, 1536, {v(vSUMA)}")
                        if p % 2 == 1: A(f"v_add_u32 {v(vRB)}, {s(sRB)}, {v(vL16)}")
                    else:
                        l = trans.pop(0)
                        if gap == 46:
                            extra4 = 4 if (bar and bargap == 47) else 0
                            if (A.pc + 4 + extra4) % 8: l = l.replace('_f32', '_f32_e64')
                        A(l)
                    gap += 1
            assert not trans and not plain and not scal, (p, trans, plain, scal)
            assert A.pc % 8 == 0
        else:
            for l in scal + trans + plain: A(l)
            A.lds(dsw, 's')
            align8(A)
        dl = list(dm[1]) if dm else []
        st = list(stores)
        while st or dl:
            if st: A.vmem(st.pop(0), 'st')
            if dl: A.vmem(dl.pop(0), ('w', k+3))
        pb, pq = [], []
        if p-2 < NU:
            u = p-2; T = Tr(u); Y = Yr(u); S_ = Sr(u)
            for i in range(0, 16, 2): A(f"v_pk_mul_f32 {v(T+i,2)}, {v(T+i,2)}, {v(Y+i,2)}")
            for rt in range(4):
                for d in (0, 2):
                    if rt == 0: pq.append(f"v_pk_mul_f32 {v(S_+d,2)}, {v(T+d,2)}, {v(T+d,2)}")
                    else: pq.append(f"v_pk_fma_f32 {v(S_+d,2)}, {v(T+4*rt+d,2)}, {v(T+4*rt+d,2)}, {v(S_+d,2)}")
        if p-1 < NU:
            T = Tr(p-1)
            pb = [f"v_pk_fma_f32 {v(T+i,2)}, {v(T+i,2)}, {s(sA,2)}, {s(sA,2)}" for i in range(0, 16, 2)]
        while pb or pq:
            if pq: A(pq.pop(0))
            if pb: A(pb.pop(0))
        if has_m:
            T = Tr(p); Y = Yr(p)
            for i in range(0, 16, 2): A(f"v_pk_fma_f32 {v(T+i,2)}, {v(Y+i,2)}, {v(Y+i,2)}, {s(sK,2)}")
            for i in range(0, 16, 2): A(f"v_pk_mul_f32 {v(T+i,2)}, {v(T+i,2)}, {v(Y+i,2)} neg_lo:[1,0] neg_hi:[1,0]")

    ncopy = 4 if OPT['skew'] else 1
    for w in range(1, ncopy):
        A(f"s_cmp_eq_u32 {s(sWAVE)}, {w}")
        A(f"s_cbranch_scc1 L_k1_pre{w}")
    final_state = None
    for w in range(ncopy):
        A.label(f"L_k1_pre{w}")
        A("s_waitcnt lgkmcnt(0)")
        align8(A)
        bodies = []
        B = Asm()
        B.vm = [('w', 1)] + ['st']*4 + [('w', 2)]*6
        for it in range(16):
            start = len(B.lines)
            for p in range(it*6, it*6+6): period(B, p, 47 - OPT['skew']*w)
            bodies.append(B.lines[start:])
        assert all(b == bodies[0] for b in bodies)
        A.label(f"L_k1_loop{w}")
        for l in bodies[0]:
            if OPT['drop'] and re.match(OPT['drop'], l): continue
            A(l)
        if OPT['itr']:
            A(f"v_writelane_b32 v1, s98, m0".replace('m0', s(sCNT)) if False else f"s_mov_b32 m0, {s(sCNT)}")
            A("s_nop 0")
            A("v_writelane_b32 v1, s98, m0")
            A("s_memrealtime s[98:99]")
        A(f"s_cbranch_scc1 L_k1_loop{w}")
        if OPT['pf4']:
            A(f"s_cmp_lg_u32 {s(sPH)}, 0")
            A("s_cbranch_scc1 L_k1_tail")
            A(f"s_mov_b32 {s(sPH)}, 1")
            A(f"s_mov_b32 {s(sCNT)}, 1")
            code_pf(A, 'L_k1_tail', Yr(0), vL16, vDUM)
            A(f"s_branch L_k1_loop{w}")
        elif w < ncopy-1: A("s_branch L_k1_tail")
        final_state = (B.vm, B.lg)
    A.label("L_k1_tail")
    A.vm, A.lg = list(final_state[0]), list(final_state[1])
    def dpp_ops(S_):
        f = lambda d, x, ctl: f"v_add_f32_dpp {v(d)}, {v(x)}, {v(x)} {ctl}"
        return [f(S_, S_, "row_ror:8 row_mask:0xf bank_mask:0x3"), f(S_+1, S_+1, "row_ror:8 row_mask:0xf bank_mask:0x3"),
                f(S_, S_+2, "row_ror:8 row_mask:0xf bank_mask:0xc"), f(S_+1, S_+3, "row_ror:8 row_mask:0xf bank_mask:0xc"),
                f(S_, S_, "row_shl:4 row_mask:0xf bank_mask:0x5"), f(S_, S_+1, "row_shr:4 row_mask:0xf bank_mask:0xa"),
                f(S_, S_, "quad_perm:[2,3,0,1] row_mask:0xf bank_mask:0xf"), f(S_, S_, "quad_perm:[1,0,3,2] row_mask:0xf bank_mask:0xf")]
    def tr(op, u): return [f"{op} {v(Tr(u)+i)}, {v(Tr(u)+i)}" for i in range(16)]
    def pkC(u):
        T, Y, S_ = Tr(u), Yr(u), Sr(u)
        o = [f"v_pk_mul_f32 {v(T+i,2)}, {v(T+i,2)}, {v(Y+i,2)}" for i in range(0, 16, 2)]
        for rt in range(4):
            for d in (0, 2):
                if rt == 0: o.append(f"v_pk_mul_f32 {v(S_+d,2)}, {v(T+d,2)}, {v(T+d,2)}")
                else: o.append(f"v_pk_fma_f32 {v(S_+d,2)}, {v(T+4*rt+d,2)}, {v(T+4*rt+d,2)}, {v(S_+d,2)}")
        return o
    BS = 32
    def cvts(u):
        c, ht = divmod(u, 2); T = Tr(u)
        return [f"v_cvt_pk_bf16_f32 {v(BS+16*(c-46)+4*rt+2*ht+d)}, {v(T+4*rt+2*d)}, {v(T+4*rt+2*d+1)}" for rt in range(4) for d in range(2)]
    def weave(dpp, fill):
        fill = list(fill)
        for d in dpp:
            A(fill.pop(0)); A(fill.pop(0)); A(d)
        for l in fill: A(l)
    def sumw(u): A.lds(f"ds_write_b32 {v(vSUMA)}, {v(Sr(u))} offset:{(u-93)*256 + 256}", 's')
    A(f"v_subrev_u32 {v(vSUMA)}, 24576, {v(vSUMA)}")
    weave(dpp_ops(Sr(93)), tr('v_exp_f32', 95)); sumw(93)
    for l in tr('v_rcp_f32', 94): A(l)
    align8(A)
    for i in range(0, 16, 2): A(f"v_pk_fma_f32 {v(Tr(95)+i,2)}, {v(Tr(95)+i,2)}, {s(sA,2)}, {s(sA,2)}")
    for l in pkC(94): A(l)
    weave(dpp_ops(Sr(94)), tr('v_rcp_f32', 95)); sumw(94)
    align8(A)
    for l in pkC(95): A(l)
    weave(dpp_ops(Sr(95)), cvts(93) + cvts(94)); sumw(95)
    stamp(A, 'k1end')
    if OPT['itr']:
        A(f"s_lshl_b32 {s(sT0)}, {s(sGW)}, 7")
        A(f"s_add_u32 {s(sT0)}, {s(sT0)}, {STAMP + 0x40000:#x}")
        A(f"v_lshrrev_b32 v5, 2, {v(vL16)}")
        A("s_mov_b64 exec, 0xffff")
        A(f"buffer_store_dword v1, v5, {s(SW,4)}, {s(sT0)} offen")
        A("s_mov_b64 exec, -1")

    def acc(t, rt):
        r = {3: 0, 1: 96, 2: 192, 0: 288}[rt] + 4*((t+16) % 24 if rt == 2 and OPT['r3'] else t)
        return a(r, 4) if r < 256 else v(r - 128, 4)
    def accname(t, rt, i):
        r = {3: 0, 1: 96, 2: 192, 0: 288}[rt] + 4*((t+16) % 24 if rt == 2 and OPT['r3'] else t) + i
        return ('a', r) if r < 256 else ('v', r - 128)
    vTID4 = 4
    RB = 64
    A(f"s_lshl_b32 {s(sT0)}, {s(sWAVE)}, 10")
    A(f"s_add_u32 {s(sT0)}, {s(sT0)}, {LDS_SUM + 768:#x}")
    A(f"v_add_u32 v5, {s(sT0)}, {v(vL16)}")
    A(f"v_cmp_lt_u32 vcc, {LDS_SUM + 768 + 208*16 - 1:#x}, v5")
    A("v_subrev_u32 v7, 24576, v5")
    A("s_waitcnt lgkmcnt(0)"); A.lg = []
    A("v_cndmask_b32 v7, v5, v7, vcc")
    A("s_barrier")
    for q in range(6): A.lds(f"ds_read_b128 {v(RB+4*q,4)}, {'v7' if q == 5 else 'v5'} offset:{q*4096}", ('r', q))
    A(f"v_lshrrev_b32 {v(vTID4)}, 2, {v(vL16)}")
    A(f"s_lshl_b32 {s(sT0)}, {s(sWAVE)}, 8")
    A(f"v_add_u32 {v(vTID4)}, {s(sT0)}, {v(vTID4)}")
    A(f"v_and_b32 v6, {0xe3*4:#x}, {v(vTID4)}")
    A(f"v_bfe_u32 v7, {v(vTID4)}, 4, 2")
    A("v_lshl_add_u32 v6, v7, 5, v6")
    A(f"v_bfe_u32 v7, {v(vTID4)}, 6, 1")
    A("v_lshl_add_u32 v6, v7, 4, v6")
    A(f"s_lshr_b32 {s(sT0)}, s2, 3")
    A(f"s_and_b32 {s(sT0)}, {s(sT0)}, {NREP-1}")
    A(f"s_mul_i32 {s(sT0)}, {s(sT0)}, 6144")
    A(f"s_add_u32 {s(sT1)}, {s(sT0)}, 3072")
    for q in range(6):
        A.wait_lg(lambda t: t == ('r', q))
        r = RB+4*q
        A(f"v_add_f32 {v(r)}, {v(r)}, {v(r+1)}")
        A(f"v_add_f32 {v(r+2)}, {v(r+2)}, {v(r+3)}")
        A(f"v_add_f32 {v(r)}, {v(r)}, {v(r+2)}")
        A.vmem(f"buffer_atomic_add_f32 {v(r)}, v6, {s(ST,4)}, {s(sT0 if q < 3 else sT1)} offen offset:{(q%3)*1024} {OPT['apol']}", 'at')
    stamp(A, 'atom')
    GB, SHF, sSH = 104, 108, 30
    for q in range(3):
        A.vmem(f"buffer_load_dword {v(GB+q)}, {v(vTID4)}, {s(SG,4)}, 0 offen offset:{q*1024}", 'gb')
    A(f"s_add_u32 {s(sT1)}, {s(sGW)}, 128")
    A(f"s_lshl_b32 {s(sSH)}, {s(sT1)}, 10")
    A(f"s_add_u32 {s(sSH)}, {s(sSH)}, {W_BYTES:#x}")
    A.vmem(f"buffer_load_dwordx4 {v(SHF,4)}, {v(vL16)}, {s(SD,4)}, {s(sSH)} offen sc1", 'gb')
    A(f"s_add_u32 {s(sSH)}, {s(sSH)}, {W_BYTES:#x}")
    A(f"s_mul_hi_u32 {s(sT0)}, {s(sT1)}, 0x5555556")
    A(f"s_and_b32 {s(sT1)}, {s(sT1)}, 1")
    if OPT['rev']: A(f"s_sub_u32 {s(sT0)}, 24, {s(sT0)}")
    A(f"s_lshl_b32 {s(sT0)}, {s(sT0)}, 1")
    A(f"s_add_u32 {s(sT0)}, {s(sT0)}, {s(sT1)}")
    A(f"s_sub_u32 {s(sT0)}, {s(sT0)}, 2")
    A(f"s_lshl_b32 s31, {s(sT0)}, 7")
    for l in cvts(95): A(l)
    for rt in range(4):
        for d in range(2): A(f"v_mov_b32 {v(BS+4*rt+d)}, {v(Pq(46, rt)+d)}")
    vK0, vK1 = 2, 3
    A(f"v_lshrrev_b32 v5, 8, {v(vL16)}")
    A(f"v_bfe_u32 v7, {v(vL16)}, 4, 3")
    A("v_xor_b32 v7, v7, v5")
    A(f"v_and_b32 {v(vK0)}, 0xf0, {v(vL16)}")
    A(f"v_lshlrev_b32 {v(vK0)}, 3, {v(vK0)}")
    A(f"v_lshl_add_u32 {v(vK0)}, v7, 4, {v(vK0)}")
    A(f"s_lshl_b32 {s(sT0)}, {s(sWAVE)}, 11")
    A(f"s_add_u32 {s(sT0)}, {s(sT0)}, {LDS_XK:#x}")
    A(f"v_add_u32 {v(vK0)}, {s(sT0)}, {v(vK0)}")
    A(f"v_xor_b32 {v(vK1)}, 64, {v(vK0)}")
    XK = 56
    for u in range(2, 12):
        A.lds(f"ds_read_b128 {v(XK+4*u,4)}, {v((vK0, vK1)[u % 2])} offset:{(u//2)*8192}", ('xk', u))
    SEL = 24
    A(f"v_lshrrev_b32 v5, 8, {v(vL16)}")
    A(f"v_bfe_u32 v7, {v(vL16)}, 6, 2")
    A("v_cmp_eq_u32 vcc, v5, v7")
    A(f"v_and_b32 v5, 16, {v(vL16)}")
    A("v_mov_b32 v7, 0x3f80")
    A("v_lshlrev_b32 v7, v5, v7")
    A("v_cndmask_b32 v7, 0, v7, vcc")
    A(f"v_and_b32 v5, 32, {v(vL16)}")
    A("v_cmp_eq_u32 vcc, 0, v5")
    for i in (0, 1, 4, 5): A(f"v_mov_b32 {v(SEL+i)}, 0")
    A(f"v_cndmask_b32 {v(SEL+2)}, 0, v7, vcc")
    A(f"v_sub_u32 {v(SEL+3)}, v7, {v(SEL+2)}")
    A("s_nop 1")
    def xinit(rt, u, src):
        for e in range(2):
            A(f"v_mfma_f32_16x16x32_bf16 {acc(2*u+e, rt)}, {v(SEL+2-2*e,4)}, {src}, 0")
    for u in range(12): xinit(3, u, a(144+4*u, 4))
    for u in range(12): xinit(1, u, a(208+4*u, 4))
    A.wait_vm(lambda t: t == 'at')
    A("s_barrier")
    stamp(A, 'sigB')
    arrive_issue(A, 'arrB', 6, 4, 1)
    sHOFF, sINV, sM6 = 28, 29, 3
    A(f"s_mov_b32 {s(sM6)}, {s(sM0B)}")
    A(f"s_mul_i32 {s(sM0B)}, {s(sWAVE)}, 12288")
    A(f"s_lshl_b32 {s(sHOFF)}, {s(sWAVE)}, 10")
    kbof = (lambda pos: 23 - pos) if OPT['rev'] else (lambda pos: (pos - 1) % 24)
    if OPT['rev']: A(f"s_add_u32 {s(sHOFF)}, {s(sHOFF)}, {22*32768:#x}")
    vPA, vPD = 8, 9
    A(f"v_and_b32 {v(vXO)}, 0xf0, {v(vL16)}")
    A(f"v_mul_u32_u24 {v(vXO)}, 48, {v(vXO)}")
    A(f"v_lshrrev_b32 v5, 8, {v(vL16)}")
    A(f"v_lshl_add_u32 {v(vXO)}, v5, 4, {v(vXO)}")
    for u in range(12): xinit(2, u, v(208+4*u, 4))
    A.wait_lg(lambda t: True)
    for u in range(12): xinit(0, u, v(8+4*u if u < 2 else XK+4*u, 4))
    arrive_finish(A, 'arrB', 6, 4, 1)
    stamp(A, 'arr')
    def dma2_line(i): return f"buffer_load_dwordx4 {v(vL16)}, {s(SD,4)}, {s(sWOFF)} offen offset:{(i%4)*1024} {OPT['wpol']} lds"
    def dma2_ops(pos):
        ops = []
        if pos == 1:
            for i in range(6):
                pre = []
                if i % 3 == 0:
                    pre = [f"s_add_u32 {s(sWOFF)}, {s(sM6)}, {W_BYTES + 73728 + i*1024:#x}", f"s_add_u32 m0, {s(sM6)}, {73728 + i*1024:#x}"]
                ops.append((pre, dma2_line(i % 3), ('w2', pos), []))
            return ops
        for i in range(12):
            pre = []
            if i % 4 == 0:
                if i: pre.append(f"s_add_u32 {s(sWOFF)}, {s(sWOFF)}, 4096")
                elif pos == 2: pre.append(f"s_add_u32 {s(sWOFF)}, {s(sM0B)}, {W_BYTES + 2*49152:#x}")
                elif pos == 3: pre.append(f"s_add_u32 {s(sWOFF)}, {s(sWOFF)}, {49152-8192+W_BYTES:#x}")
                elif pos: pre.append(f"s_add_u32 {s(sWOFF)}, {s(sWOFF)}, {49152-8192}")
                pre.append(f"s_add_u32 m0, {s(sM0B)}, {(pos % 3)*49152 + i*1024:#x}")
            ops.append((pre, dma2_line(i), ('w2', pos), []))
        return ops
    vB1, vB2, TMP, RAW, AR, BQ, vTAB, vSA, vSD, vPL = 2, 3, 4, 16, 96, 120, 124, 125, 126, 127
    SQ = (8, 12)
    SETC = [16, 20, 24, 28, 4, 8, 12, 120]
    def hreg(pos, f):
        if pos < 2: return BS + 32*pos + 4*f
        return (SETC[f], BS + 32 + 4*f, BS + 4*f)[pos % 3]
    def hline(dst): return f"buffer_load_dwordx4 {v(dst,4)}, {v(vL16)}, {s(SH,4)}, {s(sHOFF)} offen {OPT['hlpol']}"
    hadv = f"s_add_u32 {s(sHOFF)}, {s(sHOFF)}, 4096"
    hback = f"s_sub_u32 {s(sHOFF)}, {s(sHOFF)}, {32768 + 28672}"
    def h_ops(pos, fs, raw=False):
        return [([], hline(RAW + 4*f if raw else hreg(pos, f)), ('h', pos, f//4), [hback if f == 7 and OPT['rev'] else hadv]) for f in fs]
    A(f"v_add_u32 {v(vB1)}, 0x10000, {v(vL16)}")
    A(f"v_add_u32 {v(vB2)}, 0x20000, {v(vL16)}")
    A(f"v_lshrrev_b32 {v(vTAB)}, 8, {v(vL16)}")
    A(f"v_lshlrev_b32 {v(vTAB)}, 5, {v(vTAB)}")
    A(f"v_add_u32 {v(vTAB)}, {LDS_TAB:#x}, {v(vTAB)}")
    A(f"v_add_u32 v13, s31, {v(vTAB)}")
    A(f"v_cmp_eq_u32 vcc, 256, {v(vTID4)}")
    A(f"s_lshr_b32 {s(sT0)}, s2, 3")
    A(f"s_and_b32 {s(sT0)}, {s(sT0)}, 15")
    A(f"s_lshl_b32 {s(sT0)}, {s(sT0)}, 8")
    A(f"s_add_u32 {s(sT0)}, {s(sT0)}, {CNT_C:#x}")
    A(f"v_mov_b32 {v(vSA)}, 0x100000")
    A(f"v_mov_b32 {v(vSD)}, {s(sT0)}")
    A(f"v_cndmask_b32 {v(vSA)}, {v(vSA)}, {v(vSD)}, vcc")
    A(f"v_mov_b32 {v(vSD)}, 1")
    A(f"v_lshlrev_b32 v5, 1, {v(vTID4)}")
    A(f"s_lshl_b32 {s(sT0)}, {s(sWAVE)}, 8")
    A(f"s_add_u32 m0, {s(sT0)}, {LDS_TAB + 6144:#x}")
    A(f"s_lshl_b32 {s(sT0)}, {s(sWAVE)}, 2")
    A(f"s_add_u32 {s(sT0)}, {s(sT0)}, {LDS_RED:#x}")
    A(f"v_mov_b32 v14, {s(sT0)}")
    A(f"v_mov_b32 v15, {LDS_RED:#x}")
    A.wait_vm(lambda t: t == 'gb')
    GF = 96
    for q in range(3):
        A(f"v_lshlrev_b32 {v(GF+2*q)}, 16, {v(GB+q)}")
        A(f"v_and_b32 {v(GF+2*q+1)}, 0xffff0000, {v(GB+q)}")
    SU = 112
    for d in range(4):
        A(f"v_lshlrev_b32 {v(SU+2*d)}, 16, {v(SHF+d)}")
        A(f"v_and_b32 {v(SU+2*d+1)}, 0xffff0000, {v(SHF+d)}")
    h1 = h_ops(1, range(4), raw=True) + h_ops(1, range(4, 8))
    if OPT['hpre']:
        poll_issue(A, 'pollB', vPA, vPD, 4)
        for _, l, tg, po in h1[:OPT['hpre']]:
            A.vmem(l, tg); A(po[0])
    A(f"s_cmp_lg_u32 {s(sWAVE)}, 0")
    A("s_cbranch_scc1 L_pollB_ok")
    keep = list(A.vm)
    if not OPT['hpre']: poll_issue(A, 'pollB', vPA, vPD, 4)
    poll(A, 'pollB', vPA, vPD, 4)
    A.vm = keep
    A("s_barrier")
    stamp(A, 'go')
    SR = 64
    sreg = lambda j: SR + j if j < 16 else 102 + j - 16
    assert NREP*6 <= 26
    for r in range(NREP):
        A(f"s_mov_b32 {s(sT0)}, {r*6144:#x}")
        A(f"s_mov_b32 {s(sT1)}, {r*6144 + 4096:#x}")
        for q in range(3):
            A.vmem(f"buffer_load_dwordx2 {v(sreg((r*3+q)*2),2)}, v5, {s(ST,4)}, {s(sT1 if q == 2 else sT0)} offen offset:{(q%2)*2048} sc1", 'sum')
    A(f"s_mov_b32 {s(sT0)}, {NREP*6144:#x}")
    for j in range(2):
        A.vmem(f"buffer_load_dword {v(vTID4)}, {s(ST,4)}, {s(sT0)} offen offset:{j*1024} sc1 lds", 'biasld')
    for _, l, tg, po in h1[OPT['hpre']:]:
        A.vmem(l, tg); A(po[0])
    A(f"v_add_u32 v5, {LDS_TAB:#x}, v5")
    A.wait_vm(lambda t: t == 'sum')
    for r in range(1, NREP):
        for i in range(6): A(f"v_add_f32 {v(SR+i)}, {v(SR+i)}, {v(sreg(r*6+i))}")
    for i in range(6): A(f"v_add_f32 {v(SR+i)}, {f2u(1e-6):#x}, {v(SR+i)}")
    for i in range(6): A(f"v_sqrt_f32 {v(SR+i)}, {v(SR+i)}")
    A("s_nop 0")
    A(f"v_add_f32 v6, {v(SR)}, {v(SR+1)}")
    for i in range(2, 6): A(f"v_add_f32 v6, v6, {v(SR+i)}")
    for j, n in enumerate((8, 4, 2, 1)):
        if j < 3:
            for i in (2*j, 2*j+1): A(f"v_mul_f32 {v(SR+i)}, {v(SR+i)}, {v(GF+i)}")
        else: A("s_nop 1")
        A(f"v_add_f32_dpp v6, v6, v6 row_ror:{n} row_mask:0xf bank_mask:0xf")
    for q in range(3): A.lds(f"ds_write_b64 v5, {v(SR+2*q,2)} offset:{q*2048}", 'tb')
    xlane_sum(A, (6,), (7,))
    A.lds("ds_write_b32 v14, v6", 'tb')
    A(f"v_mov_b32 v6, {f2u(1e-6):#x}")
    A.wait_vm(lambda t: t == 'biasld')
    A.wait_lg(lambda t: True)
    A("s_barrier")
    S8, SS = 64, 104
    A.lds("ds_read_b128 v[8:11], v15", 'red')
    for hh in range(2): A.lds(f"ds_read_b128 {v(SS+4*hh,4)}, v13 offset:{hh*16}", 'ss')
    for k2 in range(2):
        for hh in range(2):
            A.lds(f"ds_read_b128 {v(S8+8*k2+4*hh,4)}, {v(vTAB)} offset:{23*256 + k2*128 + hh*16}", 't0')
    A.wait_lg(lambda t: t == 'red')
    A("v_add_f32 v8, v8, v9")
    A("v_add_f32 v10, v10, v11")
    A("v_add_f32 v8, v8, v10")
    A(f"v_fmac_f32 v6, {f2u(1.0/1536):#x}, v8")
    A("v_rcp_f32 v6, v6")
    A.wait_lg(lambda t: t == 'ss')
    for i in range(8): A(f"v_fma_f32 {v(SS+i)}, {v(SS+i)}, v6, 1.0")
    A(f"v_readfirstlane_b32 {s(sINV)}, v6")
    for d in range(4): A(f"v_pk_mul_f32 {v(SU+2*d,2)}, {v(SU+2*d,2)}, {v(SS+2*d,2)}")
    for d in range(4): A(f"v_cvt_pk_bf16_f32 {v(BQ+d)}, {v(SU+2*d)}, {v(SU+2*d+1)}")
    A.vmem(f"buffer_store_dwordx4 {v(BQ,4)}, {v(vL16)}, {s(SD,4)}, {s(sSH)} offen sc1", 'share')
    def dsA(idx, step, k2):
        pos, t = step[:2]
        ad = (pos % 3)*49152 + (t*2+k2)*1024
        return (f"ds_read_b128 {v(AR + 8*(idx % 3) + 4*k2, 4)}, {v((vL16, vB1, vB2)[ad >> 16])} offset:{ad & 0xffff}", ('a2', idx))
    for i in range(2):
        for k2 in range(2): A.lds(*dsA(i, (0, i), k2))
    A.wait_lg(lambda t: t == 't0')
    for i in range(16): A(f"v_fma_f32 {v(S8+i)}, {v(S8+i)}, v6, 1.0")
    A(f"s_mov_b32 {s(sT2)}, 0xffff0000")
    align8(A)
    for k2 in range(2):
        for rt in range(4):
            F = BS + (k2*4+rt)*4
            T8 = 8
            for d in range(4):
                A(f"v_lshlrev_b32 {v(T8+2*d)}, 16, {v(F+d)}")
                A(f"v_and_b32 {v(T8+2*d+1)}, {s(sT2)}, {v(F+d)}")
            for d in range(4):
                A(f"v_pk_mul_f32 {v(T8+2*d,2)}, {v(T8+2*d,2)}, {v(S8+8*k2+2*d,2)}")
            for d in range(4):
                A(f"v_cvt_pk_bf16_f32 {v(F+d)}, {v(T8+2*d)}, {v(T8+2*d+1)}")
    sPF = 20
    A(f"s_getpc_b64 {s(sPF,2)}")
    A.label("L_pcl")
    A(f"s_add_u32 {s(sPF)}, {s(sPF)}, L_k3_last-L_pcl")
    A(f"s_addc_u32 {s(sPF+1)}, {s(sPF+1)}, 0")
    A(f"s_lshl_b32 {s(sPF+2)}, {s(sWAVE)}, 12")
    A(f"s_mov_b32 {s(sCNT)}, 6")
    A(f"s_sub_u32 s40, {s(sPF)}, L_k3_last-L_k3_loop")
    A(f"s_subb_u32 s41, {s(sPF+1)}, 0")
    sM3 = sPF + 3
    A(f"s_mul_i32 {s(sM3)}, {s(sWAVE)}, 3072")
    A(f"s_lshl_b32 {s(sT1)}, {s(sWAVE)}, 10")
    if OPT['fakest']:
        for rt in range(4):
            for j in range(3): A(f"s_add_u32 {s(82+rt*3+j)}, {s(sXO+rt)}, {j*4096}")
    A.wait_lg(lambda t: t == ('a2', 0))
    stamp(A, 'k3')

    def run(A, idx0, steps, after, vm, at, prog):
        allsteps = steps + after
        scal = []
        for i, st_ in enumerate(steps):
            pos, t = st_[:2]
            rows = st_[2] if len(st_) > 2 else (0, 1, 2, 3)
            nm = 2*len(rows)
            idx = idx0 + i
            q = list(vm.get(i, []))
            vgaps = ({0: (), 1: (4,), 2: (4, 6), 3: (2, 4, 6)} if nm == 8 else {0: (), 1: (2,)})[len(q)]
            if q: scal = list(q[0][0]) + scal
            stamp(A, f"s{idx}")
            for n in range(nm):
                rt, k2 = rows[n//2], n % 2
                kk = k2 if (n//2) % 2 == 0 else 1-k2
                D = acc(t, rt)
                A(f"v_mfma_f32_16x16x32_bf16 {D}, {v(AR+8*(idx%3)+4*kk,4)}, {v(hreg(pos, kk*4+rt),4)}, {D}")
                slots = 2
                wl, wv, bar, raw = [], [], False, []
                if n == nm-1: wl.append(('a2', idx+1))
                for act in at.get((i, n), []):
                    if act[0] == 'wv': wv.append(act[1])
                    elif act[0] == 'bar': bar = True
                    elif act[0] == 'scal': scal = scal + act[1]
                    elif act[0] == 'raw': raw.append(act[1])
                if not bar and (wl or wv or not scal):
                    while prog and prog[0][0] in ('wl', 'wv') and prog[0][2] <= i:
                        k_, tg, _ = prog.pop(0)
                        (wl if k_ == 'wl' else wv).append(tg)
                for tg in wv:
                    assert not any(o[2] == tg for j in range(i+1, len(steps)) for o in vm.get(j, [])) and not any(o[2] == tg for o in q), (tg, i, n)
                w1 = A.wait_lg_str(lambda tg: tg in wl)
                w2 = A.wait_vm_str(lambda tg: tg in wv)
                if w1 and w2: A(w2 + ' ' + w1.split()[1])
                elif w1 or w2: A(w1 or w2)
                elif bar: pass
                elif scal: A(scal.pop(0))
                if bar: A("s_barrier"); slots = 0
                for f in raw: f(A); slots = 0
                valu = False
                if nm == 4 and n == 0 and i+2 < len(allsteps):
                    for k_ in range(2): A.lds(*dsA(idx+2, allsteps[i+2], k_))
                    slots = 0
                elif nm == 8 and n in (0, 1) and i+2 < len(allsteps):
                    A.lds(*dsA(idx+2, allsteps[i+2], n)); slots -= 1
                elif n in vgaps:
                    assert slots == 2, (i, n)
                    o = q.pop(0)
                    while any(x in scal for x in o[0]) or hadv in scal or hback in scal:
                        A(scal.pop(0))
                        if not (any(x in scal for x in o[0]) or hadv in scal or hback in scal): A("s_nop 0")
                    if A.lines[-1].startswith(('s_add_u32 m0', 's_mov_b32 m0')): A("s_nop 0")
                    if len(o) > 4: o[4]()
                    A.vmem(o[1], o[2]); slots = 0
                    scal = list(o[3]) + (list(q[0][0]) if q else []) + scal
                while slots > 0 and prog and prog[0][2] <= i:
                    kind, pay, _ = prog[0]
                    if kind == 'v':
                        if isinstance(pay, tuple):
                            assert abs(pay[1] - t) >= 2, (pay, t)
                            pay = pay[0]
                        A(pay); slots -= 1; valu = True
                    elif kind == 'lds':
                        if valu: break
                        A.lds(*pay); slots -= 1
                    elif kind == 'st':
                        if slots < 2: break
                        A.vmem(pay, 'o'); slots = 0
                    elif kind == 'mark':
                        pay()
                    else: break
                    prog.pop(0)
            assert not q
        assert not scal, scal
        return prog

    def spread(ops, first, per):
        d = {}
        for j, o in enumerate(ops): d.setdefault(first + j//per, []).append(o)
        return d
    def merge(*ds):
        r = {}
        for d in ds:
            for k_, l in d.items(): r.setdefault(k_, []).extend(l)
        return r
    def biasrd(q, t): return (f"ds_read_b128 {v(q,4)}, {v(vTAB)} offset:{6144 + (t>>1)*128 + (t&1)*16}", ('bq', t))
    def bias_prog(tiles, pk):
        qs = (BQ, TMP)
        pr = [('lds', biasrd(qs[0], tiles[0][0]), 0)]
        for j, (t, ms) in enumerate(tiles):
            if j+1 < len(tiles): pr.append(('lds', biasrd(qs[(j+1) % 2], tiles[j+1][0]), 0))
            pr.append(('wl', ('bq', t), ms))
            for rt in range(4):
                f, r0 = accname(t, rt, 0)
                if f == 'v' and pk:
                    for r in (0, 2): pr.append(('v', (f"v_pk_add_f32 {v(r0+r,2)}, {v(r0+r,2)}, {v(qs[j % 2]+r,2)}", t), ms))
                elif f == 'v':
                    for r in range(4): pr.append(('v', (f"v_add_f32 {v(r0+r)}, {v(r0+r)}, {v(qs[j % 2]+r)}", t), ms))
        return pr
    done = {}
    def conv_prog(pos, starts, pk):
        rd = lambda g4: ('lds', (f"ds_read_b128 {v(SQ[g4 % 2],4)}, {v(vTAB)} offset:{kbof(pos)*256 + (g4//2)*128 + (g4%2)*16}", ('tab', g4)), 0)
        pr = [rd(0), rd(1)]
        head = list(pr); pr = []
        for g4 in range(4):
            k2, hh = divmod(g4, 2)
            Q = SQ[g4 % 2]; ms = starts[k2]
            pr += [('wl', ('tab', g4), ms), ('wv', ('h', pos, k2), ms)]
            for j in range(4): pr.append(('v', f"v_fma_f32 {v(Q+j)}, {v(Q+j)}, {s(sINV)}, 1.0", ms))
            for rt in range(4):
                dst = hreg(pos, k2*4+rt) + 2*hh
                src = (RAW + 4*rt + 2*hh) if k2 == 0 else dst
                for d in range(2):
                    pr.append(('v', f"v_lshlrev_b32 {v(TMP+2*d)}, 16, {v(src+d)}", ms))
                    pr.append(('v', f"v_and_b32 {v(TMP+2*d+1)}, {s(sT2)}, {v(src+d)}", ms))
                if pk == 1 or (pk == 2 and k2 == 1) or (pk == 3 and k2 == 0):
                    for j in (0, 2): pr.append(('v', f"v_pk_mul_f32 {v(TMP+j,2)}, {v(TMP+j,2)}, {v(Q+j,2)}", ms))
                else:
                    for j in range(4): pr.append(('v', f"v_mul_f32 {v(TMP+j)}, {v(TMP+j)}, {v(Q+j)}", ms))
                for d in range(2): pr.append(('v', f"v_cvt_pk_bf16_f32 {v(dst+d)}, {v(TMP+2*d)}, {v(TMP+2*d+1)}", ms))
            if g4+2 < 4: pr.append(rd(g4+2))
            if g4 == 1: pr.append(('mark', lambda: done.__setitem__(pos, True), 0))
        return head, pr
    def need(pos):
        def f(): assert done.get(pos), pos
        return f
    blk = lambda pos: [(pos, t) for t in range(24)]

    arr_op = ([], f"buffer_atomic_add {v(vSD)}, {v(vSA)}, {s(ST,4)}, 0 offen {OPT['apol']}", 'arrC', [])
    poll_op = ([], f"buffer_load_dword {v(vPL)}, {v(vSA)}, {s(ST,4)}, 0 offen sc1", 'pollC', [])
    d2, d3, d4 = dma2_ops(2), dma2_ops(3), dma2_ops(4)
    n2 = OPT['n2']; tc = OPT['tc']; n3 = OPT['n3']
    head, cv = conv_prog(1, (OPT['c00'], OPT['c01']), OPT['pkc0'])
    vm = merge(spread(dma2_ops(1), 0, 1), {OPT['ta']+1: [arr_op]}, spread(d2[:n2], 6, 1),
               spread([o + (need(1),) for o in h_ops(2, range(4), raw=True)], 17, 2))
    at = {(OPT['ta'], 5): [('wv', 'share')], (OPT['ta'], 6): [('bar',)],
          (21, 5): [('wv', ('w2', 1))], (21, 6): [('bar',)]}
    left = run(A, 0, blk(0), blk(1)[:2], vm, at, head + bias_prog([(t, 1) for t in range(8 if OPT['r3'] else 12, 24)], OPT['pkb0']) + cv)
    assert not left, len(left)
    stamp(A, 'b1')
    def pollC(A):
        pollA(A, 'pollC', vSA, vPL, ST, 16)
    head, cv = conv_prog(2, (OPT['c0'], 14), OPT['pkc1'])
    w3 = {}
    for j, o in enumerate(d3[:n3]): w3.setdefault(tc + 1 + j*(23-tc)//n3, []).append(o)
    vm = merge(spread(h_ops(2, range(4, 8)), 0, 2), spread(d2[n2:], 2, 1 if n2 >= 4 else 2), {OPT['tp']: [poll_op]},
               spread([o + (need(2),) for o in h_ops(3, range(4))], OPT['th'], 2), w3)
    at = {(tc, 1): [('raw', pollC)], (tc, 2): [('wv', ('w2', 2))], (tc, 3): [('bar',)]}
    bp = [('v', f"v_and_b32 {v(vSA)}, 0xf0, {v(vL16)}", 0), ('v', f"v_lshlrev_b32 {v(vSA)}, 4, {v(vSA)}", 0), ('v', f"v_add_u32 {v(vSA)}, {CNT_C:#x}, {v(vSA)}", 0)] + bias_prog([(t, 1) for t in ((5, 6, 7) if OPT['r3'] else (6, 7, 8, 9, 10, 11))] + [(t, t+2) for t in range(5 if OPT['r3'] else 6)], OPT['pkb1'])
    left = run(A, 24, blk(1), blk(2)[:2], vm, at, head + bp + cv)
    assert not left, len(left)
    stamp(A, 'b2')
    if n3 == 4:
        vm = merge(spread(h_ops(3, range(4, 8)), 0, 2), spread(d3[4:], 2, 2), spread(d4, 6, 2), spread(h_ops(4, range(8)), 12, 1))
    else:
        assert n3 == 8
        w4 = {}
        for j, o in enumerate(d4): w4.setdefault(6 + j*9//12, []).append(o)
        vm = merge(spread(h_ops(3, range(4, 8)), 0, 2), spread(d3[8:], 2, 1), w4, spread(h_ops(4, range(8)), 15, 1))
    at = {(5, 2): [('bar',)], (21, 2): [('wv', ('w2', 3))], (21, 3): [('bar',)], (23, 7): [('wv', ('h', 3, 1))]}
    pr = []
    if OPT['pf5']:
        pr = [('v', l, 0) for l in pf_addr("L_end-L_k3_loop", vSD, vL16, 40)]
        vm[1].append(([f"s_mov_b32 m0, {LDS_SCR:#x}"], f"global_load_lds_dword {v(vSD,2)}, off", 'pf', []))
    run(A, 48, blk(2), blk(3)[:2], vm, at, pr)
    align8(A)
    stamp(A, 'k3l')
    def pf_prog(lim='L_end-L_k3_last'): return [('v', l, 0) for l in pf_addr(lim, vSD, vL16, sPF)]
    pf_op = ([f"s_mov_b32 m0, {LDS_SCR:#x}"], f"global_load_lds_dword {v(vSD,2)}, off", 'pf', [])
    def steady(A, pos):
        vm = merge(spread(dma2_ops(pos+2), 2, 1), spread(h_ops(pos+2, range(8)), 14, 1))
        at = {(1, 2): [('wv', ('w2', pos+1))], (1, 3): [('bar',)], (23, 7): [('wv', ('h', pos+1, 1))]}
        pr = []
        if pos % 3 == 1:
            at[(22, 0)] = [('scal', [f"s_sub_u32 {s(sCNT)}, {s(sCNT)}, 1", f"s_cmp_lg_u32 {s(sCNT)}, 0"])]
            if OPT['pf3']:
                pr = pf_prog(s(sT0) if OPT['pfl'] else 'L_end-L_k3_last'); vm[1] = [pf_op]
        if pos % 3 == 0 and OPT['pf3'] and OPT['pfl']:
            at[(22, 0)] = [('scal', [f"s_cmp_eq_u32 {s(sCNT)}, 1", f"s_cselect_b32 {s(sT0)}, L_end-L_k3_last, 0"])]
        left = run(A, 24*pos, blk(pos), blk(pos+1)[:2], vm, at, pr)
        assert not left
    B = Asm(); B.vm, B.lg = list(A.vm), list(A.lg)
    bodies = {}
    for pos in range(3, 20):
        start = len(B.lines)
        steady(B, pos)
        assert bodies.setdefault(pos % 3, B.lines[start:]) == B.lines[start:], pos
    if OPT['itr3']: A("s_mov_b32 s93, 0")
    A("s_branch L_k3_enter")
    align8(A)
    A.label("L_k3_loop")
    for r in (2, 0, 1):
        if r == 0: A.label("L_k3_enter")
        if OPT['itr3']:
            A("s_mov_b32 m0, s93"); A("s_add_u32 s93, s93, 1")
            A("v_writelane_b32 v125, s98, m0") if OPT['itr3'] == 1 else A("v_writelane_b32 v125, s98, m0")
            A("s_memrealtime s[98:99]" if OPT['itr3'] == 1 else "s_memtime s[98:99]")
        for l in bodies[r]:
            if OPT['drop3'] and re.match(OPT['drop3'], l): continue
            A(l)
    A("s_cbranch_scc1 L_k3_loop")
    A.label("L_k3_last")
    A.vm, A.lg = list(B.vm), list(B.lg)
    stamp(A, 'k3loopend')
    if OPT['itr3']:
        A(f"s_lshl_b32 {s(sT0)}, {s(sGW)}, 7")
        A(f"s_add_u32 {s(sT0)}, {s(sT0)}, {STAMP + 0x40000:#x}")
        A(f"v_lshrrev_b32 v126, 2, {v(vL16)}")
        A("s_mov_b64 exec, 0x1ffff")
        A(f"buffer_store_dword v125, v126, {s(SW,4)}, {s(sT0)} offen")
        A("s_mov_b64 exec, -1")
        A("s_nop 4")
    RA, RB_ = (0, 2), (1, 3)
    L = OPT['L']
    steps = [(20, t, RA) for t in range(24)] + [(20, t, RB_) for t in range(24)]
    def zig(t, rows): return [(21, t, rows), (22, t, rows[::-1]), (23, t, rows)]
    for t in range(L): steps += zig(t, RA)
    for t in range(L): steps += zig(t, RB_)
    for t in range(L, 24): steps += zig(t, (0, 1, 2, 3))
    fin = {}
    for i, (pos, t, rows) in enumerate(steps):
        if pos == 23 and t % 2 == 1:
            for rt in rows: fin[(t//2, rt)] = i + (2 if len(steps[min(i+1, len(steps)-1)][2]) == 4 else 3)
    def hx(pos, rows):
        return [([f"s_add_u32 {s(sHOFF)}, {s(sT1)}, {kbof(pos)*32768 + k2*16384 + rt*4096:#x}"], hline(hreg(pos, k2*4+rt)), ('hx', pos, rows), [])
                for rt in rows for k2 in range(2)]
    def wq(pos, qu):
        pre = [f"s_add_u32 {s(sWOFF)}, {s(sM3)}, {2*W_BYTES + pos*49152 + qu*12288:#x}", f"s_add_u32 m0, {s(sM3)}, {(pos % 3)*49152 + qu*12288:#x}"]
        return [(pre if j == 0 else [], dma2_line(j), ('wq', pos, qu), []) for j in range(3)]
    pool, pr = [], []
    def ostore(P, u, rt):
        if OPT['fakest']: return f"buffer_store_dwordx4 {v(P,4)}, {v(vL16)}, {s(SO,4)}, {s(40+u//4+3*(rt%1))} offen offset:{(u%4)*1024} {OPT['opol']}".replace(f", {s(40+u//4)} ", f", {s(82+rt*3+u//4)} ")
        return f"buffer_store_dwordx4 {v(P,4)}, {v(vXO)}, {s(SO,4)}, {s(sXO+rt)} offen offset:{u*64} {OPT['opol']}"
    def pack(a0_, b0_, u, rt, ms):
        pr.append(('v', f"v_cvt_pk_bf16_f32 {v(a0_)}, {v(a0_)}, {v(a0_+1)}", ms))
        pr.append(('v', f"v_cvt_pk_bf16_f32 {v(a0_+1)}, {v(a0_+2)}, {v(a0_+3)}", ms))
        pr.append(('v', f"v_cvt_pk_bf16_f32 {v(a0_+2)}, {v(b0_)}, {v(b0_+1)}", ms))
        pr.append(('v', f"v_cvt_pk_bf16_f32 {v(a0_+3)}, {v(b0_+2)}, {v(b0_+3)}", ms))
        pr.append(('st', ostore(a0_, u, rt), ms))
        pool.append(b0_); pool.append(a0_)
    bq = {}
    def bias_fetch(key):
        bq[key] = (pool.pop(0), pool.pop(0))
        for e in range(2):
            l, _ = biasrd(bq[key][e], 2*key[0]+e)
            pr.append(('lds', (l, ('bq', key)), 0))
    def unit(u, rt, key=None):
        f, r0 = accname(2*u, rt, 0)
        ms = fin[(u, rt)]
        if f == 'v': return pack(r0, r0+4, u, rt, ms)
        assert len(pool) >= 3, (u, rt)
        T = (pool.pop(0), pool.pop(0))
        for e in range(2):
            for r in range(4): pr.append(('v', f"v_accvgpr_read_b32 {v(T[e]+r)}, {a(r0+4*e+r)}", ms))
        pr.append(('wl', ('bq', key), 0))
        for e in range(2):
            for r in range(4): pr.append(('v', f"v_add_f32 {v(T[e]+r)}, {v(T[e]+r)}, {v(bq[key][e]+r)}", ms))
        pack(T[0], T[1], u, rt, ms)
    groups = [((u, 'a'), [(u, 2)]) for u in range(L//2) if accname(2*u, 2, 0)[0] == 'a'] + [((u, 'b'), [(u, 1), (u, 3)]) for u in range(L//2)]
    groups += [((u, 'c'), [(u, rt) for rt in (1, 2, 3) if accname(2*u, rt, 0)[0] == 'a']) for u in range(L//2, 12)]
    vlist = [(u, rt) for u in range(12) for rt in (0, 2) if accname(2*u, rt, 0)[0] == 'v']
    unit(*vlist.pop(0)); unit(*vlist.pop(0)); bias_fetch(groups[0][0]); unit(*vlist.pop(0))
    groups.sort(key=lambda g_: fin[g_[1][0]])
    for gi, (key, us) in enumerate(groups):
        while vlist and fin[vlist[0]] <= max(fin[us[0]], fin[(2, 0)] + 4*gi): unit(*vlist.pop(0))
        early = gi+1 < len(groups) and len(pool) >= 5
        if early: bias_fetch(groups[gi+1][0])
        for u, rt in us: unit(u, rt, key)
        pool.extend(bq[key])
        if gi+1 < len(groups) and not early: bias_fetch(groups[gi+1][0])
    assert not vlist
    def place(d, ops, first, stride=1):
        for j, o in enumerate(ops):
            assert first + j*stride not in d
            d[first + j*stride] = [o]
    vm = {}
    T0_ = 48
    if OPT['sch'] == 0:
        place(vm, hx(22, RA), 0); place(vm, wq(22, 0) + wq(22, 1), 4, 2); place(vm, hx(22, RB_), 16, 2)
        place(vm, hx(23, RA), 24); place(vm, wq(22, 2), 28); place(vm, wq(23, 0), 31); place(vm, wq(22, 3), 34)
        place(vm, wq(23, 1), 37); place(vm, wq(23, 2), 43); place(vm, hx(23, RB_), T0_); place(vm, wq(23, 3), T0_+4)
        at = {(2, 3): [('wv', ('w2', 21))], (3, 1): [('bar',)],
              (30, 1): [('bar',)], (36, 1): [('bar',)],
              (41, 3): [('wv', ('wq', 23, 0))], (42, 1): [('bar',)],
              (T0_+2, 3): [('wv', ('wq', 23, 1))], (T0_+3, 1): [('bar',)],
              (T0_+3*L-4, 3): [('wv', ('wq', 23, 3))], (T0_+3*L-3, 1): [('bar',)]}
    else:
        place(vm, wq(22, 0) + wq(22, 1), 4); place(vm, hx(22, RA), 10, 2); place(vm, wq(22, 2) + wq(22, 3), 18)
        place(vm, hx(23, RA), 24, 2); place(vm, wq(23, 0), 31)
        place(vm, hx(22, RB_)[:2], 34, 2); place(vm, wq(23, 1), 37); place(vm, hx(22, RB_)[2:], 40, 2)
        place(vm, wq(23, 2), 43); place(vm, hx(23, RB_), T0_); place(vm, wq(23, 3), T0_+4)
        at = {(2, 3): [('wv', ('w2', 21))], (3, 1): [('bar',)],
              (30, 1): [('bar',)], (36, 1): [('bar',)], (42, 1): [('bar',)],
              (45, 3): [('wv', ('wq', 23, 0))], (46, 1): [('bar',)],
              (T0_+3, 1): [('bar',)],
              (T0_+14, 3): [('wv', ('wq', 23, 1))], (T0_+15, 1): [('bar',)],
              (T0_+3*L-1, 3): [('wv', ('hx', 22, RB_))],
              (T0_+3*L+1, 3): [('wv', ('wq', 23, 3))], (T0_+3*L+2, 1): [('bar',)]}
    assert L <= 12 and min(fin.values()) > T0_+6
    if OPT['pf6']:
        pr = pf_prog() + pr
        place(vm, [pf_op], OPT['pf6'])
    at.setdefault((T0_, 1), []).append(('raw', lambda A: stamp(A, 't1')))
    at.setdefault((T0_+6*L, 3), []).append(('raw', lambda A: stamp(A, 't2')))
    left = run(A, 24*20, steps, [], vm, at, pr)
    stamp(A, 't3')
    A("s_nop 7")
    for kind, pay, _ in left:
        if kind == 'v': A(pay)
        elif kind == 'lds': A.lds(*pay)
        elif kind == 'st': A.vmem(pay, 'o')
        elif kind == 'wl': A.wait_lg(lambda tg: tg == pay)
        else: assert False
    print("epilogue items left after the last MFMA:", len(left), "stores:", sum(1 for x in left if x[0] == 'st'))
    if OPT['stamps']:
        A("s_waitcnt vmcnt(0)")
        stamp(A, 'end')
        A(f"s_lshl_b32 {s(sT0)}, {s(sGW)}, 7")
        A(f"s_add_u32 {s(sT0)}, {s(sT0)}, {STAMP:#x}")
        A("s_waitcnt lgkmcnt(0)")
        A("s_mov_b64 exec, 1")
        A("v_mov_b32 v2, 0")
        for i in range(nstamp[0]):
            A(f"v_mov_b32 v4, {s(streg(i))}")
            A(f"v_mov_b32 v5, {s(streg(i) + (0 if OPT['rtonly'] else 2))}")
            A(f"buffer_store_dwordx2 v[4:5], v2, {s(SW,4)}, {s(sT0)} offen offset:{8*i}")
    if OPT['leak']:
        A("s_waitcnt vmcnt(0)")
        stamp(A, 'end')
        A("s_memrealtime s[100:101]")
        A(f"s_cmp_lg_u32 {s(sGW)}, 0")
        A("s_cbranch_scc1 L_end")
        A("s_waitcnt lgkmcnt(0)")
        A("s_sub_u32 s94, s98, s96")
        A("s_mul_i32 s94, s94, 10")
        A("s_min_u32 s94, s94, 200000")
        A.label("L_leak")
        A("s_memrealtime s[92:93]")
        A("s_waitcnt lgkmcnt(0)")
        A("s_sub_u32 s92, s92, s100")
        A("s_cmp_lt_u32 s92, s94")
        A("s_cbranch_scc1 L_leak")
    A.label("L_end")
    A("s_endpgm")
    return A


def main():
    A = gen()
    body = A.text()
    body = body.replace(" s_cbranch_scc1 L_exit_early\n", " s_cbranch_scc0 L_go\n s_endpgm\n s_nop 0\nL_go:\n")
    head = open('standalone__modern_conv_block_slak__vision.s.ref').read().split('; Override launch')[0]
    out = head
    out += f"; @launch grid=(256,1,1) block=(256,1,1) lds={LDS_BYTES}\n"
    out += '.amdgcn_target "amdgcn-amd-amdhsa--gfx950"\n'
    out += kernel_text(NAME, body)
    out += '.section .rodata,"a"\n'
    out += descriptor(NAME, 512, 256)
    open(sys.argv[1], 'w').write(out)
    print(f"wrote {sys.argv[1]}: {len(out)} bytes, {out.count(chr(10))} lines, code ~{A.pc} B")

main()
```

```python
import sys, math, re
import asmlib
from asmlib import *
asmlib.AUTO_LABEL = True

OPT = dict(xpol='nt', pf3=1, L=6, r3=1, pfl=1, notask=0, e1=0, itr=0, itr3=0, hpre=0, pkb0=0, pkc0=2, pkb1=1, pkc1=3, s0=0, s1=0, even=0, bo=0, bon=4, pf5=1, rev=0, pf6=47, sch=1, ta=10, tp=11, n2=4, n3=8, tc=18, c0=8, c00=0, c01=0, th=16, hold=1, sp=1, fakest=0, pf4=2, hpf=0, xf=0, n1=12, n2x=0, pf1=1, apol='sc1', cws=0, rtonly=0, D=12, n0=6, hpol='sc1', hlpol='', wpol='sc1', opol='sc1', stamps=0, R=2, skew=4, drop='', drop3='', sleep=1, leak='', stn='start,ln2,k1,k1end,sigB,go,k3,k3loopend,end', pf2=2)
for arg in sys.argv[2:]:
    k, val = arg.split('=')
    OPT[k] = type(OPT[k])(val.replace('+', ' '))
NREP = OPT['R']
NAME = 'standalone__modern_conv_block_slak__vision_kernel'

WS_BYTES = 0x10000000
X_BYTES = 65536 * 768
W_BYTES = 384 * 1536 * 2
HSTR = 0xC3000
W1P = 0xC400000
W2P = 0xC520000
W2S = W2P + W_BYTES
SUMS = 0xC780000
CNT_C = NREP*6144 + 2048
ZERO_BYTES = CNT_C + 4096
STAMP = 0xC800000
SPIN_MAX = 1 << 16

KG = 2.0 * math.sqrt(2.0 / math.pi) * math.log2(math.e)
A_SC = (KG * 0.044715) ** (1.0 / 3.0)
K_SC = KG / A_SC

SX, SW, ST, SH, SD, SP, SO, SDBG, SG, SBB = 4, 8, 12, 32, 36, 40, 44, 48, 52, 56
sWAVE, sWOFF, sGW, sCNT, sK, sA, sM0B = 16, 17, 18, 19, 20, 22, 24
sT0, sT1, sT2 = 25, 26, 27
sH4 = 28
sPC = 64
sXO = 60
KA = 64
STB = 66

LDS_SUM = 4 * 24576
LDS_XK = 112 * 1024
LDS_TAB = 3 * 49152
LDS_RED = LDS_TAB + 12288
LDS_SCR = LDS_RED + 256
LDS_BYTES = 160 * 1024

nstamp = [0]
def streg(i):
    if OPT['rtonly']: return (100, 98, 96, 66, 68, 70, 72, 74, 76, 78, 80, 86)[i]
    return (66, 70, 74, 78, 82, 86, 90, 96, 56)[i]
LK = {}
def stamp(A, label):
    if OPT['leak']:
        if label in OPT['leak'].split(','):
            r = 96 + 2*OPT['leak'].split(',').index(label)
            A(f"s_memrealtime {s(r, 2)}")
        return
    if not OPT['stamps'] or label not in OPT['stn'].split(','): return
    i = nstamp[0]; nstamp[0] += 1
    A(f"s_memrealtime {s(streg(i), 2)}")
    if not OPT['rtonly']: A(f"s_memtime {s(streg(i) + 2, 2)}")


def srd(A, d, src, nbytes, add=None):
    if add is None:
        A(f"s_mov_b32 {s(d)}, {s(src)}")
        A(f"s_mov_b32 {s(d+1)}, {s(src+1)}")
    else:
        A(f"s_add_u32 {s(d)}, {s(src)}, {add}")
        A(f"s_addc_u32 {s(d+1)}, {s(src+1)}, 0")
    A(f"s_mov_b32 {s(d+2)}, {nbytes:#x}")
    A(f"s_mov_b32 {s(d+3)}, 0x20000")


def xlane_sum(A, regs, tmps):
    for op in ('v_permlane16_swap_b32', 'v_permlane32_swap_b32'):
        for r, t in zip(regs, tmps): A(f"v_mov_b32 {v(t)}, {v(r)}")
        A("s_nop 1")
        for r, t in zip(regs, tmps): A(f"{op} {v(r)}, {v(t)}")
        A("s_nop 1")
        for r, t in zip(regs, tmps): A(f"v_add_f32 {v(r)}, {v(r)}, {v(t)}")


def align8(A):
    if A.pc % 8: A("s_nop 0")


def poll_issue(A, name, vz, vdst, off):
    A(f"v_mov_b32 {v(vz)}, 0")
    A.vmem(f"buffer_load_dword {v(vdst)}, {v(vz)}, {s(SDBG,4)}, 0 offen offset:{128+off} sc1", name)


def poll(A, name, vz, vdst, off):
    A(f"s_mov_b32 {s(sT0)}, {SPIN_MAX}")
    A.wait_vm(lambda t: t == name)
    A(f"v_cmp_eq_u32 vcc, 0, {v(vdst)}")
    A("s_nop 4")
    A(f"s_cbranch_vccz L_{name}_ok")
    A.label(f"L_{name}_spin")
    if OPT['sleep']: A(f"s_sleep {OPT['sleep']}")
    if OPT['bo']:
        A(f"s_cmp_gt_u32 {s(sT0)}, {SPIN_MAX - OPT['bon']}")
        A(f"s_cbranch_scc1 L_{name}_now")
        A(f"s_sleep {OPT['bo']}")
        A.label(f"L_{name}_now")
    A(f"buffer_load_dword {v(vdst)}, {v(vz)}, {s(SDBG,4)}, 0 offen offset:{128+off} sc1")
    A(f"s_sub_u32 {s(sT0)}, {s(sT0)}, 1")
    A("s_waitcnt vmcnt(0)")
    A(f"s_cbranch_scc1 L_{name}_ok")
    A(f"v_cmp_eq_u32 vcc, 0, {v(vdst)}")
    A("s_nop 4")
    A(f"s_cbranch_vccnz L_{name}_spin")
    A.label(f"L_{name}_ok")


def arrive_issue(A, name, vt, off, wave):
    A(f"s_cmp_eq_u32 {s(sWAVE)}, {wave}")
    A(f"s_cselect_b32 {s(sT0)}, 0, 0x100000")
    A(f"s_mov_b32 {s(sT1)}, {CNT_C + 128:#x}")
    A(f"v_mov_b32 {v(vt)}, 1")
    A(f"v_mov_b32 {v(vt+1)}, {s(sT0)}")
    A("s_mov_b64 exec, 1")
    A.vmem(f"buffer_atomic_add {v(vt)}, {v(vt+1)}, {s(ST,4) if OPT['cws'] else s(SDBG,4)}, {s(sT1) if OPT['cws'] else 0} offen offset:{off} sc0 {OPT['apol']}", name)
    A("s_mov_b64 exec, -1")


def arrive_finish(A, name, vt, off, wave):
    keep = list(A.vm)
    A(f"s_cmp_lg_u32 {s(sWAVE)}, {wave}")
    A(f"s_cbranch_scc1 L_{name}_done")
    A.wait_vm(lambda t: t == name)
    A(f"v_readfirstlane_b32 {s(sT0)}, {v(vt)}")
    A("s_nop 3")
    A(f"s_cmp_lg_u32 {s(sT0)}, 255")
    A(f"s_cbranch_scc1 L_{name}_done")
    A("s_mov_b64 exec, 1")
    A(f"buffer_store_dword {v(vt)}, {v(vt+1)}, {s(SDBG,4)}, 0 offen offset:{128+off} sc1")
    A("s_mov_b64 exec, -1")
    A.label(f"L_{name}_done")
    A.vm = keep


def pollA(A, name, vaddr, vdst, sr=SDBG, cnt=64):
    A(f"s_mov_b32 {s(sT0)}, {SPIN_MAX}")
    A.wait_vm(lambda t: t == name)
    A(f"v_cmp_gt_u32 vcc, {cnt}, {v(vdst)}")
    A("s_nop 4")
    A(f"s_cbranch_vccz L_{name}_ok")
    A.label(f"L_{name}_spin")
    A("s_sleep 16")
    A(f"buffer_load_dword {v(vdst)}, {v(vaddr)}, {s(sr,4)}, 0 offen sc1")
    A(f"s_sub_u32 {s(sT0)}, {s(sT0)}, 1")
    A("s_waitcnt vmcnt(0)")
    A(f"s_cbranch_scc1 L_{name}_ok")
    A(f"v_cmp_gt_u32 vcc, {cnt}, {v(vdst)}")
    A("s_nop 4")
    A(f"s_cbranch_vccnz L_{name}_spin")
    A.label(f"L_{name}_ok")


def signalA(A, name, vt):
    A(f"s_cmp_lg_u32 {s(sWAVE)}, 0")
    A(f"s_cbranch_scc1 L_{name}_nosig")
    A(f"s_lshr_b32 {s(sT0)}, s2, 3")
    A(f"s_and_b32 {s(sT0)}, {s(sT0)}, 3")
    A(f"s_lshl_b32 {s(sT0)}, {s(sT0)}, 6")
    A(f"v_mov_b32 {v(vt)}, 1")
    A(f"v_mov_b32 {v(vt+1)}, {s(sT0)}")
    A("s_mov_b64 exec, 1")
    A(f"buffer_atomic_add {v(vt)}, {v(vt+1)}, {s(SDBG,4)}, 0 offen {OPT['apol']}")
    A("s_mov_b64 exec, -1")
    A.label(f"L_{name}_nosig")


npf = [0]
sSL = 95
def code_pf(A, label, t, vL16, dst, sp=sPC):
    npf[0] += 1
    A(f"s_getpc_b64 {s(sp,2)}")
    A.label(f"L_pc{npf[0]}")
    A(f"s_add_u32 {s(sp)}, {s(sp)}, {label}-L_pc{npf[0]}")
    A(f"s_addc_u32 {s(sp+1)}, {s(sp+1)}, 0")
    for l in pf_addr(f"L_end-{label}", t, vL16, sp): A(l)
    A.vmem(f"global_load_dword {v(dst)}, {v(t,2)}, off", 'pf')


def pf_addr(lim, t, vL16, sp):
    return [f"v_and_b32 {v(t)}, 0xf0, {v(vL16)}",
            f"v_lshl_add_u32 {v(t)}, {v(t)}, 2, {s(sSL)}",
            f"v_min_u32 {v(t)}, {lim}, {v(t)}",
            f"v_add_co_u32 {v(t)}, vcc, {s(sp)}, {v(t)}",
            f"v_mov_b32 {v(t+1)}, {s(sp+1)}",
            f"v_mov_b32 {v(t+1)}, {s(sp+1)}",
            f"v_addc_co_u32 {v(t+1)}, vcc, 0, {v(t+1)}, vcc"]


def pollA_smem(A, r, vL16, vaddr, vdst):
    A("s_waitcnt lgkmcnt(0)"); A.lg = []
    A(f"s_min_u32 {s(r)}, {s(r)}, {s(r+1)}")
    A(f"s_min_u32 {s(r+2)}, {s(r+2)}, {s(r+3)}")
    A(f"s_min_u32 {s(r)}, {s(r)}, {s(r+2)}")
    A(f"s_cmp_ge_u32 {s(r)}, 64")
    A("s_cbranch_scc1 L_pollA_ok")
    A(f"s_mov_b32 {s(sT0)}, {SPIN_MAX}")
    A(f"v_and_b32 {v(vaddr)}, 48, {v(vL16)}")
    A(f"v_lshlrev_b32 {v(vaddr)}, 2, {v(vaddr)}")
    A.label("L_pollA_spin")
    A(f"buffer_load_dword {v(vdst)}, {v(vaddr)}, {s(SDBG,4)}, 0 offen sc1")
    A(f"s_sub_u32 {s(sT0)}, {s(sT0)}, 1")
    A("s_waitcnt vmcnt(0)")
    A("s_cbranch_scc1 L_pollA_ok")
    A(f"v_cmp_gt_u32 vcc, 64, {v(vdst)}")
    A("s_nop 4")
    A("s_cbranch_vccz L_pollA_ok")
    A("s_sleep 16")
    A("s_branch L_pollA_spin")
    A.label("L_pollA_ok")


def gen():
    A = Asm()
    A("s_cmp_ge_u32 s2, 256")
    A("s_cbranch_scc1 L_exit_early")
    stamp(A, 'entry')
    A(f"s_load_dwordx16 {s(KA,16)}, s[0:1], 0")
    A(f"s_load_dwordx2 {s(KA+16,2)}, s[0:1], 64")
    vL16, vXO = 0, 1
    A("v_lshrrev_b32 v2, 6, v0")
    A("v_and_b32 v3, 63, v0")
    A(f"v_readfirstlane_b32 {s(sWAVE)}, v2")
    A(f"v_lshlrev_b32 {v(vL16)}, 4, v3")
    A(f"s_bfe_u32 {s(sSL)}, s2, 0x30003")
    A(f"s_lshl_b32 {s(sSL)}, {s(sSL)}, 2")
    A(f"s_add_u32 {s(sSL)}, {s(sSL)}, {s(sWAVE)}")
    A(f"s_lshl_b32 {s(sSL)}, {s(sSL)}, 10")
    if OPT['pf1'] == 1: code_pf(A, 'L_head', 16, vL16, 20, sp=26); A.label("L_head")
    A("v_lshrrev_b32 v4, 4, v3")
    A("v_and_b32 v5, 15, v3")
    A("v_lshlrev_b32 v6, 4, v4")
    A(f"s_lshl_b32 {s(sGW)}, s2, 2")
    A(f"s_add_u32 {s(sGW)}, {s(sGW)}, {s(sWAVE)}")
    A(f"s_mul_i32 {s(sXO)}, {s(sGW)}, {64*768}")
    for rt in range(1, 4): A(f"s_add_u32 {s(sXO+rt)}, {s(sXO)}, {rt*16*768}")
    sSEL, sTASK, sVAL, sSTR, sSRC, sDST, sD1, sD2 = 82, 83, 84, 85, 86, 87, 88, 89
    sBK, sBC = 92, 3
    A(f"s_mov_b32 {s(sTASK)}, s2")
    A(f"s_mov_b32 {s(sSEL)}, {s(sWAVE)}")
    A(f"s_mov_b32 {s(sVAL)}, {0 if OPT['notask'] else W_BYTES:#x}")
    A(f"s_cmp_lt_u32 {s(sWAVE)}, 2")
    A("s_cbranch_scc1 L_task_ok")
    A(f"s_lshr_b32 {s(sTASK)}, s2, 3")
    A(f"s_add_u32 {s(sTASK)}, {s(sTASK)}, 256")
    A(f"s_bfe_u32 {s(sSEL)}, s2, 0x10002")
    A(f"s_and_b32 {s(sT0)}, s2, 3")
    A(f"s_sub_u32 {s(sT1)}, {s(sWAVE)}, 2")
    A(f"s_or_b32 {s(sT0)}, {s(sT0)}, {s(sT1)}")
    A(f"s_cmp_eq_u32 {s(sT0)}, 0")
    A(f"s_cselect_b32 {s(sVAL)}, {s(sVAL)}, 0")
    A.label("L_task_ok")
    A(f"s_cmp_eq_u32 {s(sSEL)}, 0")
    A("s_cbranch_scc0 L_task_w2")
    A(f"s_mul_hi_u32 {s(sT0)}, {s(sTASK)}, 0x15555556")
    A(f"s_mul_i32 {s(sT1)}, {s(sT0)}, 12")
    A(f"s_sub_u32 {s(sT1)}, {s(sTASK)}, {s(sT1)}")
    A(f"s_mov_b32 {s(sSTR)}, 3072")
    A(f"s_mul_i32 {s(sDST)}, {s(sT0)}, {2*24576}")
    A(f"s_lshl_b32 {s(sT2)}, {s(sT1)}, 10")
    A(f"s_add_u32 {s(sDST)}, {s(sDST)}, {s(sT2)}")
    A(f"s_mov_b32 {s(sD1)}, 12288")
    A(f"s_mov_b32 {s(sD2)}, 24576")
    A("s_branch L_task_j")
    A.label("L_task_w2")
    A(f"s_mul_hi_u32 {s(sT1)}, {s(sTASK)}, 0x2AAAAAAB")
    A(f"s_mul_i32 {s(sT0)}, {s(sT1)}, 6")
    A(f"s_sub_u32 {s(sT0)}, {s(sTASK)}, {s(sT0)}")
    A(f"s_mov_b32 {s(sSTR)}, 768")
    A(f"s_lshr_b32 {s(sT2)}, {s(sT1)}, 1")
    if OPT['rev']:
        A(f"s_sub_u32 {s(sT2)}, 23, {s(sT2)}")
    else:
        A(f"s_add_u32 {s(sT2)}, {s(sT2)}, 1")
        A(f"s_cmp_eq_u32 {s(sT2)}, 24")
        A(f"s_cselect_b32 {s(sT2)}, 0, {s(sT2)}")
    A(f"s_mul_i32 {s(sDST)}, {s(sT2)}, 49152")
    A(f"s_and_b32 {s(sT2)}, {s(sT1)}, 1")
    A(f"s_lshl_b32 {s(sT2)}, {s(sT2)}, 10")
    A(f"s_add_u32 {s(sDST)}, {s(sDST)}, {s(sT2)}")
    A(f"s_lshl_b32 {s(sT2)}, {s(sT0)}, 13")
    A(f"s_add_u32 {s(sDST)}, {s(sDST)}, {s(sT2)}")
    A(f"s_mov_b32 {s(sD1)}, 2048")
    A(f"s_mov_b32 {s(sD2)}, 4096")
    A.label("L_task_j")
    A(f"s_lshl_b32 {s(sBK)}, {s(sT1)}, 6")
    A(f"s_lshl_b32 {s(sBC)}, {s(sT0)}, 8")
    A(f"s_add_u32 {s(sBC)}, {s(sBC)}, {NREP*6144}")
    A(f"s_mul_i32 {s(sT2)}, {s(sSEL)}, {s(sVAL)}")
    A(f"s_cmp_eq_u32 {s(sT2)}, 0")
    A(f"s_cselect_b32 {s(sBC)}, 0x100000, {s(sBC)}")
    A(f"s_mul_i32 {s(sSRC)}, {s(sT1)}, {s(sSTR)}")
    A(f"s_lshl_b32 {s(sSRC)}, {s(sSRC)}, 5")
    A(f"s_lshl_b32 {s(sT0)}, {s(sT0)}, 7")
    A(f"s_add_u32 {s(sSRC)}, {s(sSRC)}, {s(sT0)}")
    A(f"s_lshl_b32 {s(sT0)}, {s(sSTR)}, 3")
    A(f"v_mul_lo_u32 v7, v4, {s(sT0)}")
    A("v_lshl_add_u32 v7, v5, 3, v7")
    vXD, sXM = 11, 90
    A("v_lshrrev_b32 v8, 3, v3")
    A("v_and_b32 v9, 7, v3")
    A("v_xor_b32 v9, v8, v9")
    A(f"v_mul_u32_u24 {v(vXD)}, 768, v8")
    A(f"v_lshl_add_u32 {v(vXD)}, v9, 4, {v(vXD)}")
    A(f"s_lshl_b32 {s(sXM)}, {s(sWAVE)}, 11")
    A("s_waitcnt lgkmcnt(0)")
    stamp(A, 'ka')
    srd(A, SX, KA+0, X_BYTES)
    XREG = (LDS_XK, 49152, 0, 49152)
    def xload(rt, j):
        kp, rh = divmod(j, 2)
        A(f"s_add_u32 m0, {s(sXM)}, {XREG[rt] + kp*8192 + rh*1024:#x}")
        A(f"s_add_u32 {s(sXM+1)}, {s(sXO+rt)}, {rh*8*768 + kp*128}")
        A.vmem(f"buffer_load_dwordx4 {v(vXD)}, {s(SX,4)}, {s(sXM+1)} offen {OPT['xpol']} lds", ('x', rt, kp))
    nissued = [0]
    def issue_upto(n):
        while nissued[0] < min(n, 60):
            i = nissued[0]; nissued[0] += 1
            if i < 48: xload(i // 12, i % 12)
            else: wpiece(i - 48)
    issue_upto(OPT['xf'])
    if OPT['pf1'] == 2: code_pf(A, 'L_head2', 16, vL16, 20, sp=26); A.label("L_head2")
    A(f"s_cmp_eq_u32 {s(sSEL)}, 0")
    A(f"s_cselect_b32 {s(SP)}, {s(KA+4)}, {s(KA+6)}")
    A(f"s_cselect_b32 {s(SP+1)}, {s(KA+5)}, {s(KA+7)}")
    A(f"s_cselect_b32 {s(sT2)}, 0, {W2P-W1P:#x}")
    A(f"s_mov_b32 {s(SP+2)}, {s(sVAL)}")
    A(f"s_mov_b32 {s(SP+3)}, 0x20000")
    GA = 112
    for j in range(8):
        A.vmem(f"buffer_load_dwordx2 {v(GA+2*j,2)}, v7, {s(SP,4)}, {s(sSRC)} offen", 'ga')
        if j < 7: A(f"s_add_u32 {s(sSRC)}, {s(sSRC)}, {s(sSTR)}")
    issue_upto(OPT['n0'])
    srd(A, SBB, KA+10, 3072)
    A.vmem(f"buffer_load_dwordx4 v[160:163], v6, {s(SBB,4)}, {s(sBK)} offen", 'gb0')
    srd(A, ST, KA+2, 768)
    DWL, DWH, Y0 = 16, 64, 112
    for ks in range(12):
        A.vmem(f"buffer_load_dwordx4 {v(DWH+4*ks,4)}, v6, {s(ST,4)}, 0 offen offset:{ks*64}", 'dw')
    srd(A, SW, KA+16, WS_BYTES)
    A(f"s_mul_i32 {s(sT0)}, s2, {HSTR:#x}")
    srd(A, SH, KA+16, 0, add=s(sT0))
    srd(A, SD, KA+16, 3*W_BYTES, add=f"{W1P:#x}")
    srd(A, SO, KA+12, X_BYTES)
    srd(A, SDBG, KA+14, 256)
    srd(A, SG, KA+8, 3072)
    A(f"s_add_u32 {s(SP)}, {s(SD)}, {s(sT2)}")
    A(f"s_addc_u32 {s(SP+1)}, {s(SD+1)}, 0")
    srd(A, ST, KA+16, ZERO_BYTES, add=f"{SUMS:#x}")
    stamp(A, 'start')
    A(f"s_lshl_b32 {s(sT0)}, {s(sWAVE)}, 10")
    for rt in range(4):
        A(f"s_sub_u32 {s(sH4+rt)}, {s(sT0)}, {(2 + rt//2)*16384 - (rt << 12):#x}")
    A(f"s_mul_i32 {s(sM0B)}, {s(sWAVE)}, 6144")
    A(f"s_mov_b32 {s(sWOFF)}, {s(sM0B)}")
    A(f"s_mov_b32 {s(sK)}, {f2u(K_SC):#x}")
    A(f"s_mov_b32 {s(sK+1)}, {f2u(K_SC):#x}")
    A(f"s_mov_b32 {s(sA)}, {f2u(A_SC):#x}")
    A(f"s_mov_b32 {s(sA+1)}, {f2u(A_SC):#x}")
    A("v_lshrrev_b32 v8, 3, v5")
    A("v_and_b32 v9, 1, v5")
    A("v_lshl_add_u32 v8, v8, 1, v9")
    A("v_lshlrev_b32 v8, 10, v8")
    A("v_lshl_add_u32 v8, v4, 8, v8")
    A("v_bfe_u32 v9, v5, 1, 2")
    A("v_lshl_add_u32 v8, v9, 6, v8")
    A(f"s_lshl_b32 {s(sT0)}, {s(sWAVE)}, 12")
    A(f"s_add_u32 {s(sT0)}, {s(sT0)}, {LDS_SUM:#x}")
    A(f"v_add_u32 v8, {s(sT0)}, v8")
    A(f"v_add_u32 v9, {s(sT0)}, {v(vL16)}")
    A(f"s_lshl_b32 {s(sT0)}, {s(sGW)}, 10")
    A(f"v_add_u32 v10, {s(sT0)}, {v(vL16)}")
    A(f"s_mov_b32 {s(sT0)}, 0x05040100")
    A(f"s_mov_b32 {s(sT1)}, 0x07060302")
    for i in range(4): A(f"v_mov_b32 {v(12+i)}, 0")
    A.wait_vm(lambda t: t == 'ga')
    stamp(A, 'ga')
    PB_ = 128
    for i in range(4):
        for d in range(4):
            A(f"v_perm_b32 {v(PB_+4*i+d)}, {v(GA+2*(2*d+1)+(i>>1))}, {v(GA+2*(2*d)+(i>>1))}, {s(sT1 if i & 1 else sT0)}")
        A.lds(f"ds_write_b128 v8, {v(PB_+4*i,4)} offset:{16*i}", 'bw')
    A.wait_lg(lambda t: True)
    for f in range(4):
        A.lds(f"ds_read_b128 {v(144+4*f,4)}, v9 offset:{1024*f}", ('br', f))
    A.vmem(f"buffer_store_dwordx4 v[12:15], v10, {s(ST,4)}, 0 offen sc1", 'pub')
    A(f"s_add_u32 {s(sT0)}, {s(sDST)}, {s(sD1)}")
    A(f"s_add_u32 {s(sT1)}, {s(sDST)}, {s(sD2)}")
    A(f"s_add_u32 {s(sT2)}, {s(sT1)}, {s(sD1)}")
    for f, so in enumerate((sDST, sT0, sT1, sT2)):
        A.wait_lg(lambda t: t == ('br', f))
        A.vmem(f"buffer_store_dwordx4 {v(144+4*f,4)}, {v(vL16)}, {s(SP,4)}, {s(so)} offen sc1", 'pub')
    issue_upto(OPT['n1'])
    A.wait_vm(lambda t: t == 'gb0')
    for d in range(4):
        for i in range(4):
            A(f"v_dot2_f32_bf16 {v(164+i)}, {v(PB_+4*i+d)}, {v(160+d)}, {v(164+i) if d else 0}")
    A("s_nop 3")
    A("v_permlane16_swap_b32 v164, v165")
    A("v_permlane16_swap_b32 v166, v167")
    A("s_nop 1")
    A("v_add_f32 v164, v164, v165")
    A("v_add_f32 v166, v166, v167")
    A("s_nop 1")
    A("v_permlane32_swap_b32 v164, v166")
    A("s_nop 1")
    A("v_add_f32 v164, v164, v166")
    A("v_accvgpr_write_b32 a192, v164")
    A.wait_vm(lambda t: t == 'dw')
    stamp(A, 'dw')
    issue_upto(OPT['n2x'])
    for i in range(48):
        A(f"v_and_b32 {v(DWL+i)}, 0xffff, {v(DWH+i)}")
        A(f"v_and_b32 {v(DWH+i)}, 0xffff0000, {v(DWH+i)}")

    sWM, sWEND, sRB, sPH = 40, 41, 42, 43
    def dma1(c, half):
        ld = [f"buffer_load_dwordx4 {v(vL16)}, {s(SD,4)}, {s(sWOFF)} offen offset:{i*1024} {OPT['wpol']} lds" for i in range(3)]
        m0 = [f"s_add_u32 m0, {s(sM0B)}, {c*24576 + half*3072:#x}" if c < 3 else f"s_add_u32 m0, {s(sWM)}, {half*3072}"]
        adv = [f"s_add_u32 {s(sWOFF)}, {s(sWOFF)}, {3072 if half == 0 else 24576-3072:#x}"]
        return m0, ld, adv
    def dma1_now(c, half):
        m0, ld, adv = dma1(c, half)
        A(m0[0]); A("s_nop 0")
        for l in ld: A.vmem(l, ('w', c))
        if (c, half) != (2, 1): A(adv[0])

    wopen = [False]
    def wpiece(i):
        assert wopen[0]
        c, r = divmod(i, 6); half, j = divmod(r, 3)
        m0, ld, adv = dma1(c, half)
        if j == 0: A(m0[0]); A("s_nop 0")
        A.vmem(ld[j], ('w', c))
        if j == 2: A(adv[0])
    A.wait_vm(lambda t: t == 'pub')
    A("s_barrier")
    signalA(A, 'sigA', 208)
    stamp(A, 'sigA')
    issue_upto(OPT['n0'] + OPT['D'])
    XL = 208
    vR0, vR1, vK0, vK1 = 12, 13, 14, 15
    A("v_and_b32 v8, 7, v5")
    A("v_xor_b32 v9, v8, v4")
    A("v_lshlrev_b32 v9, 4, v9")
    A("v_lshl_add_u32 v9, v5, 7, v9")
    A(f"v_add_u32 {v(vR0)}, {s(sXM)}, v9")
    A(f"v_xor_b32 {v(vR1)}, 64, {v(vR0)}")
    A(f"v_add_u32 {v(vK0)}, {LDS_XK:#x}, {v(vR0)}")
    A(f"v_add_u32 {v(vK1)}, {LDS_XK:#x}, {v(vR1)}")
    def xread(rt, ks, dst, tag):
        kp, par = divmod(ks, 2)
        if rt == 0: base, off = (vK0, vK1)[par], kp*8192
        elif rt == 2: base, off = (vR0, vR1)[par], kp*8192
        else: base, off = (vR0, vR1)[par], kp*8192
        A.lds(f"ds_read_b128 {dst}, {v(base)} offset:{off}", tag)
    T0, S0, S1, Q0, Q1 = 2, 2, 4, 6, 8
    vRB, vSUMA = 2, 3
    vPA, vDUM = 10, 1
    def fetch(rt, kp):
        A.wait_vm(lambda t: t == ('x', rt, kp))
        for ks in (2*kp, 2*kp+1):
            if rt == 1: xread(rt, ks, a(208+4*ks, 4), 'keep')
            if rt == 3: xread(rt, ks, a(144+4*ks, 4), 'keep')
            xread(rt, ks, v(XL+4*ks, 4), ('xl', rt, ks))
        issue_upto(min(rt*12 + 2*kp + 2 + OPT['D'], 60 if wopen[0] else 48))
    for rt in range(4):
        XL = 208 if rt < 3 else 160
        if rt in (1, 3):
            A(f"v_add_u32 {v(vR0)}, 49152, {v(vR0)}"); A(f"v_add_u32 {v(vR1)}, 49152, {v(vR1)}")
        if rt == 2:
            A(f"v_subrev_u32 {v(vR0)}, 49152, {v(vR0)}"); A(f"v_subrev_u32 {v(vR1)}, 49152, {v(vR1)}")
        fetch(rt, 0)
        for ks in range(12):
            if ks % 2 == 0 and ks < 10: fetch(rt, ks//2 + 1)
            A.wait_lg(lambda t: t == ('xl', rt, ks))
            for d in range(4):
                i = ks*4 + d
                A(f"v_dot2_f32_bf16 {v(Y0+2*i)}, {v(XL+i)}, {v(DWL+i)}, 0")
                A(f"v_dot2_f32_bf16 {v(Y0+2*i+1)}, {v(XL+i)}, {v(DWH+i)}, 0")
            if ks == 0:
                A("s_nop 2")
                A(f"v_pk_add_f32 {v(S0,2)}, {v(Y0,2)}, {v(Y0+4,2)}")
                A(f"v_pk_mul_f32 {v(Q0,2)}, {v(Y0,2)}, {v(Y0,2)}")
                A(f"v_pk_add_f32 {v(S1,2)}, {v(Y0+2,2)}, {v(Y0+6,2)}")
                A(f"v_pk_mul_f32 {v(Q1,2)}, {v(Y0+2,2)}, {v(Y0+2,2)}")
                A(f"v_pk_fma_f32 {v(Q0,2)}, {v(Y0+4,2)}, {v(Y0+4,2)}, {v(Q0,2)}")
                A(f"v_pk_fma_f32 {v(Q1,2)}, {v(Y0+6,2)}, {v(Y0+6,2)}, {v(Q1,2)}")
            else:
                for d in range(4):
                    y = Y0 + 2*(ks*4+d)
                    S_, Q_ = (S0, Q0) if d % 2 == 0 else (S1, Q1)
                    A(f"v_pk_add_f32 {v(S_,2)}, {v(S_,2)}, {v(y,2)}")
                    A(f"v_pk_fma_f32 {v(Q_,2)}, {v(y,2)}, {v(y,2)}, {v(Q_,2)}")
        stamp(A, f'p1_{rt}')
        if rt == 1:
            for j in range(4): A(f"s_load_dword {s(82+j)}, {s(SDBG,2)}, {64*j}")
        if rt == 2:
            assert nissued[0] == 48
            pollA_smem(A, 82, vL16, 10, 11)
            stamp(A, 'pollA')
            A("s_barrier")
            wopen[0] = True
            A(f"v_and_b32 v10, 0xf0, {v(vL16)}")
            A(f"v_lshrrev_b32 v11, 8, {v(vL16)}")
            A("v_lshl_add_u32 v10, v11, 2, v10")
            A(f"v_add_u32 v10, {s(sBC)}, v10")
            A.vmem(f"buffer_atomic_add_f32 a192, v10, {s(ST,4)}, 0 offen {OPT['apol']}", 'bias')
        if rt == 3:
            A(f"v_pk_add_f32 v[16:17], {v(S0,2)}, {v(S1,2)}")
            A(f"v_pk_add_f32 v[20:21], {v(Q0,2)}, {v(Q1,2)}")
            S0, S1, Q0, Q1 = 16, 18, 20, 22
            assert nissued[0] == 60
            for ks in range(2): xread(0, ks, v(8+4*ks, 4), 'keep')
            A(f"v_mov_b32 {v(vRB)}, {v(vL16)}")
            A(f"v_lshrrev_b32 {v(vSUMA)}, 2, {v(vL16)}")
            A(f"v_and_b32 {v(vSUMA)}, 0xf0, {v(vSUMA)}")
            A(f"s_lshl_b32 {s(sT0)}, {s(sWAVE)}, 2")
            A(f"s_add_u32 {s(sT0)}, {s(sT0)}, {LDS_SUM - 256:#x}")
            A(f"v_add_u32 {v(vSUMA)}, {s(sT0)}, {v(vSUMA)}")
            A(f"s_add_u32 {s(sWM)}, {s(sM0B)}, {2*24576:#x}")
            A(f"s_add_u32 {s(sWEND)}, {s(sM0B)}, {4*24576:#x}")
            A(f"s_mov_b32 {s(sRB)}, 0")
            A(f"s_mov_b32 {s(sPH)}, 0")
            A(f"s_mov_b32 {s(sCNT)}, {15 if OPT['pf4'] else 16}")
            A.wait_vm(lambda t: t == ('w', 0))
            A.wait_lg(lambda t: True)
            A("s_barrier")
            for i in range(4): A.lds(f"ds_read_b128 {a(192+4*i,4)}, {v(vRB)} offset:{i*1024}", ('a', 0))
            for h in range(2): dma1_now(2, h)
        else:
            A(f"v_pk_add_f32 {v(S0,2)}, {v(S0,2)}, {v(S1,2)}")
            A(f"v_pk_add_f32 {v(Q0,2)}, {v(Q0,2)}, {v(Q1,2)}")
        A(f"v_add_f32 {v(S0)}, {v(S0)}, {v(S0+1)}")
        A(f"v_add_f32 {v(Q0)}, {v(Q0)}, {v(Q0+1)}")
        xlane_sum(A, (S0, Q0), (S1, Q1))
        A(f"v_mul_f32 {v(S0)}, {f2u(1.0/384):#x}, {v(S0)}")
        A(f"v_mul_f32 {v(Q0)}, {f2u(1.0/384):#x}, {v(Q0)}")
        A(f"v_fma_f32 {v(Q0)}, -{v(S0)}, {v(S0)}, {v(Q0)}")
        A(f"v_max_f32 {v(Q0)}, 0, {v(Q0)}")
        A(f"v_cvt_pk_bf16_f32 {v(S1)}, {v(S0)}, {v(Q0)}")
        A(f"v_lshlrev_b32 {v(S0)}, 16, {v(S1)}")
        A(f"v_and_b32 {v(Q0)}, 0xffff0000, {v(S1)}")
        A(f"v_add_f32 {v(Q0)}, {f2u(1e-5):#x}, {v(Q0)}")
        A(f"v_cvt_pk_bf16_f32 {v(Q0)}, {v(Q0)}, {v(Q0)}")
        A(f"v_and_b32 {v(Q0)}, 0xffff0000, {v(Q0)}")
        A(f"v_sqrt_f32 {v(Q0)}, {v(Q0)}")
        A("s_nop 0")
        A(f"v_cvt_pk_bf16_f32 {v(Q0)}, {v(Q0)}, {v(Q0)}")
        A(f"v_and_b32 {v(Q0)}, 0xffff0000, {v(Q0)}")
        A(f"v_rcp_f32 {v(Q0)}, {v(Q0)}")
        A("s_nop 0")
        A(f"v_mul_f32 {v(Q1)}, {s(sA)}, {v(Q0)}")
        A(f"v_mul_f32_e64 {v(Q1+1)}, -{v(S0)}, {v(Q1)}")
        align8(A)
        for i0 in (range(44, -4, -4) if rt == 3 else ()):
            for i in range(i0+3, i0-1, -1):
                A(f"v_pk_fma_f32 {v(Y0+2*i,2)}, {v(Y0+2*i,2)}, {v(Q1,2)}, {v(Q1,2)} op_sel:[0,0,1] op_sel_hi:[1,0,1]")
            for i in range(i0+3, i0-1, -1):
                A(f"v_cvt_pk_bf16_f32 {v(160+i)}, {v(Y0+2*i)}, {v(Y0+2*i+1)}")
        for i0 in (range(0, 48, 4) if rt < 3 else ()):
            for i in range(i0, i0+4):
                A(f"v_pk_fma_f32 {v(Y0+2*i,2)}, {v(Y0+2*i,2)}, {v(Q1,2)}, {v(Q1,2)} op_sel:[0,0,1] op_sel_hi:[1,0,1]")
            for i in range(i0, i0+4):
                A(f"v_cvt_pk_bf16_f32 {v(T0+i%4)}, {v(Y0+2*i)}, {v(Y0+2*i+1)}")
            for i in range(i0, i0+4):
                A(f"v_accvgpr_write_b32 {a(rt*48+i)}, {v(T0+i%4)}")
        if rt == 1 and OPT['pf2']:
            code_pf(A, 'L_k1_pre0', T0, vL16, vDUM)
    assert nissued[0] == 60
    stamp(A, 'ln3')
    A.wait_vm(lambda t: t == ('w', 1))
    stamp(A, 'k1')
    if OPT['itr']: A("s_memrealtime s[98:99]")

    def AFr(gb, i): return a(192 + 4*i, 4) if gb % 2 == 0 else v(144 + 4*i, 4)
    Yr = lambda u: 16 + 16*((u+3) % 6)
    Tr = lambda u: 16 + 16*((u+1) % 6)
    Pq = lambda c, rt: (112 + 4*rt) if rt < 2 else (120 + 8*(c % 3) + 4*(rt-2))
    Sr = lambda u: 4
    NU = 96
    def dsread(gb, i):
        u, kb = divmod(gb, 3)
        return (f"ds_read_b128 {AFr(gb, i)}, {v(vRB)} offset:{((u % 2)*12 + kb*4 + i)*1024}", ('a', gb))
    def period(A, p, bargap):
        has_m = p < NU
        trans = []
        if p-1 < NU: trans += [f"v_exp_f32 {v(Tr(p-1)+i)}, {v(Tr(p-1)+i)}" for i in range(16)]
        if p-2 < NU: trans += [f"v_rcp_f32 {v(Tr(p-2)+i)}, {v(Tr(p-2)+i)}" for i in range(16)]
        u = p-3; c, ht = divmod(u, 2); T = Tr(u); S_ = Sr(u)
        cv = [f"v_cvt_pk_bf16_f32 {v(Pq(c, rt)+2*ht+d)}, {v(T+4*rt+2*d)}, {v(T+4*rt+2*d+1)}" for rt in range(4) for d in range(2)]
        dp = [f"v_add_f32_dpp {v(S_)}, {v(S_)}, {v(S_)} row_ror:8 row_mask:0xf bank_mask:0x3",
              f"v_add_f32_dpp {v(S_+1)}, {v(S_+1)}, {v(S_+1)} row_ror:8 row_mask:0xf bank_mask:0x3",
              f"v_add_f32_dpp {v(S_)}, {v(S_+2)}, {v(S_+2)} row_ror:8 row_mask:0xf bank_mask:0xc",
              f"v_add_f32_dpp {v(S_+1)}, {v(S_+3)}, {v(S_+3)} row_ror:8 row_mask:0xf bank_mask:0xc",
              f"v_add_f32_dpp {v(S_)}, {v(S_)}, {v(S_)} row_shl:4 row_mask:0xf bank_mask:0x5",
              f"v_add_f32_dpp {v(S_)}, {v(S_+1)}, {v(S_+1)} row_shr:4 row_mask:0xf bank_mask:0xa",
              f"v_add_f32_dpp {v(S_)}, {v(S_)}, {v(S_)} quad_perm:[2,3,0,1] row_mask:0xf bank_mask:0xf",
              f"v_add_f32_dpp {v(S_)}, {v(S_)}, {v(S_)} quad_perm:[1,0,3,2] row_mask:0xf bank_mask:0xf"]
        plain = dp + cv
        dsw = f"ds_write_b32 {v(vSUMA)}, {v(S_)} offset:{(p % 6)*256 - (1536 if p % 6 == 5 else 0) + 256}"
        c2, hf = divmod(p-4, 2)
        rts = [2*hf, 2*hf+1] + ([2, 3] if p == NU+2 else [])
        stores = [f"buffer_store_dwordx4 {v(Pq(c2, rt),4)}, {v(vL16)}, {s(SH,4)}, {s(sH4+rt)} offen {OPT['hpol']}" for rt in rts]
        k = p // 2
        dm = dma1(k+3, p % 2) if has_m else None
        scal = []
        if p % 6 == 4: scal.append(f"s_mov_b32 {s(SH+2)}, {48*16384:#x}")
        for rt in (2*((p-5) % 2), 2*((p-5) % 2)+1): scal.append(f"s_add_u32 {s(sH4+rt)}, {s(sH4+rt)}, {16384:#x}")
        if p % 2 == 0:
            scal += [f"s_add_u32 {s(sWM)}, {s(sWM)}, 24576", f"s_cmp_eq_u32 {s(sWM)}, {s(sWEND)}", f"s_cselect_b32 {s(sWM)}, {s(sM0B)}, {s(sWM)}"]
        else:
            scal += [f"s_add_u32 {s(sRB)}, {s(sRB)}, 24576", f"s_cmp_eq_u32 {s(sRB)}, {4*24576}", f"s_cselect_b32 {s(sRB)}, 0, {s(sRB)}"]
        scal += dma1((p-1)//2+3, (p-1) % 2)[2] + dm[0]
        lastp = (p % 6 == 5)
        if lastp: scal += [f"s_sub_u32 {s(sCNT)}, {s(sCNT)}, 1", f"s_cmp_lg_u32 {s(sCNT)}, 0"]
        bar = has_m and p % 2 == 0
        if has_m:
            gap = 0
            for kb in range(3):
                gb = p*3 + kb
                seq = [(rt, ks if rt % 2 == 0 else 3-ks) for rt in range(4) for ks in range(4)]
                for n, (rt, kk) in enumerate(seq):
                    D = v(Yr(p)+4*rt, 4)
                    Cc = '0' if (kb == 0 and n % 4 == 0) else D
                    A(f"v_mfma_f32_16x16x32_bf16 {D}, {AFr(gb, kk)}, {a(rt*48+(kb*4+kk)*4,4) if rt < 3 else v(160+(kb*4+kk)*4,4)}, {Cc}")
                    w1 = A.wait_lg_str(lambda t: t == ('a', gb+1)) if (gap in (15, 31, 46)) else None
                    w2 = A.wait_vm_str(lambda t: t == ('w', k+1)) if (bar and gap == bargap-1) else None
                    if w1 and w2: A(w2 + ' ' + w1.split()[1])
                    elif w1 or w2: A(w1 or w2)
                    elif bar and gap == bargap: pass
                    elif scal and n % 2 == 0: A(scal.pop(0))
                    if bar and gap == bargap: A("s_barrier")
                    if gap == 47: break
                    if n in (1, 3, 5, 7):
                        A.lds(*dsread(gb+1, n//2))
                        A(plain.pop(0))
                    elif gap in (41, 43):
                        A(plain.pop(0)); A(plain.pop(0))
                    elif gap == 26:
                        assert not scal
                        A.lds(dsw, 's')
                        if p % 6 == 4: A(f"v_add_u32 {v(vSUMA)}, 1536, {v(vSUMA)}")
                        if p % 2 == 1: A(f"v_add_u32 {v(vRB)}, {s(sRB)}, {v(vL16)}")
                    else:
                        l = trans.pop(0)
                        if gap == 46:
                            extra4 = 4 if (bar and bargap == 47) else 0
                            if (A.pc + 4 + extra4) % 8: l = l.replace('_f32', '_f32_e64')
                        A(l)
                    gap += 1
            assert not trans and not plain and not scal, (p, trans, plain, scal)
            assert A.pc % 8 == 0
        else:
            for l in scal + trans + plain: A(l)
            A.lds(dsw, 's')
            align8(A)
        dl = list(dm[1]) if dm else []
        st = list(stores)
        while st or dl:
            if st: A.vmem(st.pop(0), 'st')
            if dl: A.vmem(dl.pop(0), ('w', k+3))
        pb, pq = [], []
        if p-2 < NU:
            u = p-2; T = Tr(u); Y = Yr(u); S_ = Sr(u)
            for i in range(0, 16, 2): A(f"v_pk_mul_f32 {v(T+i,2)}, {v(T+i,2)}, {v(Y+i,2)}")
            for rt in range(4):
                for d in (0, 2):
                    if rt == 0: pq.append(f"v_pk_mul_f32 {v(S_+d,2)}, {v(T+d,2)}, {v(T+d,2)}")
                    else: pq.append(f"v_pk_fma_f32 {v(S_+d,2)}, {v(T+4*rt+d,2)}, {v(T+4*rt+d,2)}, {v(S_+d,2)}")
        if p-1 < NU:
            T = Tr(p-1)
            pb = [f"v_pk_fma_f32 {v(T+i,2)}, {v(T+i,2)}, {s(sA,2)}, {s(sA,2)}" for i in range(0, 16, 2)]
        while pb or pq:
            if pq: A(pq.pop(0))
            if pb: A(pb.pop(0))
        if has_m:
            T = Tr(p); Y = Yr(p)
            for i in range(0, 16, 2): A(f"v_pk_fma_f32 {v(T+i,2)}, {v(Y+i,2)}, {v(Y+i,2)}, {s(sK,2)}")
            for i in range(0, 16, 2): A(f"v_pk_mul_f32 {v(T+i,2)}, {v(T+i,2)}, {v(Y+i,2)} neg_lo:[1,0] neg_hi:[1,0]")

    ncopy = 4 if OPT['skew'] else 1
    for w in range(1, ncopy):
        A(f"s_cmp_eq_u32 {s(sWAVE)}, {w}")
        A(f"s_cbranch_scc1 L_k1_pre{w}")
    final_state = None
    for w in range(ncopy):
        A.label(f"L_k1_pre{w}")
        A("s_waitcnt lgkmcnt(0)")
        align8(A)
        bodies = []
        B = Asm()
        B.vm = [('w', 1)] + ['st']*4 + [('w', 2)]*6
        for it in range(16):
            start = len(B.lines)
            for p in range(it*6, it*6+6): period(B, p, 47 - OPT['skew']*w)
            bodies.append(B.lines[start:])
        assert all(b == bodies[0] for b in bodies)
        A.label(f"L_k1_loop{w}")
        for l in bodies[0]:
            if OPT['drop'] and re.match(OPT['drop'], l): continue
            A(l)
        if OPT['itr']:
            A(f"v_writelane_b32 v1, s98, m0".replace('m0', s(sCNT)) if False else f"s_mov_b32 m0, {s(sCNT)}")
            A("s_nop 0")
            A("v_writelane_b32 v1, s98, m0")
            A("s_memrealtime s[98:99]")
        A(f"s_cbranch_scc1 L_k1_loop{w}")
        if OPT['pf4']:
            A(f"s_cmp_lg_u32 {s(sPH)}, 0")
            A("s_cbranch_scc1 L_k1_tail")
            A(f"s_mov_b32 {s(sPH)}, 1")
            A(f"s_mov_b32 {s(sCNT)}, 1")
            code_pf(A, 'L_k1_tail', Yr(0), vL16, vDUM)
            A(f"s_branch L_k1_loop{w}")
        elif w < ncopy-1: A("s_branch L_k1_tail")
        final_state = (B.vm, B.lg)
    A.label("L_k1_tail")
    A.vm, A.lg = list(final_state[0]), list(final_state[1])
    def dpp_ops(S_):
        f = lambda d, x, ctl: f"v_add_f32_dpp {v(d)}, {v(x)}, {v(x)} {ctl}"
        return [f(S_, S_, "row_ror:8 row_mask:0xf bank_mask:0x3"), f(S_+1, S_+1, "row_ror:8 row_mask:0xf bank_mask:0x3"),
                f(S_, S_+2, "row_ror:8 row_mask:0xf bank_mask:0xc"), f(S_+1, S_+3, "row_ror:8 row_mask:0xf bank_mask:0xc"),
                f(S_, S_, "row_shl:4 row_mask:0xf bank_mask:0x5"), f(S_, S_+1, "row_shr:4 row_mask:0xf bank_mask:0xa"),
                f(S_, S_, "quad_perm:[2,3,0,1] row_mask:0xf bank_mask:0xf"), f(S_, S_, "quad_perm:[1,0,3,2] row_mask:0xf bank_mask:0xf")]
    def tr(op, u): return [f"{op} {v(Tr(u)+i)}, {v(Tr(u)+i)}" for i in range(16)]
    def pkC(u):
        T, Y, S_ = Tr(u), Yr(u), Sr(u)
        o = [f"v_pk_mul_f32 {v(T+i,2)}, {v(T+i,2)}, {v(Y+i,2)}" for i in range(0, 16, 2)]
        for rt in range(4):
            for d in (0, 2):
                if rt == 0: o.append(f"v_pk_mul_f32 {v(S_+d,2)}, {v(T+d,2)}, {v(T+d,2)}")
                else: o.append(f"v_pk_fma_f32 {v(S_+d,2)}, {v(T+4*rt+d,2)}, {v(T+4*rt+d,2)}, {v(S_+d,2)}")
        return o
    BS = 32
    def cvts(u):
        c, ht = divmod(u, 2); T = Tr(u)
        return [f"v_cvt_pk_bf16_f32 {v(BS+16*(c-46)+4*rt+2*ht+d)}, {v(T+4*rt+2*d)}, {v(T+4*rt+2*d+1)}" for rt in range(4) for d in range(2)]
    def weave(dpp, fill):
        fill = list(fill)
        for d in dpp:
            A(fill.pop(0)); A(fill.pop(0)); A(d)
        for l in fill: A(l)
    def sumw(u): A.lds(f"ds_write_b32 {v(vSUMA)}, {v(Sr(u))} offset:{(u-93)*256 + 256}", 's')
    A(f"v_subrev_u32 {v(vSUMA)}, 24576, {v(vSUMA)}")
    weave(dpp_ops(Sr(93)), tr('v_exp_f32', 95)); sumw(93)
    for l in tr('v_rcp_f32', 94): A(l)
    align8(A)
    for i in range(0, 16, 2): A(f"v_pk_fma_f32 {v(Tr(95)+i,2)}, {v(Tr(95)+i,2)}, {s(sA,2)}, {s(sA,2)}")
    for l in pkC(94): A(l)
    weave(dpp_ops(Sr(94)), tr('v_rcp_f32', 95)); sumw(94)
    align8(A)
    for l in pkC(95): A(l)
    weave(dpp_ops(Sr(95)), cvts(93) + cvts(94)); sumw(95)
    stamp(A, 'k1end')
    if OPT['itr']:
        A(f"s_lshl_b32 {s(sT0)}, {s(sGW)}, 7")
        A(f"s_add_u32 {s(sT0)}, {s(sT0)}, {STAMP + 0x40000:#x}")
        A(f"v_lshrrev_b32 v5, 2, {v(vL16)}")
        A("s_mov_b64 exec, 0xffff")
        A(f"buffer_store_dword v1, v5, {s(SW,4)}, {s(sT0)} offen")
        A("s_mov_b64 exec, -1")

    def acc(t, rt):
        r = {3: 0, 1: 96, 2: 192, 0: 288}[rt] + 4*((t+16) % 24 if rt == 2 and OPT['r3'] else t)
        return a(r, 4) if r < 256 else v(r - 128, 4)
    def accname(t, rt, i):
        r = {3: 0, 1: 96, 2: 192, 0: 288}[rt] + 4*((t+16) % 24 if rt == 2 and OPT['r3'] else t) + i
        return ('a', r) if r < 256 else ('v', r - 128)
    vTID4 = 4
    RB = 64
    A(f"s_lshl_b32 {s(sT0)}, {s(sWAVE)}, 10")
    A(f"s_add_u32 {s(sT0)}, {s(sT0)}, {LDS_SUM + 768:#x}")
    A(f"v_add_u32 v5, {s(sT0)}, {v(vL16)}")
    A(f"v_cmp_lt_u32 vcc, {LDS_SUM + 768 + 208*16 - 1:#x}, v5")
    A("v_subrev_u32 v7, 24576, v5")
    A("s_waitcnt lgkmcnt(0)"); A.lg = []
    A("v_cndmask_b32 v7, v5, v7, vcc")
    A("s_barrier")
    for q in range(6): A.lds(f"ds_read_b128 {v(RB+4*q,4)}, {'v7' if q == 5 else 'v5'} offset:{q*4096}", ('r', q))
    A(f"v_lshrrev_b32 {v(vTID4)}, 2, {v(vL16)}")
    A(f"s_lshl_b32 {s(sT0)}, {s(sWAVE)}, 8")
    A(f"v_add_u32 {v(vTID4)}, {s(sT0)}, {v(vTID4)}")
    A(f"v_and_b32 v6, {0xe3*4:#x}, {v(vTID4)}")
    A(f"v_bfe_u32 v7, {v(vTID4)}, 4, 2")
    A("v_lshl_add_u32 v6, v7, 5, v6")
    A(f"v_bfe_u32 v7, {v(vTID4)}, 6, 1")
    A("v_lshl_add_u32 v6, v7, 4, v6")
    A(f"s_lshr_b32 {s(sT0)}, s2, 3")
    A(f"s_and_b32 {s(sT0)}, {s(sT0)}, {NREP-1}")
    A(f"s_mul_i32 {s(sT0)}, {s(sT0)}, 6144")
    A(f"s_add_u32 {s(sT1)}, {s(sT0)}, 3072")
    for q in range(6):
        A.wait_lg(lambda t: t == ('r', q))
        r = RB+4*q
        A(f"v_add_f32 {v(r)}, {v(r)}, {v(r+1)}")
        A(f"v_add_f32 {v(r+2)}, {v(r+2)}, {v(r+3)}")
        A(f"v_add_f32 {v(r)}, {v(r)}, {v(r+2)}")
        A.vmem(f"buffer_atomic_add_f32 {v(r)}, v6, {s(ST,4)}, {s(sT0 if q < 3 else sT1)} offen offset:{(q%3)*1024} {OPT['apol']}", 'at')
    stamp(A, 'atom')
    GB, SHF, sSH = 104, 108, 30
    for q in range(3):
        A.vmem(f"buffer_load_dword {v(GB+q)}, {v(vTID4)}, {s(SG,4)}, 0 offen offset:{q*1024}", 'gb')
    A(f"s_add_u32 {s(sT1)}, {s(sGW)}, 128")
    A(f"s_lshl_b32 {s(sSH)}, {s(sT1)}, 10")
    A(f"s_add_u32 {s(sSH)}, {s(sSH)}, {W_BYTES:#x}")
    A.vmem(f"buffer_load_dwordx4 {v(SHF,4)}, {v(vL16)}, {s(SD,4)}, {s(sSH)} offen sc1", 'gb')
    A(f"s_add_u32 {s(sSH)}, {s(sSH)}, {W_BYTES:#x}")
    A(f"s_mul_hi_u32 {s(sT0)}, {s(sT1)}, 0x5555556")
    A(f"s_and_b32 {s(sT1)}, {s(sT1)}, 1")
    if OPT['rev']: A(f"s_sub_u32 {s(sT0)}, 24, {s(sT0)}")
    A(f"s_lshl_b32 {s(sT0)}, {s(sT0)}, 1")
    A(f"s_add_u32 {s(sT0)}, {s(sT0)}, {s(sT1)}")
    A(f"s_sub_u32 {s(sT0)}, {s(sT0)}, 2")
    A(f"s_lshl_b32 s31, {s(sT0)}, 7")
    for l in cvts(95): A(l)
    for rt in range(4):
        for d in range(2): A(f"v_mov_b32 {v(BS+4*rt+d)}, {v(Pq(46, rt)+d)}")
    vK0, vK1 = 2, 3
    A(f"v_lshrrev_b32 v5, 8, {v(vL16)}")
    A(f"v_bfe_u32 v7, {v(vL16)}, 4, 3")
    A("v_xor_b32 v7, v7, v5")
    A(f"v_and_b32 {v(vK0)}, 0xf0, {v(vL16)}")
    A(f"v_lshlrev_b32 {v(vK0)}, 3, {v(vK0)}")
    A(f"v_lshl_add_u32 {v(vK0)}, v7, 4, {v(vK0)}")
    A(f"s_lshl_b32 {s(sT0)}, {s(sWAVE)}, 11")
    A(f"s_add_u32 {s(sT0)}, {s(sT0)}, {LDS_XK:#x}")
    A(f"v_add_u32 {v(vK0)}, {s(sT0)}, {v(vK0)}")
    A(f"v_xor_b32 {v(vK1)}, 64, {v(vK0)}")
    XK = 56
    for u in range(2, 12):
        A.lds(f"ds_read_b128 {v(XK+4*u,4)}, {v((vK0, vK1)[u % 2])} offset:{(u//2)*8192}", ('xk', u))
    SEL = 24
    A(f"v_lshrrev_b32 v5, 8, {v(vL16)}")
    A(f"v_bfe_u32 v7, {v(vL16)}, 6, 2")
    A("v_cmp_eq_u32 vcc, v5, v7")
    A(f"v_and_b32 v5, 16, {v(vL16)}")
    A("v_mov_b32 v7, 0x3f80")
    A("v_lshlrev_b32 v7, v5, v7")
    A("v_cndmask_b32 v7, 0, v7, vcc")
    A(f"v_and_b32 v5, 32, {v(vL16)}")
    A("v_cmp_eq_u32 vcc, 0, v5")
    for i in (0, 1, 4, 5): A(f"v_mov_b32 {v(SEL+i)}, 0")
    A(f"v_cndmask_b32 {v(SEL+2)}, 0, v7, vcc")
    A(f"v_sub_u32 {v(SEL+3)}, v7, {v(SEL+2)}")
    A("s_nop 1")
    def xinit(rt, u, src):
        for e in range(2):
            A(f"v_mfma_f32_16x16x32_bf16 {acc(2*u+e, rt)}, {v(SEL+2-2*e,4)}, {src}, 0")
    for u in range(12): xinit(3, u, a(144+4*u, 4))
    for u in range(12): xinit(1, u, a(208+4*u, 4))
    A.wait_vm(lambda t: t == 'at')
    A("s_barrier")
    stamp(A, 'sigB')
    arrive_issue(A, 'arrB', 6, 4, 1)
    sHOFF, sINV, sM6 = 28, 29, 3
    A(f"s_mov_b32 {s(sM6)}, {s(sM0B)}")
    A(f"s_mul_i32 {s(sM0B)}, {s(sWAVE)}, 12288")
    A(f"s_lshl_b32 {s(sHOFF)}, {s(sWAVE)}, 10")
    kbof = (lambda pos: 23 - pos) if OPT['rev'] else (lambda pos: (pos - 1) % 24)
    if OPT['rev']: A(f"s_add_u32 {s(sHOFF)}, {s(sHOFF)}, {22*32768:#x}")
    vPA, vPD = 8, 9
    A(f"v_and_b32 {v(vXO)}, 0xf0, {v(vL16)}")
    A(f"v_mul_u32_u24 {v(vXO)}, 48, {v(vXO)}")
    A(f"v_lshrrev_b32 v5, 8, {v(vL16)}")
    A(f"v_lshl_add_u32 {v(vXO)}, v5, 4, {v(vXO)}")
    for u in range(12): xinit(2, u, v(208+4*u, 4))
    A.wait_lg(lambda t: True)
    for u in range(12): xinit(0, u, v(8+4*u if u < 2 else XK+4*u, 4))
    arrive_finish(A, 'arrB', 6, 4, 1)
    stamp(A, 'arr')
    def dma2_line(i): return f"buffer_load_dwordx4 {v(vL16)}, {s(SD,4)}, {s(sWOFF)} offen offset:{(i%4)*1024} {OPT['wpol']} lds"
    def dma2_ops(pos):
        ops = []
        if pos == 1:
            for i in range(6):
                pre = []
                if i % 3 == 0:
                    pre = [f"s_add_u32 {s(sWOFF)}, {s(sM6)}, {W_BYTES + 73728 + i*1024:#x}", f"s_add_u32 m0, {s(sM6)}, {73728 + i*1024:#x}"]
                ops.append((pre, dma2_line(i % 3), ('w2', pos), []))
            return ops
        for i in range(12):
            pre = []
            if i % 4 == 0:
                if i: pre.append(f"s_add_u32 {s(sWOFF)}, {s(sWOFF)}, 4096")
                elif pos == 2: pre.append(f"s_add_u32 {s(sWOFF)}, {s(sM0B)}, {W_BYTES + 2*49152:#x}")
                elif pos == 3: pre.append(f"s_add_u32 {s(sWOFF)}, {s(sWOFF)}, {49152-8192+W_BYTES:#x}")
                elif pos: pre.append(f"s_add_u32 {s(sWOFF)}, {s(sWOFF)}, {49152-8192}")
                pre.append(f"s_add_u32 m0, {s(sM0B)}, {(pos % 3)*49152 + i*1024:#x}")
            ops.append((pre, dma2_line(i), ('w2', pos), []))
        return ops
    vB1, vB2, TMP, RAW, AR, BQ, vTAB, vSA, vSD, vPL = 2, 3, 4, 16, 96, 120, 124, 125, 126, 127
    SQ = (8, 12)
    SETC = [16, 20, 24, 28, 4, 8, 12, 120]
    def hreg(pos, f):
        if pos < 2: return BS + 32*pos + 4*f
        return (SETC[f], BS + 32 + 4*f, BS + 4*f)[pos % 3]
    def hline(dst): return f"buffer_load_dwordx4 {v(dst,4)}, {v(vL16)}, {s(SH,4)}, {s(sHOFF)} offen {OPT['hlpol']}"
    hadv = f"s_add_u32 {s(sHOFF)}, {s(sHOFF)}, 4096"
    hback = f"s_sub_u32 {s(sHOFF)}, {s(sHOFF)}, {32768 + 28672}"
    def h_ops(pos, fs, raw=False):
        return [([], hline(RAW + 4*f if raw else hreg(pos, f)), ('h', pos, f//4), [hback if f == 7 and OPT['rev'] else hadv]) for f in fs]
    A(f"v_add_u32 {v(vB1)}, 0x10000, {v(vL16)}")
    A(f"v_add_u32 {v(vB2)}, 0x20000, {v(vL16)}")
    A(f"v_lshrrev_b32 {v(vTAB)}, 8, {v(vL16)}")
    A(f"v_lshlrev_b32 {v(vTAB)}, 5, {v(vTAB)}")
    A(f"v_add_u32 {v(vTAB)}, {LDS_TAB:#x}, {v(vTAB)}")
    A(f"v_add_u32 v13, s31, {v(vTAB)}")
    A(f"v_cmp_eq_u32 vcc, 256, {v(vTID4)}")
    A(f"s_lshr_b32 {s(sT0)}, s2, 3")
    A(f"s_and_b32 {s(sT0)}, {s(sT0)}, 15")
    A(f"s_lshl_b32 {s(sT0)}, {s(sT0)}, 8")
    A(f"s_add_u32 {s(sT0)}, {s(sT0)}, {CNT_C:#x}")
    A(f"v_mov_b32 {v(vSA)}, 0x100000")
    A(f"v_mov_b32 {v(vSD)}, {s(sT0)}")
    A(f"v_cndmask_b32 {v(vSA)}, {v(vSA)}, {v(vSD)}, vcc")
    A(f"v_mov_b32 {v(vSD)}, 1")
    A(f"v_lshlrev_b32 v5, 1, {v(vTID4)}")
    A(f"s_lshl_b32 {s(sT0)}, {s(sWAVE)}, 8")
    A(f"s_add_u32 m0, {s(sT0)}, {LDS_TAB + 6144:#x}")
    A(f"s_lshl_b32 {s(sT0)}, {s(sWAVE)}, 2")
    A(f"s_add_u32 {s(sT0)}, {s(sT0)}, {LDS_RED:#x}")
    A(f"v_mov_b32 v14, {s(sT0)}")
    A(f"v_mov_b32 v15, {LDS_RED:#x}")
    A.wait_vm(lambda t: t == 'gb')
    GF = 96
    for q in range(3):
        A(f"v_lshlrev_b32 {v(GF+2*q)}, 16, {v(GB+q)}")
        A(f"v_and_b32 {v(GF+2*q+1)}, 0xffff0000, {v(GB+q)}")
    SU = 112
    for d in range(4):
        A(f"v_lshlrev_b32 {v(SU+2*d)}, 16, {v(SHF+d)}")
        A(f"v_and_b32 {v(SU+2*d+1)}, 0xffff0000, {v(SHF+d)}")
    h1 = h_ops(1, range(4), raw=True) + h_ops(1, range(4, 8))
    if OPT['hpre']:
        poll_issue(A, 'pollB', vPA, vPD, 4)
        for _, l, tg, po in h1[:OPT['hpre']]:
            A.vmem(l, tg); A(po[0])
    A(f"s_cmp_lg_u32 {s(sWAVE)}, 0")
    A("s_cbranch_scc1 L_pollB_ok")
    keep = list(A.vm)
    if not OPT['hpre']: poll_issue(A, 'pollB', vPA, vPD, 4)
    poll(A, 'pollB', vPA, vPD, 4)
    A.vm = keep
    A("s_barrier")
    stamp(A, 'go')
    SR = 64
    sreg = lambda j: SR + j if j < 16 else 102 + j - 16
    assert NREP*6 <= 26
    for r in range(NREP):
        A(f"s_mov_b32 {s(sT0)}, {r*6144:#x}")
        A(f"s_mov_b32 {s(sT1)}, {r*6144 + 4096:#x}")
        for q in range(3):
            A.vmem(f"buffer_load_dwordx2 {v(sreg((r*3+q)*2),2)}, v5, {s(ST,4)}, {s(sT1 if q == 2 else sT0)} offen offset:{(q%2)*2048} sc1", 'sum')
    A(f"s_mov_b32 {s(sT0)}, {NREP*6144:#x}")
    for j in range(2):
        A.vmem(f"buffer_load_dword {v(vTID4)}, {s(ST,4)}, {s(sT0)} offen offset:{j*1024} sc1 lds", 'biasld')
    for _, l, tg, po in h1[OPT['hpre']:]:
        A.vmem(l, tg); A(po[0])
    A(f"v_add_u32 v5, {LDS_TAB:#x}, v5")
    A.wait_vm(lambda t: t == 'sum')
    for r in range(1, NREP):
        for i in range(6): A(f"v_add_f32 {v(SR+i)}, {v(SR+i)}, {v(sreg(r*6+i))}")
    for i in range(6): A(f"v_add_f32 {v(SR+i)}, {f2u(1e-6):#x}, {v(SR+i)}")
    for i in range(6): A(f"v_sqrt_f32 {v(SR+i)}, {v(SR+i)}")
    A("s_nop 0")
    A(f"v_add_f32 v6, {v(SR)}, {v(SR+1)}")
    for i in range(2, 6): A(f"v_add_f32 v6, v6, {v(SR+i)}")
    for j, n in enumerate((8, 4, 2, 1)):
        if j < 3:
            for i in (2*j, 2*j+1): A(f"v_mul_f32 {v(SR+i)}, {v(SR+i)}, {v(GF+i)}")
        else: A("s_nop 1")
        A(f"v_add_f32_dpp v6, v6, v6 row_ror:{n} row_mask:0xf bank_mask:0xf")
    for q in range(3): A.lds(f"ds_write_b64 v5, {v(SR+2*q,2)} offset:{q*2048}", 'tb')
    xlane_sum(A, (6,), (7,))
    A.lds("ds_write_b32 v14, v6", 'tb')
    A(f"v_mov_b32 v6, {f2u(1e-6):#x}")
    A.wait_vm(lambda t: t == 'biasld')
    A.wait_lg(lambda t: True)
    A("s_barrier")
    S8, SS = 64, 104
    A.lds("ds_read_b128 v[8:11], v15", 'red')
    for hh in range(2): A.lds(f"ds_read_b128 {v(SS+4*hh,4)}, v13 offset:{hh*16}", 'ss')
    for k2 in range(2):
        for hh in range(2):
            A.lds(f"ds_read_b128 {v(S8+8*k2+4*hh,4)}, {v(vTAB)} offset:{23*256 + k2*128 + hh*16}", 't0')
    A.wait_lg(lambda t: t == 'red')
    A("v_add_f32 v8, v8, v9")
    A("v_add_f32 v10, v10, v11")
    A("v_add_f32 v8, v8, v10")
    A(f"v_fmac_f32 v6, {f2u(1.0/1536):#x}, v8")
    A("v_rcp_f32 v6, v6")
    A.wait_lg(lambda t: t == 'ss')
    for i in range(8): A(f"v_fma_f32 {v(SS+i)}, {v(SS+i)}, v6, 1.0")
    A(f"v_readfirstlane_b32 {s(sINV)}, v6")
    for d in range(4): A(f"v_pk_mul_f32 {v(SU+2*d,2)}, {v(SU+2*d,2)}, {v(SS+2*d,2)}")
    for d in range(4): A(f"v_cvt_pk_bf16_f32 {v(BQ+d)}, {v(SU+2*d)}, {v(SU+2*d+1)}")
    A.vmem(f"buffer_store_dwordx4 {v(BQ,4)}, {v(vL16)}, {s(SD,4)}, {s(sSH)} offen sc1", 'share')
    def dsA(idx, step, k2):
        pos, t = step[:2]
        ad = (pos % 3)*49152 + (t*2+k2)*1024
        return (f"ds_read_b128 {v(AR + 8*(idx % 3) + 4*k2, 4)}, {v((vL16, vB1, vB2)[ad >> 16])} offset:{ad & 0xffff}", ('a2', idx))
    for i in range(2):
        for k2 in range(2): A.lds(*dsA(i, (0, i), k2))
    A.wait_lg(lambda t: t == 't0')
    for i in range(16): A(f"v_fma_f32 {v(S8+i)}, {v(S8+i)}, v6, 1.0")
    A(f"s_mov_b32 {s(sT2)}, 0xffff0000")
    align8(A)
    for k2 in range(2):
        for rt in range(4):
            F = BS + (k2*4+rt)*4
            T8 = 8
            for d in range(4):
                A(f"v_lshlrev_b32 {v(T8+2*d)}, 16, {v(F+d)}")
                A(f"v_and_b32 {v(T8+2*d+1)}, {s(sT2)}, {v(F+d)}")
            for d in range(4):
                A(f"v_pk_mul_f32 {v(T8+2*d,2)}, {v(T8+2*d,2)}, {v(S8+8*k2+2*d,2)}")
            for d in range(4):
                A(f"v_cvt_pk_bf16_f32 {v(F+d)}, {v(T8+2*d)}, {v(T8+2*d+1)}")
    sPF = 20
    A(f"s_getpc_b64 {s(sPF,2)}")
    A.label("L_pcl")
    A(f"s_add_u32 {s(sPF)}, {s(sPF)}, L_k3_last-L_pcl")
    A(f"s_addc_u32 {s(sPF+1)}, {s(sPF+1)}, 0")
    A(f"s_lshl_b32 {s(sPF+2)}, {s(sWAVE)}, 12")
    A(f"s_mov_b32 {s(sCNT)}, 6")
    A(f"s_sub_u32 s40, {s(sPF)}, L_k3_last-L_k3_loop")
    A(f"s_subb_u32 s41, {s(sPF+1)}, 0")
    sM3 = sPF + 3
    A(f"s_mul_i32 {s(sM3)}, {s(sWAVE)}, 3072")
    A(f"s_lshl_b32 {s(sT1)}, {s(sWAVE)}, 10")
    if OPT['fakest']:
        for rt in range(4):
            for j in range(3): A(f"s_add_u32 {s(82+rt*3+j)}, {s(sXO+rt)}, {j*4096}")
    A.wait_lg(lambda t: t == ('a2', 0))
    stamp(A, 'k3')

    def run(A, idx0, steps, after, vm, at, prog):
        allsteps = steps + after
        scal = []
        for i, st_ in enumerate(steps):
            pos, t = st_[:2]
            rows = st_[2] if len(st_) > 2 else (0, 1, 2, 3)
            nm = 2*len(rows)
            idx = idx0 + i
            q = list(vm.get(i, []))
            vgaps = ({0: (), 1: (4,), 2: (4, 6), 3: (2, 4, 6)} if nm == 8 else {0: (), 1: (2,)})[len(q)]
            if q: scal = list(q[0][0]) + scal
            stamp(A, f"s{idx}")
            for n in range(nm):
                rt, k2 = rows[n//2], n % 2
                kk = k2 if (n//2) % 2 == 0 else 1-k2
                D = acc(t, rt)
                A(f"v_mfma_f32_16x16x32_bf16 {D}, {v(AR+8*(idx%3)+4*kk,4)}, {v(hreg(pos, kk*4+rt),4)}, {D}")
                slots = 2
                wl, wv, bar, raw = [], [], False, []
                if n == nm-1: wl.append(('a2', idx+1))
                for act in at.get((i, n), []):
                    if act[0] == 'wv': wv.append(act[1])
                    elif act[0] == 'bar': bar = True
                    elif act[0] == 'scal': scal = scal + act[1]
                    elif act[0] == 'raw': raw.append(act[1])
                if not bar and (wl or wv or not scal):
                    while prog and prog[0][0] in ('wl', 'wv') and prog[0][2] <= i:
                        k_, tg, _ = prog.pop(0)
                        (wl if k_ == 'wl' else wv).append(tg)
                for tg in wv:
                    assert not any(o[2] == tg for j in range(i+1, len(steps)) for o in vm.get(j, [])) and not any(o[2] == tg for o in q), (tg, i, n)
                w1 = A.wait_lg_str(lambda tg: tg in wl)
                w2 = A.wait_vm_str(lambda tg: tg in wv)
                if w1 and w2: A(w2 + ' ' + w1.split()[1])
                elif w1 or w2: A(w1 or w2)
                elif bar: pass
                elif scal: A(scal.pop(0))
                if bar: A("s_barrier"); slots = 0
                for f in raw: f(A); slots = 0
                valu = False
                if nm == 4 and n == 0 and i+2 < len(allsteps):
                    for k_ in range(2): A.lds(*dsA(idx+2, allsteps[i+2], k_))
                    slots = 0
                elif nm == 8 and n in (0, 1) and i+2 < len(allsteps):
                    A.lds(*dsA(idx+2, allsteps[i+2], n)); slots -= 1
                elif n in vgaps:
                    assert slots == 2, (i, n)
                    o = q.pop(0)
                    while any(x in scal for x in o[0]) or hadv in scal or hback in scal:
                        A(scal.pop(0))
                        if not (any(x in scal for x in o[0]) or hadv in scal or hback in scal): A("s_nop 0")
                    if A.lines[-1].startswith(('s_add_u32 m0', 's_mov_b32 m0')): A("s_nop 0")
                    if len(o) > 4: o[4]()
                    A.vmem(o[1], o[2]); slots = 0
                    scal = list(o[3]) + (list(q[0][0]) if q else []) + scal
                while slots > 0 and prog and prog[0][2] <= i:
                    kind, pay, _ = prog[0]
                    if kind == 'v':
                        if isinstance(pay, tuple):
                            assert abs(pay[1] - t) >= 2, (pay, t)
                            pay = pay[0]
                        if pay.startswith('v_pk') and A.lines[-1].startswith('v_pk') and OPT['s0'] <= idx < OPT['s1']: break
                        A(pay); slots -= 1; valu = True
                    elif kind == 'lds':
                        if valu: break
                        A.lds(*pay); slots -= 1
                    elif kind == 'st':
                        if slots < 2: break
                        A.vmem(pay, 'o'); slots = 0
                    elif kind == 'mark':
                        pay()
                    else: break
                    prog.pop(0)
            assert not q
        assert not scal, scal
        return prog

    def spread(ops, first, per):
        d = {}
        for j, o in enumerate(ops): d.setdefault(first + j//per, []).append(o)
        return d
    def merge(*ds):
        r = {}
        for d in ds:
            for k_, l in d.items(): r.setdefault(k_, []).extend(l)
        return r
    def biasrd(q, t): return (f"ds_read_b128 {v(q,4)}, {v(vTAB)} offset:{6144 + (t>>1)*128 + (t&1)*16}", ('bq', t))
    def bias_prog(tiles, pk):
        qs = (BQ, TMP)
        pr = [('lds', biasrd(qs[0], tiles[0][0]), 0)]
        for j, (t, ms) in enumerate(tiles):
            if j+1 < len(tiles): pr.append(('lds', biasrd(qs[(j+1) % 2], tiles[j+1][0]), 0))
            pr.append(('wl', ('bq', t), ms))
            for rt in range(4):
                f, r0 = accname(t, rt, 0)
                if f == 'v' and pk:
                    for r in (0, 2): pr.append(('v', (f"v_pk_add_f32 {v(r0+r,2)}, {v(r0+r,2)}, {v(qs[j % 2]+r,2)}", t), ms))
                elif f == 'v':
                    for r in range(4): pr.append(('v', (f"v_add_f32 {v(r0+r)}, {v(r0+r)}, {v(qs[j % 2]+r)}", t), ms))
        return pr
    done = {}
    def conv_prog(pos, starts, pk):
        rd = lambda g4: ('lds', (f"ds_read_b128 {v(SQ[g4 % 2],4)}, {v(vTAB)} offset:{kbof(pos)*256 + (g4//2)*128 + (g4%2)*16}", ('tab', g4)), 0)
        pr = [rd(0), rd(1)]
        head = list(pr); pr = []
        for g4 in range(4):
            k2, hh = divmod(g4, 2)
            Q = SQ[g4 % 2]; ms = starts[k2]
            pr += [('wl', ('tab', g4), ms), ('wv', ('h', pos, k2), ms)]
            for j in range(4): pr.append(('v', f"v_fma_f32 {v(Q+j)}, {v(Q+j)}, {s(sINV)}, 1.0", ms))
            for rt in range(4):
                if OPT['even']: ms = max(starts[k2], starts[0] + (g4*4 + rt)*(23 - starts[0])//16)
                dst = hreg(pos, k2*4+rt) + 2*hh
                src = (RAW + 4*rt + 2*hh) if k2 == 0 else dst
                for d in range(2):
                    pr.append(('v', f"v_lshlrev_b32 {v(TMP+2*d)}, 16, {v(src+d)}", ms))
                    pr.append(('v', f"v_and_b32 {v(TMP+2*d+1)}, {s(sT2)}, {v(src+d)}", ms))
                if pk == 1 or (pk == 2 and k2 == 1) or (pk == 3 and k2 == 0):
                    for j in (0, 2): pr.append(('v', f"v_pk_mul_f32 {v(TMP+j,2)}, {v(TMP+j,2)}, {v(Q+j,2)}", ms))
                else:
                    for j in range(4): pr.append(('v', f"v_mul_f32 {v(TMP+j)}, {v(TMP+j)}, {v(Q+j)}", ms))
                for d in range(2): pr.append(('v', f"v_cvt_pk_bf16_f32 {v(dst+d)}, {v(TMP+2*d)}, {v(TMP+2*d+1)}", ms))
            if g4+2 < 4: pr.append(rd(g4+2))
            if g4 == 1: pr.append(('mark', lambda: done.__setitem__(pos, True), 0))
        return head, pr
    def need(pos):
        def f(): assert done.get(pos), pos
        return f
    blk = lambda pos: [(pos, t) for t in range(24)]

    arr_op = ([], f"buffer_atomic_add {v(vSD)}, {v(vSA)}, {s(ST,4)}, 0 offen {OPT['apol']}", 'arrC', [])
    poll_op = ([], f"buffer_load_dword {v(vPL)}, {v(vSA)}, {s(ST,4)}, 0 offen sc1", 'pollC', [])
    d2, d3, d4 = dma2_ops(2), dma2_ops(3), dma2_ops(4)
    n2 = OPT['n2']; tc = OPT['tc']; n3 = OPT['n3']
    head, cv = conv_prog(1, (OPT['c00'], OPT['c01']), OPT['pkc0'])
    vm = merge(spread(dma2_ops(1), 0, 1), {OPT['ta']+1: [arr_op]}, spread(d2[:n2], 6, 1),
               spread([o + (need(1),) for o in h_ops(2, range(4), raw=True)], 17, 2))
    at = {(OPT['ta'], 5): [('wv', 'share')], (OPT['ta'], 6): [('bar',)],
          (21, 5): [('wv', ('w2', 1))], (21, 6): [('bar',)]}
    left = run(A, 0, blk(0), blk(1)[:2], vm, at, head + bias_prog([(t, 1 + ((t-8)//2 if OPT['even'] else 0)) for t in range(8 if OPT['r3'] else 12, 24)], OPT['pkb0']) + cv)
    assert not left, len(left)
    stamp(A, 'b1')
    def pollC(A):
        pollA(A, 'pollC', vSA, vPL, ST, 16)
    head, cv = conv_prog(2, (OPT['c0'], 14), OPT['pkc1'])
    w3 = {}
    for j, o in enumerate(d3[:n3]): w3.setdefault(tc + 1 + j*(23-tc)//n3, []).append(o)
    vm = merge(spread(h_ops(2, range(4, 8)), 0, 2), spread(d2[n2:], 2, 1 if n2 >= 4 else 2), {OPT['tp']: [poll_op]},
               spread([o + (need(2),) for o in h_ops(3, range(4))], OPT['th'], 2), w3)
    at = {(tc, 1): [('raw', pollC)], (tc, 2): [('wv', ('w2', 2))], (tc, 3): [('bar',)]}
    bp = [('v', f"v_and_b32 {v(vSA)}, 0xf0, {v(vL16)}", 0), ('v', f"v_lshlrev_b32 {v(vSA)}, 4, {v(vSA)}", 0), ('v', f"v_add_u32 {v(vSA)}, {CNT_C:#x}, {v(vSA)}", 0)] + bias_prog([(t, t-5 if OPT['even'] else 1) for t in (5, 6, 7)] + [(t, t + (3 if OPT['even'] else 2)) for t in range(5)], OPT['pkb1'])
    left = run(A, 24, blk(1), blk(2)[:2], vm, at, head + bp + cv)
    assert not left, len(left)
    stamp(A, 'b2')
    if n3 == 4:
        vm = merge(spread(h_ops(3, range(4, 8)), 0, 2), spread(d3[4:], 2, 2), spread(d4, 6, 2), spread(h_ops(4, range(8)), 12, 1))
    else:
        assert n3 == 8
        w4 = {}
        for j, o in enumerate(d4): w4.setdefault(6 + j*9//12, []).append(o)
        vm = merge(spread(h_ops(3, range(4, 8)), 0, 2), spread(d3[8:], 2, 1), w4, spread(h_ops(4, range(8)), 15, 1))
    at = {(5, 2): [('bar',)], (21, 2): [('wv', ('w2', 3))], (21, 3): [('bar',)], (23, 7): [('wv', ('h', 3, 1))]}
    pr = []
    if OPT['pf5']:
        pr = [('v', l, 0) for l in pf_addr("L_end-L_k3_loop", vSD, vL16, 40)]
        vm[1].append(([f"s_mov_b32 m0, {LDS_SCR:#x}"], f"global_load_lds_dword {v(vSD,2)}, off", 'pf', []))
    run(A, 48, blk(2), blk(3)[:2], vm, at, pr)
    align8(A)
    stamp(A, 'k3l')
    def pf_prog(lim='L_end-L_k3_last'): return [('v', l, 0) for l in pf_addr(lim, vSD, vL16, sPF)]
    pf_op = ([f"s_mov_b32 m0, {LDS_SCR:#x}"], f"global_load_lds_dword {v(vSD,2)}, off", 'pf', [])
    def steady(A, pos):
        vm = merge(spread(dma2_ops(pos+2), 2, 1), spread(h_ops(pos+2, range(8)), 14, 1))
        at = {(1, 2): [('wv', ('w2', pos+1))], (1, 3): [('bar',)], (23, 7): [('wv', ('h', pos+1, 1))]}
        pr = []
        if pos % 3 == 1:
            at[(22, 0)] = [('scal', [f"s_sub_u32 {s(sCNT)}, {s(sCNT)}, 1", f"s_cmp_lg_u32 {s(sCNT)}, 0"])]
            if OPT['pf3']:
                pr = pf_prog(s(sT0) if OPT['pfl'] else 'L_end-L_k3_last'); vm[1] = [pf_op]
        if pos % 3 == 0 and OPT['pf3'] and OPT['pfl']:
            at[(22, 0)] = [('scal', [f"s_cmp_eq_u32 {s(sCNT)}, 1", f"s_cselect_b32 {s(sT0)}, L_end-L_k3_last, 0"])]
        left = run(A, 24*pos, blk(pos), blk(pos+1)[:2], vm, at, pr)
        assert not left
    B = Asm(); B.vm, B.lg = list(A.vm), list(A.lg)
    bodies = {}
    for pos in range(3, 20):
        start = len(B.lines)
        steady(B, pos)
        assert bodies.setdefault(pos % 3, B.lines[start:]) == B.lines[start:], pos
    if OPT['itr3']: A("s_mov_b32 s93, 0")
    A("s_branch L_k3_enter")
    align8(A)
    A.label("L_k3_loop")
    for r in (2, 0, 1):
        if r == 0: A.label("L_k3_enter")
        if OPT['itr3']:
            A("s_mov_b32 m0, s93"); A("s_add_u32 s93, s93, 1")
            A("v_writelane_b32 v125, s98, m0") if OPT['itr3'] == 1 else A("v_writelane_b32 v125, s98, m0")
            A("s_memrealtime s[98:99]" if OPT['itr3'] == 1 else "s_memtime s[98:99]")
        for l in bodies[r]:
            if OPT['drop3'] and re.match(OPT['drop3'], l): continue
            A(l)
    A("s_cbranch_scc1 L_k3_loop")
    A.label("L_k3_last")
    A.vm, A.lg = list(B.vm), list(B.lg)
    stamp(A, 'k3loopend')
    if OPT['itr3']:
        A(f"s_lshl_b32 {s(sT0)}, {s(sGW)}, 7")
        A(f"s_add_u32 {s(sT0)}, {s(sT0)}, {STAMP + 0x40000:#x}")
        A(f"v_lshrrev_b32 v126, 2, {v(vL16)}")
        A("s_mov_b64 exec, 0x1ffff")
        A(f"buffer_store_dword v125, v126, {s(SW,4)}, {s(sT0)} offen")
        A("s_mov_b64 exec, -1")
        A("s_nop 4")
    RA, RB_ = (0, 2), (1, 3)
    L = OPT['L']
    steps = [(20, t, RA) for t in range(24)] + [(20, t, RB_) for t in range(24)]
    def zig(t, rows): return [(21, t, rows), (22, t, rows[::-1]), (23, t, rows)]
    for t in range(L): steps += zig(t, RA)
    for t in range(L): steps += zig(t, RB_)
    for t in range(L, 24): steps += zig(t, (0, 1, 2, 3))
    fin = {}
    for i, (pos, t, rows) in enumerate(steps):
        if pos == 23 and t % 2 == 1:
            for rt in rows: fin[(t//2, rt)] = i + (2 if len(steps[min(i+1, len(steps)-1)][2]) == 4 else 3)
    def hx(pos, rows):
        return [([f"s_add_u32 {s(sHOFF)}, {s(sT1)}, {kbof(pos)*32768 + k2*16384 + rt*4096:#x}"], hline(hreg(pos, k2*4+rt)), ('hx', pos, rows), [])
                for rt in rows for k2 in range(2)]
    def wq(pos, qu):
        pre = [f"s_add_u32 {s(sWOFF)}, {s(sM3)}, {2*W_BYTES + pos*49152 + qu*12288:#x}", f"s_add_u32 m0, {s(sM3)}, {(pos % 3)*49152 + qu*12288:#x}"]
        return [(pre if j == 0 else [], dma2_line(j), ('wq', pos, qu), []) for j in range(3)]
    pool, pr = [], []
    def ostore(P, u, rt):
        if OPT['fakest']: return f"buffer_store_dwordx4 {v(P,4)}, {v(vL16)}, {s(SO,4)}, {s(40+u//4+3*(rt%1))} offen offset:{(u%4)*1024} {OPT['opol']}".replace(f", {s(40+u//4)} ", f", {s(82+rt*3+u//4)} ")
        return f"buffer_store_dwordx4 {v(P,4)}, {v(vXO)}, {s(SO,4)}, {s(sXO+rt)} offen offset:{u*64} {OPT['opol']}"
    def pack(a0_, b0_, u, rt, ms):
        pr.append(('v', f"v_cvt_pk_bf16_f32 {v(a0_)}, {v(a0_)}, {v(a0_+1)}", ms))
        pr.append(('v', f"v_cvt_pk_bf16_f32 {v(a0_+1)}, {v(a0_+2)}, {v(a0_+3)}", ms))
        pr.append(('v', f"v_cvt_pk_bf16_f32 {v(a0_+2)}, {v(b0_)}, {v(b0_+1)}", ms))
        pr.append(('v', f"v_cvt_pk_bf16_f32 {v(a0_+3)}, {v(b0_+2)}, {v(b0_+3)}", ms))
        pr.append(('st', ostore(a0_, u, rt), ms))
        pool.append(b0_); pool.append(a0_)
    bq = {}
    def bias_fetch(key):
        bq[key] = (pool.pop(0), pool.pop(0))
        for e in range(2):
            l, _ = biasrd(bq[key][e], 2*key[0]+e)
            pr.append(('lds', (l, ('bq', key)), 0))
    def unit(u, rt, key=None):
        f, r0 = accname(2*u, rt, 0)
        ms = fin[(u, rt)]
        if f == 'v': return pack(r0, r0+4, u, rt, ms)
        assert len(pool) >= 3, (u, rt)
        T = (pool.pop(0), pool.pop(0))
        for e in range(2):
            for r in range(4): pr.append(('v', f"v_accvgpr_read_b32 {v(T[e]+r)}, {a(r0+4*e+r)}", ms))
        pr.append(('wl', ('bq', key), 0))
        for e in range(2):
            for r in range(4): pr.append(('v', f"v_add_f32 {v(T[e]+r)}, {v(T[e]+r)}, {v(bq[key][e]+r)}", ms))
        pack(T[0], T[1], u, rt, ms)
    groups = [((u, 'a'), [(u, 2)]) for u in range(L//2) if accname(2*u, 2, 0)[0] == 'a'] + [((u, 'b'), [(u, 1), (u, 3)]) for u in range(L//2)]
    groups += [((u, 'c'), [(u, rt) for rt in (1, 2, 3) if accname(2*u, rt, 0)[0] == 'a']) for u in range(L//2, 12)]
    vlist = [(u, rt) for u in range(12) for rt in (0, 2) if accname(2*u, rt, 0)[0] == 'v']
    unit(*vlist.pop(0)); unit(*vlist.pop(0)); bias_fetch(groups[0][0]); unit(*vlist.pop(0))
    groups.sort(key=lambda g_: fin[g_[1][0]])
    for gi, (key, us) in enumerate(groups):
        while vlist and fin[vlist[0]] <= max(fin[us[0]], fin[(2, 0)] + 4*gi): unit(*vlist.pop(0))
        early = gi+1 < len(groups) and len(pool) >= 5
        if early: bias_fetch(groups[gi+1][0])
        for u, rt in us: unit(u, rt, key)
        pool.extend(bq[key])
        if gi+1 < len(groups) and not early: bias_fetch(groups[gi+1][0])
    assert not vlist
    def place(d, ops, first, stride=1):
        for j, o in enumerate(ops):
            assert first + j*stride not in d
            d[first + j*stride] = [o]
    vm = {}
    T0_ = 48
    if OPT['sch'] == 0:
        place(vm, hx(22, RA), 0); place(vm, wq(22, 0) + wq(22, 1), 4, 2); place(vm, hx(22, RB_), 16, 2)
        place(vm, hx(23, RA), 24); place(vm, wq(22, 2), 28); place(vm, wq(23, 0), 31); place(vm, wq(22, 3), 34)
        place(vm, wq(23, 1), 37); place(vm, wq(23, 2), 43); place(vm, hx(23, RB_), T0_); place(vm, wq(23, 3), T0_+4)
        at = {(2, 3): [('wv', ('w2', 21))], (3, 1): [('bar',)],
              (30, 1): [('bar',)], (36, 1): [('bar',)],
              (41, 3): [('wv', ('wq', 23, 0))], (42, 1): [('bar',)],
              (T0_+2, 3): [('wv', ('wq', 23, 1))], (T0_+3, 1): [('bar',)],
              (T0_+3*L-4, 3): [('wv', ('wq', 23, 3))], (T0_+3*L-3, 1): [('bar',)]}
    else:
        place(vm, wq(22, 0) + wq(22, 1), 4); place(vm, hx(22, RA), 10, 2); place(vm, wq(22, 2) + wq(22, 3), 18)
        place(vm, hx(23, RA), 24, 2); place(vm, wq(23, 0), 31)
        place(vm, hx(22, RB_)[:2], 34, 2); place(vm, wq(23, 1), 37); place(vm, hx(22, RB_)[2:], 40, 2)
        place(vm, wq(23, 2), 43); place(vm, hx(23, RB_), T0_); place(vm, wq(23, 3), T0_+4)
        at = {(2, 3): [('wv', ('w2', 21))], (3, 1): [('bar',)],
              (30, 1): [('bar',)], (36, 1): [('bar',)], (42, 1): [('bar',)],
              (45, 3): [('wv', ('wq', 23, 0))], (46, 1): [('bar',)],
              (T0_+3, 1): [('bar',)],
              (T0_+14, 3): [('wv', ('wq', 23, 1))], (T0_+15, 1): [('bar',)],
              (T0_+3*L-1, 3): [('wv', ('hx', 22, RB_))],
              (T0_+3*L+1, 3): [('wv', ('wq', 23, 3))], (T0_+3*L+2, 1): [('bar',)]}
    assert L <= 12 and min(fin.values()) > T0_+6
    if OPT['pf6']:
        pr = pf_prog() + pr
        place(vm, [pf_op], OPT['pf6'])
    at.setdefault((T0_, 1), []).append(('raw', lambda A: stamp(A, 't1')))
    at.setdefault((T0_+6*L, 3), []).append(('raw', lambda A: stamp(A, 't2')))
    left = run(A, 24*20, steps, [], vm, at, pr)
    stamp(A, 't3')
    A("s_nop 7")
    for kind, pay, _ in left:
        if kind == 'v': A(pay)
        elif kind == 'lds': A.lds(*pay)
        elif kind == 'st': A.vmem(pay, 'o')
        elif kind == 'wl': A.wait_lg(lambda tg: tg == pay)
        else: assert False
    print("epilogue items left after the last MFMA:", len(left), "stores:", sum(1 for x in left if x[0] == 'st'))
    if OPT['stamps']:
        A("s_waitcnt vmcnt(0)")
        stamp(A, 'end')
        A(f"s_lshl_b32 {s(sT0)}, {s(sGW)}, 7")
        A(f"s_add_u32 {s(sT0)}, {s(sT0)}, {STAMP:#x}")
        A("s_waitcnt lgkmcnt(0)")
        A("s_mov_b64 exec, 1")
        A("v_mov_b32 v2, 0")
        for i in range(nstamp[0]):
            A(f"v_mov_b32 v4, {s(streg(i))}")
            A(f"v_mov_b32 v5, {s(streg(i) + (0 if OPT['rtonly'] else 2))}")
            A(f"buffer_store_dwordx2 v[4:5], v2, {s(SW,4)}, {s(sT0)} offen offset:{8*i}")
    if OPT['leak']:
        A("s_waitcnt vmcnt(0)")
        stamp(A, 'end')
        A("s_memrealtime s[100:101]")
        A(f"s_cmp_lg_u32 {s(sGW)}, 0")
        A("s_cbranch_scc1 L_end")
        A("s_waitcnt lgkmcnt(0)")
        A("s_sub_u32 s94, s98, s96")
        A("s_mul_i32 s94, s94, 10")
        A("s_min_u32 s94, s94, 200000")
        A.label("L_leak")
        A("s_memrealtime s[92:93]")
        A("s_waitcnt lgkmcnt(0)")
        A("s_sub_u32 s92, s92, s100")
        A("s_cmp_lt_u32 s92, s94")
        A("s_cbranch_scc1 L_leak")
    A.label("L_end")
    A("s_endpgm")
    return A


def main():
    A = gen()
    body = A.text()
    body = body.replace(" s_cbranch_scc1 L_exit_early\n", " s_cbranch_scc0 L_go\n s_endpgm\n s_nop 0\nL_go:\n")
    head = open('standalone__modern_conv_block_slak__vision.s.ref').read().split('; Override launch')[0]
    out = head
    out += f"; @launch grid=(256,1,1) block=(256,1,1) lds={LDS_BYTES}\n"
    out += """;
; One persistent kernel, one workgroup (4 waves, 512 registers each) per CU, 256 rows per workgroup.
;  1. prologue: x comes in through LDS; y = x*dw, layer norm, result kept in registers as MFMA operand; raw x is kept
;     counter in d_debug) and grn_b . w2 is summed.
;  2. GEMM1 (16x16x32 bf16, w1 streamed L2 -> LDS ring) software-pipelined with tanh-GELU
;     (u / (1 + exp2(-c u (1 + 0.044715 u^2)))), h stored to d_ws in fragment order, sums of h^2 per channel.
;     Four copies of the loop differ only in the place of the barrier, which keeps the waves' memory bursts apart.
;  3. sums are added across workgroups (atomics), grid-wide wait, GRN scale s = 1 + g*gx/(mean(gx)+eps).
;     Accumulators start from x (selector MFMAs). Every wave scales one fragment of w2 by s for everybody.
;  4. GEMM2: the first three k blocks scale h on the fly, the others use the scaled w2; the last blocks run column
;     by column so that the output streams out while the rest is computed.
; Generated by a script of mine (register allocation / slot scheduling are explicit there).
"""
    out += '.amdgcn_target "amdgcn-amd-amdhsa--gfx950"\n'
    out += kernel_text(NAME, body)
    out += '.section .rodata,"a"\n'
    out += descriptor(NAME, 512, 256)
    open(sys.argv[1], 'w').write(out)
    print(f"wrote {sys.argv[1]}: {len(out)} bytes, {out.count(chr(10))} lines, code ~{A.pc} B")

main()
```
